```python
import torch

def _softmax(x, axis=-1):
    return torch.softmax(x, dim=axis)

def _gelu(x):
    return torch.nn.functional.gelu(x, approximate='tanh')

def _silu(x):
    return torch.nn.functional.silu(x)

def _sigmoid(x):
    return torch.sigmoid(x)

def _layernorm(x, axis=-1, eps=1e-05):
    m = x.mean(dim=axis, keepdim=True)
    v = x.var(dim=axis, keepdim=True, unbiased=False)
    return (x - m) / torch.sqrt(v + eps)

def _scatter_add(tgt, idx, src, axis=0):
    return tgt.clone().index_add_(axis, idx, src)

def _segment_sum(src, seg, n):
    out = torch.zeros((n,) + src.shape[1:], dtype=src.dtype)
    return out.index_add_(0, seg, src)

def _pad(x, pw):
    flat = tuple((v for pair in reversed(pw) for v in pair))
    return torch.nn.functional.pad(x, flat)
kernel_name = 'adaLN_cond__gqa_block_cached__glu_gated_geglu__decode'

def setup_inputs():

    _w = lambda a: (lambda t: t.to(torch.bfloat16) if t.is_floating_point() else t)(torch.as_tensor(a))

    def _A_setup():
        B, Sq, D = (1, 1, 640)
        Hq, Hkv, Sk, Dh = (32, 32, 4096, 128)
        assert Hq % Hkv == 0, (Hq, Hkv)
        return {'x': _w((lambda *s: torch.randn(*s, dtype=torch.bfloat16) * 0.05)(B, Sq, D)), 'k_cache': _w((lambda *s: torch.randn(*s, dtype=torch.bfloat16) * 3.2)(B, Hkv, Sk, Dh)), 'v_cache': _w((lambda *s: torch.randn(*s, dtype=torch.bfloat16) * 3.2)(B, Hkv, Sk, Dh)), 'wq': _w((lambda *s: torch.randn(*s, dtype=torch.bfloat16) * 3.2)(D, Hq * Dh) * D ** (-0.5)), 'wo': _w((lambda *s: torch.randn(*s, dtype=torch.bfloat16) * 3.2)(Hq * Dh, D) * (Hq * Dh) ** (-0.5))}
    _A_in = _A_setup()

    def _B_setup():
        B, S, Dm, Df = (1, 1, 640, 1728)
        return {'x': _w((lambda *s: torch.randn(*s, dtype=torch.bfloat16) * 0.05)(B, S, Dm)), 'w_gate': _w((lambda *s: torch.randn(*s, dtype=torch.bfloat16) * 3.2)(Dm, Df) * Dm ** (-0.5)), 'w_up': _w((lambda *s: torch.randn(*s, dtype=torch.bfloat16) * 3.2)(Dm, Df) * Dm ** (-0.5)), 'w_down': _w((lambda *s: torch.randn(*s, dtype=torch.bfloat16) * 3.2)(Df, Dm) * Df ** (-0.5))}
    _B_in = _B_setup()
    return {'A_x': _A_in['x'], 'A_k_cache': _A_in['k_cache'], 'A_v_cache': _A_in['v_cache'], 'A_wq': _A_in['wq'], 'A_wo': _A_in['wo'], 'B_x': _B_in['x'], 'B_w_gate': _B_in['w_gate'], 'B_w_up': _B_in['w_up'], 'B_w_down': _B_in['w_down'], 'c': _w((lambda *s: torch.randn(*s, dtype=torch.bfloat16) * 0.1)(1, 640) * 8.0), 'w_mod': _w((lambda *s: torch.randn(*s, dtype=torch.bfloat16) * 0.1)(640, 6 * 640) * 640 ** (-0.5) * 8.0)}

def reference(A_x, A_k_cache, A_v_cache, A_wq, A_wo, B_x, B_w_gate, B_w_up, B_w_down, c, w_mod):

    def _A_ref(x, k_cache, v_cache, wq, wo):
        B, Sq, D = x.shape
        Hq, Dh = (32, 128)
        Hkv = k_cache.shape[1]
        rep = Hq // Hkv
        q = (lambda x, *d: x.permute(*d))((x @ wq).reshape(B, Sq, Hq, Dh), 0, 2, 1, 3)
        k = (lambda x, n, axis: torch.repeat_interleave(x, n, dim=axis))(k_cache, rep, axis=1)
        v = (lambda x, n, axis: torch.repeat_interleave(x, n, dim=axis))(v_cache, rep, axis=1)
        scores = torch.einsum('bhqd,bhkd->bhqk', q, k) * Dh ** (-0.5)
        p = _softmax(scores, axis=-1)
        o = torch.einsum('bhqk,bhkd->bhqd', p, v)
        return (lambda x, *d: x.permute(*d))(o, 0, 2, 1, 3).reshape(B, Sq, Hq * Dh) @ wo

    def _B_ref(x, w_gate, w_up, w_down):
        g = torch.einsum('bsd,df->bsf', x, w_gate)
        u = torch.einsum('bsd,df->bsf', x, w_up)
        h = _gelu(g) * u
        return torch.einsum('bsf,fd->bsd', h, w_down)
    x = A_x
    mod = (_silu(c) @ w_mod).reshape(c.shape[0], 6, 1, -1)
    sa, ca, ga, sb, cb, gb = (mod[:, 0].clone(), mod[:, 1].clone(), mod[:, 2].clone(), mod[:, 3].clone(), mod[:, 4].clone(), mod[:, 5].clone())
    h = _layernorm(x, axis=-1) * (1 + ca) + sa
    x = x + ga * _A_ref(h, A_k_cache, A_v_cache, A_wq, A_wo)
    h = _layernorm(x, axis=-1) * (1 + cb) + sb
    x = x + gb * _B_ref(h, B_w_gate, B_w_up, B_w_down)
    return x
```

```python
import re
NAME = "adaLN_cond__gqa_block_cached__glu_gated_geglu__decode"

def _regs(tok):
    tok = tok.strip()
    tok = tok.lstrip('-')
    m = re.fullmatch(r'abs\((.*)\)|\|(.*)\|', tok)
    if m: tok = m.group(1) or m.group(2)
    m = re.fullmatch(r'([vsa])(\d+)', tok)
    if m: return {(m.group(1), int(m.group(2)))}
    m = re.fullmatch(r'([vsa])\[(\d+):(\d+)\]', tok)
    if m: return {(m.group(1), i) for i in range(int(m.group(2)), int(m.group(3)) + 1)}
    if tok == 'vcc': return {('s', 106), ('s', 107)}
    if tok == 'vcc_lo': return {('s', 106)}
    if tok == 'vcc_hi': return {('s', 107)}
    if tok == 'exec': return {('s', 126), ('s', 127)}
    if tok == 'm0': return {('s', 124)}
    return set()

TRANS = ('v_exp_f32', 'v_log_f32', 'v_rcp_f32', 'v_rsq_f32', 'v_sqrt_f32', 'v_sin_f32', 'v_cos_f32')

class Ins:
    def __init__(self, line):
        self.line = line
        body = line.split(';')[0].strip()
        parts = body.split(None, 1)
        self.mn = parts[0]
        rest = parts[1] if len(parts) > 1 else ''
        ops = [o.strip() for o in rest.split(',')] if rest else []
        self.mods = ''
        if ops:
            toks = []; cur = ''; depth = 0
            for ch in rest:
                if ch == '[': depth += 1
                if ch == ']': depth -= 1
                if ch == ',' and depth == 0: toks.append(cur.strip()); cur = ''
                else: cur += ch
            toks.append(cur.strip())
            last = toks[-1].split(None, 1)
            toks[-1] = last[0]; self.mods = last[1] if len(last) > 1 else ''
            ops = toks
        self.ops = ops
        mn = self.mn
        self.valu = mn.startswith('v_')
        self.mfma = mn.startswith('v_mfma')
        self.dot = mn.startswith('v_dot')
        self.trans = any(mn.startswith(t) for t in TRANS)
        self.dpp = '_dpp' in mn or 'quad_perm' in self.mods or 'row_' in self.mods
        self.sdwa = '_sdwa' in mn
        self.perml = mn.startswith('v_permlane')
        self.rdlane = mn.startswith('v_readlane') or mn.startswith('v_readfirstlane')
        self.vmem = mn.startswith('buffer_') or mn.startswith('global_')
        self.ds = mn.startswith('ds_')
        self.salu = mn.startswith('s_')
        self.w = set(); self.r = set()
        R = [_regs(o) for o in ops]
        if self.valu:
            if self.perml:
                self.w = R[0] | R[1]; self.r = R[0] | R[1]
            elif mn.startswith('v_cmp'):
                self.w = R[0]; self.r = set().union(*R[1:])
            elif mn.startswith('v_writelane'):
                self.w = R[0]; self.r = set().union(*R)
            elif '_co_' in mn:
                self.w = R[0] | R[1]; self.r = set().union(*R[2:])
            else:
                self.w = R[0]; self.r = set().union(*R[1:]) if len(R) > 1 else set()
                if mn.startswith(('v_fmac', 'v_dot2c', 'v_mac')) or self.dpp or self.sdwa: self.r |= R[0]
                if mn.startswith('v_cndmask') and len(ops) == 3: self.r |= _regs('vcc')
        elif self.vmem:
            if 'load' in mn and ' lds' not in (' ' + self.mods):
                self.w = R[0]; self.r = set().union(*R[1:])
            else:
                self.r = set().union(*R)
            self.store = 'store' in mn
            self.ldsdma = ' lds' in (' ' + self.mods)
        elif self.ds:
            if 'read' in mn or 'rtn' in mn or 'permute' in mn or 'swizzle' in mn:
                self.w = R[0]; self.r = set().union(*R[1:])
            else:
                self.r = set().union(*R)
        elif self.salu:
            if mn.startswith(('s_cmp', 's_cbranch', 's_branch', 's_waitcnt', 's_nop', 's_barrier', 's_sleep', 's_endpgm', 's_setprio', 's_bitcmp')):
                self.r = set().union(*R) if R else set()
            else:
                self.w = R[0] if R else set(); self.r = set().union(*R[1:]) if len(R) > 1 else set()
                if 'saveexec' in mn: self.w |= _regs('exec')
                if mn.startswith(('s_addk', 's_mulk')): self.r |= R[0]
    def states(self):
        if self.mn == 's_nop': return int(self.ops[0], 0) + 1
        return 1

def need(p, c):
    n = 0
    vw = {x for x in p.w if x[0] in 'va'}; sw = {x for x in p.w if x[0] == 's'}
    if p.valu and not p.mfma:
        if c.valu and c.dpp and (vw & c.r): n = max(n, 2)
        if c.perml and (vw & c.r): n = max(n, 2)
        if c.rdlane and (vw & c.r): n = max(n, 1)
        if c.mfma and (vw & c.r): n = max(n, 2)
        if sw:
            if c.valu and (sw & c.r): n = max(n, 4 if (c.rdlane or c.mn.startswith('v_writelane')) else 2)
            if c.vmem and (sw & c.r): n = max(n, 5)
        if p.trans and c.valu and not c.trans and (vw & c.r): n = max(n, 1)
        if (p.sdwa) and c.valu and (vw & (c.r | c.w)): n = max(n, 1)
        if p.dot and (c.valu or c.vmem or c.ds) and (vw & (c.r | c.w)):
            same_acc = c.dot and c.mn == p.mn and not (vw & set().union(*[_regs(o) for o in c.ops[1:3]]))
            if not same_acc: n = max(n, 3)
    if p.mfma:
        passes = 4 if '16x16x32' in p.mn else 8
        if c.mfma:
            ab = _regs(c.ops[1]) | _regs(c.ops[2]); cc = _regs(c.ops[3])
            if vw & ab: n = max(n, 8 if passes == 4 else 12)
            if (vw & cc) and cc != vw: n = max(n, 6 if passes == 4 else 10)
        elif (c.valu or c.vmem or c.ds) and (vw & (c.r | c.w)): n = max(n, 8 if passes == 4 else 12)
        pc = _regs(p.ops[3])
        if c.valu and not c.mfma and (pc & c.w): n = max(n, 3 if passes == 4 else 7)
    if p.salu and ('s', 124) in p.w and c.vmem and getattr(c, 'ldsdma', False): n = max(n, 1)
    if p.vmem and getattr(p, 'store', False) and ('x3' in p.mn or 'x4' in p.mn):
        data = _regs(p.ops[0])
        if (c.valu or c.vmem or c.ds) and (data & c.w): n = max(n, 2)
    return n

class Asm:
    def __init__(self, auto=True):
        self.L = []; self.hist = []; self.auto = auto; self.nops = 0
    def raw(self, s): self.L.append(s)
    def __call__(self, s):
        for line in s.split("\n"):
            t = line.split(';')[0].strip()
            if not t or t.startswith('.') or t.endswith(':') or not self.auto:
                self.L.append(line); continue
            ins = Ins(t)
            dist = 0; req = 0
            for p in reversed(self.hist):
                k = need(p, ins)
                if k > dist: req = max(req, k - dist)
                dist += p.states()
                if dist >= 20: break
            if req > 0:
                nop = Ins(f"s_nop {req-1}")
                self.L.append(f"    s_nop {req-1}"); self.hist.append(nop); self.nops += 1
            self.L.append("    " + line.strip()); self.hist.append(ins)
    def text(self): return "\n".join(self.L) + "\n"

def header(grid, block, lds, name=NAME + "_kernel"):
    return f"""; @launch grid=({grid},1,1) block=({block},1,1) lds={lds}
.amdgcn_target "amdgcn-amd-amdhsa--gfx950"
.text
.globl {name}
.p2align 8
.type {name},@function
{name}:
"""
def footer(vgpr, sgpr, accum, name=NAME + "_kernel"):
    return f""".section .rodata,"a"
.p2align 6
.amdhsa_kernel {name}
  .amdhsa_next_free_vgpr {vgpr}
  .amdhsa_next_free_sgpr {sgpr}
  .amdhsa_accum_offset {accum}
  .amdhsa_group_segment_fixed_size 0
  .amdhsa_kernarg_size 112
  .amdhsa_user_sgpr_count 2
  .amdhsa_user_sgpr_kernarg_segment_ptr 1
  .amdhsa_system_sgpr_workgroup_id_x 1
  .amdhsa_float_denorm_mode_32 3
.end_amdhsa_kernel
"""
```

```python
import sys, argparse
from asmlib import *

WS_EPOCH = 0x0
WS_G1    = 0x1000
WS_DONE  = 0xB000
WS_CLR1  = 0x20000
WS_Q2    = 0x20000
WS_O     = 0x40000
WS_CLR2  = 0x60000
WS_ML    = 0x60000
WS_Y     = 0x62000
WS_MR    = 0x67000
WS_OP    = 0x6A000
WS_STAMP = 0x100000
L_FLAG = 0x20000
C_F1, C_F2, C_Q, C_K, C_P, C_M, C_MAX = 0, 4, 8, 12, 16, 20, 24
L_RED1 = 0x20100
L_RED2 = 0x20800
L_QBUF = 0x21000
L_MAXB = 0x21100
L_PBUF = 0x21200
L_REDO = 0x21800
L_REDW = 0x22000
L_REDU1 = 0x22400
L_REDU2 = 0x22800
L_REDZ = 0x22C00
L_STAT = 0x23000
L_X2   = 0x23100
LDS_BYTES = 0x24000
LOG2E = 0x3fb8aa3b
TAGADD = 0x61C88647

class G:
    def __init__(self, opt):
        self.o = opt
        self.a = Asm()
        self.n = 0
    def lab(self, p="L"):
        self.n += 1
        return f"{p}_{self.n}"
    def stamp(self, k):
        if not self.o.stamps: return
        a = self.a; sk = self.lab("st")
        a(f"s_cbranch_execz {sk}\ns_memrealtime s[96:97]\ns_waitcnt lgkmcnt(0)\ns_mov_b32 s{80+k}, s96\n{sk}:")
    def dump_stamps(self):
        if not self.o.stamps: return
        a = self.a
        a("s_mov_b64 exec, 1")
        a("s_lshl_b32 s60, s2, 3\ns_add_u32 s60, s60, s3\ns_lshl_b32 s60, s60, 6")
        a(f"s_add_u32 s60, s60, {WS_STAMP}\nv_mov_b32 v1, 0")
        for q in range(4):
            for k in range(4): a(f"v_mov_b32 v{4+k}, s{80+4*q+k}")
            a(f"buffer_store_dwordx4 v[4:7], v1, s[44:47], s60 offen offset:{16*q}")
            a("s_nop 1")
    def waitvm(self, n):
        a = self.a; sk = self.lab("wv")
        a(f"s_cbranch_execz {sk}\ns_waitcnt vmcnt({n})\n{sk}:")
    def barrier(self):
        a = self.a; sk = self.lab("bar")
        a(f"s_cbranch_execz {sk}\ns_barrier\n{sk}:")
    def srd(self, q, ptr, size, off=0):
        a = self.a
        if off: a(f"s_add_u32 s{q}, s{ptr}, {off}\ns_addc_u32 s{q+1}, s{ptr+1}, 0")
        else: a(f"s_mov_b32 s{q}, s{ptr}\ns_mov_b32 s{q+1}, s{ptr+1}")
        a(f"s_mov_b32 s{q+2}, {size}\ns_mov_b32 s{q+3}, 0x20000")
    def lo(self, d, s): self.a(f"v_lshlrev_b32 v{d}, 16, v{s}")
    def hi(self, d, s): self.a(f"v_and_b32 v{d}, 0xffff0000, v{s}")
    def round2(self, x, y, t):
        self.a(f"v_cvt_pk_bf16_f32 v{t}, v{x}, v{y}"); self.lo(x, t); self.hi(y, t)
    def allred(self, v, t, op="add", bits=(0, 1, 2, 3, 4, 5)):
        a = self.a
        d = {0: "quad_perm:[1,0,3,2]", 1: "quad_perm:[2,3,0,1]", 2: "row_half_mirror", 3: "row_mirror"}
        for b in bits:
            if b < 4: a(f"v_{op}_f32_dpp v{v}, v{v}, v{v} {d[b]} row_mask:0xf bank_mask:0xf")
            else:
                a(f"v_mov_b32 v{t}, v{v}\nv_permlane{16 if b == 4 else 32}_swap_b32 v{t}, v{v}\nv_{op}_f32 v{v}, v{v}, v{t}")
    def ror(self, v, n): self.a(f"v_add_f32_dpp v{v}, v{v}, v{v} row_ror:{n} row_mask:0xf bank_mask:0xf")
    def red8(self, acc):
        a = self.a
        for k in range(4): a(f"v_permlane32_swap_b32 v{acc[k]}, v{acc[k+4]}")
        for k in range(4): a(f"v_add_f32 v{acc[k]}, v{acc[k]}, v{acc[k+4]}")
        for k in range(2): a(f"v_permlane16_swap_b32 v{acc[k]}, v{acc[k+2]}")
        for k in range(2): a(f"v_add_f32 v{acc[k]}, v{acc[k]}, v{acc[k+2]}")
    def red4(self, v):
        a = self.a
        a(f"v_permlane32_swap_b32 v{v[0]}, v{v[2]}\nv_permlane32_swap_b32 v{v[1]}, v{v[3]}")
        a(f"v_add_f32 v{v[0]}, v{v[0]}, v{v[2]}\nv_add_f32 v{v[1]}, v{v[1]}, v{v[3]}")
        a(f"v_permlane16_swap_b32 v{v[0]}, v{v[1]}\nv_add_f32 v{v[0]}, v{v[0]}, v{v[1]}")
    def permpair(self, A, B, T):
        a = self.a
        for k in range(len(A)):
            a(f"v_perm_b32 v{T[k]}, v{B[k]}, v{A[k]}, s12")
            a(f"v_perm_b32 v{B[k]}, v{B[k]}, v{A[k]}, s13")
        return list(T), list(B), list(A)
    def silu2(self, src, dst, t):
        a = self.a
        x0, x1, e0, e1 = t
        self.lo(x0, src); self.hi(x1, src)
        a(f"v_mul_f32 v{e0}, 0xbfb8aa3b, v{x0}\nv_mul_f32 v{e1}, 0xbfb8aa3b, v{x1}")
        a(f"v_exp_f32 v{e0}, v{e0}\nv_exp_f32 v{e1}, v{e1}")
        a(f"v_add_f32 v{e0}, 1.0, v{e0}\nv_add_f32 v{e1}, 1.0, v{e1}")
        a(f"v_rcp_f32 v{e0}, v{e0}\nv_rcp_f32 v{e1}, v{e1}")
        a(f"v_mul_f32 v{x0}, v{x0}, v{e0}\nv_mul_f32 v{x1}, v{x1}, v{e1}")
        a(f"v_cvt_pk_bf16_f32 v{dst}, v{x0}, v{x1}")
    def cnt_add(self, cnt, rtn=None):
        a = self.a
        a("s_mov_b64 s[14:15], exec\ns_and_b32 exec_lo, exec_lo, 1\ns_mov_b32 exec_hi, 0")
        if rtn is None: a(f"ds_add_u32 v14, v15 offset:{cnt}")
        else: a(f"ds_add_rtn_u32 v{rtn}, v14, v15 offset:{cnt}")
        a("s_mov_b64 exec, s[14:15]")
    def last_arriver(self, cnt, skip, t):
        a = self.a; go = self.lab("la")
        a("s_waitcnt lgkmcnt(0)")
        self.cnt_add(cnt, t)
        a(f"s_waitcnt lgkmcnt(0)\ns_cbranch_execz {go}\nv_readfirstlane_b32 s60, v{t}\ns_cmp_lg_u32 s60, 3\ns_cbranch_scc1 {skip}\n{go}:")
    def spin_lds(self, cnts, t):
        a = self.a; top = self.lab("sp"); out = self.lab("spo")
        a(f"s_mov_b32 s61, 0\n{top}:")
        for i, c in enumerate(cnts): a(f"ds_read_b32 v{t+i}, v14 offset:{c}")
        a(f"s_waitcnt lgkmcnt(0)\ns_cbranch_execz {out}")
        for i in range(1, len(cnts)): a(f"v_add_u32 v{t}, v{t}, v{t+i}")
        a(f"v_readfirstlane_b32 s60, v{t}\ns_cmp_ge_u32 s60, {4*len(cnts)}\ns_cbranch_scc1 {out}")
        a(f"s_sleep 1\ns_add_u32 s61, s61, 1\ns_cmp_lt_u32 s61, 0x40000\ns_cbranch_scc1 {top}\n{out}:")
    def poll(self, loads, check, sleep=0):
        a = self.a; top = self.lab("pl"); out = self.lab("plo")
        a(f"s_mov_b32 s61, 0\n{top}:")
        loads()
        self.waitvm(0)
        check()
        a(f"s_cbranch_vccz {out}")
        if sleep: a(f"s_sleep {sleep}")
        a(f"s_add_u32 s61, s61, 1\ns_cmp_lt_u32 s61, 0x8000\ns_cbranch_scc1 {top}\n{out}:")
    def chk_sent(self, regs, t):
        a = self.a
        regs = list(regs)
        if len(regs) == 1:
            a(f"v_cmp_eq_u32 vcc, -1, v{regs[0]}"); return
        if len(regs) % 2 == 0:
            a(f"v_max_u32 v{t}, v{regs[0]}, v{regs[1]}"); rest = regs[2:]
        else:
            a(f"v_max3_u32 v{t}, v{regs[0]}, v{regs[1]}, v{regs[2]}"); rest = regs[3:]
        for i in range(0, len(rest), 2): a(f"v_max3_u32 v{t}, v{t}, v{rest[i]}, v{rest[i+1]}")
        a(f"v_cmp_eq_u32 vcc, -1, v{t}")
    def sum4x4(self, base):
        a = self.a; b = base
        for h in (0, 2):
            a(f"v_pk_add_f32 v[{b+h}:{b+h+1}], v[{b+h}:{b+h+1}], v[{b+4+h}:{b+5+h}]")
            a(f"v_pk_add_f32 v[{b+8+h}:{b+9+h}], v[{b+8+h}:{b+9+h}], v[{b+12+h}:{b+13+h}]")
        for h in (0, 2):
            a(f"v_pk_add_f32 v[{b+h}:{b+h+1}], v[{b+h}:{b+h+1}], v[{b+8+h}:{b+9+h}]")
    def endwave(self):
        a = self.a
        a("s_cbranch_execz L_dry_ret")
        self.dump_stamps()
        a("s_endpgm")

    def build(self):
        a = self.a; o = self.o; D = o.depth; NT = o.nt; WNT = o.wnt
        a(header(256, 512, LDS_BYTES))
        a("s_cmp_ge_u32 s2, 256\ns_cbranch_scc1 L_end")
        a("s_load_dwordx16 s[16:31], s[0:1], 0\ns_load_dwordx8 s[32:39], s[0:1], 64\ns_load_dwordx4 s[40:43], s[0:1], 96")
        if o.stamps:
            a("s_memrealtime s[96:97]")
        a("v_lshrrev_b32 v1, 6, v0\nv_and_b32 v0, 63, v0\nv_readfirstlane_b32 s3, v1")
        a("s_and_b32 s4, s2, 7\ns_lshr_b32 s5, s2, 3\ns_lshr_b32 s6, s5, 3\ns_lshl_b32 s60, s4, 2\ns_add_u32 s6, s6, s60\ns_and_b32 s7, s5, 7")
        a("s_mov_b32 s12, 0x05040100\ns_mov_b32 s13, 0x07060302")
        a(f"v_mov_b32 v14, {L_FLAG}\nv_mov_b32 v15, 1")
        a("s_cmp_ge_u32 s3, 4\ns_cbranch_scc1 L_aux")
        a("v_lshrrev_b32 v4, 4, v0\nv_and_b32 v5, 15, v0\ns_lshl_b32 s60, s3, 2\nv_add_u32 v6, s60, v4")
        a("v_xor_b32 v2, v5, v6\nv_lshlrev_b32 v2, 4, v2\nv_lshl_add_u32 v2, v4, 8, v2\nv_lshlrev_b32 v3, 4, v0")
        a("s_lshl_b32 s62, s6, 20\ns_lshl_b32 s60, s7, 17\ns_add_u32 s62, s62, s60\ns_lshl_b32 s60, s3, 10\ns_add_u32 s62, s62, s60\ns_mov_b32 m0, s60\ns_mov_b32 s63, s62")
        a("s_waitcnt lgkmcnt(0)")
        if o.stamps:
            for k in range(16): a(f"s_mov_b32 s{80+k}, s96")
        self.srd(48, 18, 0x2000000); self.srd(52, 20, 0x2000000)
        a("s_mov_b32 s61, 0\nL_k1:")
        a(f"buffer_load_dwordx4 v2, s[48:51], s62 offen {NT} lds")
        a(f"s_addk_i32 s62, 0x1000\ns_addk_i32 m0, 0x1000\ns_add_u32 s61, s61, 1\ns_cmp_lt_u32 s61, {D}\ns_cbranch_scc1 L_k1")
        self.srd(44, 42, 0x10000000)
        for r in range(7, 14): a(f"v_mov_b32 v{r}, 0")
        a("s_mov_b32 s8, 0\ns_mov_b32 s9, 0\ns_mov_b32 s10, 0\ns_mov_b32 s11, 0")
        a("s_barrier")
        a("L_k2:")
        a(f"s_waitcnt vmcnt({D-1})")
        a(f"buffer_load_dwordx4 v2, s[48:51], s62 offen {NT} lds")
        a(f"s_addk_i32 s62, 0x1000\ns_addk_i32 m0, 0x1000\ns_add_u32 s61, s61, 1\ns_cmp_lt_u32 s61, 32\ns_cbranch_scc1 L_k2")
        self.stamp(1)
        VB = 128
        Vr = [[VB + 4 * t + k for k in range(4)] for t in range(32)]
        Tfree = [32, 33, 34, 35]
        pairs = {}
        def doperm(u):
            nonlocal Tfree
            lo, hi, Tfree = self.permpair(Vr[2*u], Vr[2*u+1], Tfree)
            pairs[u] = (lo, hi)
        for t in range(32):
            n = 32 + t
            a(f"s_waitcnt vmcnt({D-1})")
            if n - D == 31:
                self.cnt_add(C_K); self.stamp(2)
            a(f"buffer_load_dwordx4 v[{Vr[t][0]}:{Vr[t][3]}], v3, s[52:55], s63 offen {NT}")
            if t < 31: a("s_addk_i32 s63, 0x1000")
            done = n - D - 32
            if done >= 1 and done % 2 == 1: doperm(done // 2)
        self.stamp(3)
        a(f"v_lshlrev_b32 v7, 6, v6\nv_add_u32 v7, {L_PBUF}, v7")
        a(f"v_lshlrev_b32 v8, 5, v5\nv_lshl_add_u32 v8, v4, 3, v8\ns_lshl_b32 s60, s3, 9\ns_add_u32 s60, s60, {L_REDO}\nv_add_u32 v8, s60, v8")
        a("L_pv:")
        ACC = list(range(36, 44)); P = list(range(16, 32))
        for k in ACC: a(f"v_mov_b32 v{k}, 0")
        self.spin_lds([C_P], 9)
        self.stamp(4)
        for q in range(4): a(f"ds_read_b128 v[{16+4*q}:{19+4*q}], v7 offset:{16*q}")
        a("s_waitcnt lgkmcnt(0)")
        for u in range(16):
            if u not in pairs:
                self.waitvm(30 - 2*u)
                doperm(u)
            lo, hi = pairs[u]
            for k in range(4):
                a(f"v_dot2c_f32_bf16 v{ACC[2*k]}, v{lo[k]}, v{P[u]}")
                a(f"v_dot2c_f32_bf16 v{ACC[2*k+1]}, v{hi[k]}, v{P[u]}")
        self.stamp(5)
        self.red8(ACC)
        a(f"ds_write_b64 v8, v[{ACC[0]}:{ACC[1]}]")
        a(f"v_lshlrev_b32 v9, 4, v0\nv_add_u32 v10, {L_REDO}, v9")
        a(f"s_lshl_b32 s60, s6, 3\ns_add_u32 s60, s60, s7\ns_lshl_b32 s60, s60, 9\ns_add_u32 s62, s60, {WS_O}")
        a("s_waitcnt lgkmcnt(0)")
        self.barrier()
        a("s_cbranch_execz L_opub\ns_cmp_lg_u32 s3, 0\ns_cbranch_scc1 L_send\nL_opub:")
        a("s_mov_b32 exec_hi, 0")
        for q in range(4): a(f"ds_read_b128 v[{16+4*q}:{19+4*q}], v10 offset:{512*q}")
        a("s_waitcnt lgkmcnt(0)")
        self.sum4x4(16)
        a("buffer_store_dwordx4 v[16:19], v9, s[44:47], s62 offen sc1")
        a("L_send:")
        self.stamp(6)
        a("s_cbranch_execz L_final")
        self.dump_stamps()
        a("s_endpgm")

        a("L_aux:")
        a("s_sub_u32 s8, s3, 4")
        for r in range(2, 14): a(f"v_mov_b32 v{r}, 0")
        a("s_cmp_lg_u32 s8, 0\ns_cbranch_scc1 L_noinit")
        a(f"v_lshl_add_u32 v16, v0, 2, v14\nds_write_b32 v16, v2\nL_noinit:")
        a("s_mov_b32 s10, 1\ns_mov_b32 s11, s5\ns_cmp_lt_u32 s5, 20\ns_cbranch_scc1 L_roled")
        a("s_sub_u32 s60, s5, 20")
        a("s_cmp_ge_u32 s60, 8\ns_cbranch_scc1 L_roleM1")
        a("s_lshr_b32 s61, s60, 1\ns_lshl_b32 s61, s61, 3\ns_add_u32 s61, s61, s4")
        a("s_cmp_ge_u32 s61, 27\ns_cbranch_scc1 L_roleM2")
        a("s_mov_b32 s10, 2\ns_lshl_b32 s11, s61, 1\ns_and_b32 s60, s60, 1\ns_add_u32 s11, s11, s60\ns_branch L_roled")
        a("L_roleM1:\ns_mov_b32 s10, 3\ns_sub_u32 s60, s60, 8\ns_lshl_b32 s60, s60, 3\ns_add_u32 s11, s60, s4\ns_branch L_roled")
        a("L_roleM2:\ns_sub_u32 s61, s4, 3\ns_lshl_b32 s61, s61, 1\ns_add_u32 s61, s61, s60\ns_add_u32 s11, s61, 26\ns_mov_b32 s10, 3")
        a("s_cmp_lt_u32 s11, 40\ns_cbranch_scc1 L_roled\ns_mov_b32 s10, 0")
        a("L_roled:")
        a("v_lshrrev_b32 v16, 4, v0\nv_and_b32 v17, 15, v0\nv_min_u32 v17, 9, v17")
        a("s_waitcnt lgkmcnt(0)")
        if o.stamps:
            for k in range(16): a(f"s_mov_b32 s{80+k}, s96")
        a("s_load_dword s9, s[42:43], 0")
        self.srd(44, 42, 0x10000000)
        CR = list(range(160, 165))
        WM = [[96 + 4*k + q for q in range(4)] for k in range(10)]
        XR = list(range(166, 171))
        XP = 171
        WQ = list(range(136, 156))
        a("s_cmp_ge_u32 s2, 64\ns_cbranch_scc1 L_noprod")
        a("v_mov_b32 v32, -1\nv_mov_b32 v33, -1\nv_mov_b32 v34, -1\nv_mov_b32 v35, -1\nv_lshlrev_b32 v2, 4, v0")
        a(f"s_lshl_b32 s60, s2, 12\ns_lshl_b32 s61, s8, 10\ns_add_u32 s60, s60, s61\ns_add_u32 s61, s60, {WS_CLR2}\ns_add_u32 s60, s60, {WS_CLR1}")
        a("buffer_store_dwordx4 v[32:35], v2, s[44:47], s60 offen sc1\nbuffer_store_dwordx4 v[32:35], v2, s[44:47], s61 offen sc1")
        a("s_lshr_b32 s60, s2, 4\ns_mul_i32 s60, s60, 160\ns_mul_i32 s61, s8, 40\ns_add_u32 s60, s60, s61")
        a("v_mul_u32_u24 v3, 10, v16\nv_add_u32 v3, s60, v3")
        self.srd(48, 34, 1280); self.srd(52, 36, 4915200)
        a("v_lshlrev_b32 v4, 1, v3")
        a(f"buffer_load_dwordx4 v[{CR[0]}:{CR[3]}], v4, s[48:51], 0 offen\nbuffer_load_dword v{CR[4]}, v4, s[48:51], 0 offen offset:16")
        a("s_and_b32 s60, s2, 15\ns_mul_i32 s60, s60, 160\nv_mul_u32_u24 v5, 7680, v3\nv_lshl_add_u32 v5, v17, 4, v5")
        for k in range(10):
            a(f"buffer_load_dwordx4 v[{WM[k][0]}:{WM[k][3]}], v5, s[52:55], s60 offen {WNT}")
            if k < 9: a("s_addk_i32 s60, 7680")
        a("L_noprod:")
        self.srd(48, 16, 1280); self.srd(52, 22, 5242880)
        a("v_mul_u32_u24 v4, 20, v0")
        a(f"buffer_load_dwordx4 v[{XR[0]}:{XR[3]}], v4, s[48:51], 0 offen\nbuffer_load_dword v{XR[4]}, v4, s[48:51], 0 offen offset:16")
        a("s_mul_i32 s60, s7, 80\ns_mul_i32 s61, s8, 20\ns_add_u32 s60, s60, s61")
        a("s_lshl_b32 s61, s60, 1\nv_lshlrev_b32 v5, 2, v17")
        a(f"buffer_load_dword v{XP}, v5, s[48:51], s61 offen")
        a("s_lshl_b32 s60, s60, 13\ns_lshl_b32 s61, s6, 8\ns_add_u32 s60, s60, s61\nv_lshlrev_b32 v6, 2, v0")
        for k in range(20):
            a(f"buffer_load_dword v{WQ[k]}, v6, s[52:55], s60 offen {WNT}")
            if k < 19: a("s_addk_i32 s60, 0x2000")
        a("s_waitcnt lgkmcnt(0)")
        a(f"s_add_u32 s9, s9, {TAGADD}")
        a("s_barrier")
        self.stamp(1)
        if o.dry:
            a("s_mov_b64 exec, 0")
            a("s_cmp_eq_u32 s8, 0\ns_cbranch_scc1 L_front")
            a("s_cmp_eq_u32 s8, 1\ns_cbranch_scc1 L_pv")
            a("s_cmp_eq_u32 s10, 1\ns_cbranch_scc1 L_dryW")
            a("s_cmp_eq_u32 s10, 3\ns_cbranch_scc1 L_M2")
            a("s_cmp_eq_u32 s10, 2\ns_cbranch_scc0 L_dry_ret")
            a("s_cmp_eq_u32 s8, 2\ns_cbranch_scc1 L_G2\ns_branch L_Gtail2")
            a("L_dryW:\ns_cmp_eq_u32 s8, 2\ns_cbranch_scc1 L_W2\ns_branch L_Wtail")
        a("L_dry_ret:\ns_mov_b64 exec, -1")
        self.stamp(2)
        a("L_front:")
        a("s_cmp_ge_u32 s2, 64\ns_cbranch_scc1 L_ln1")
        self.waitvm(23)
        SP = list(range(36, 41))
        for m in range(5): self.silu2(CR[m], SP[m], [44, 45, 46, 47])
        ACC = list(range(48, 56))
        for k in ACC: a(f"v_mov_b32 v{k}, 0")
        Tf = [44, 45, 46, 47]
        for m in range(5):
            lo, hi, Tf = self.permpair(WM[2*m], WM[2*m+1], Tf)
            for k in range(4):
                a(f"v_dot2c_f32_bf16 v{ACC[2*k]}, v{lo[k]}, v{SP[m]}\nv_dot2c_f32_bf16 v{ACC[2*k+1]}, v{hi[k]}, v{SP[m]}")
        self.red8(ACC)
        a(f"s_mul_i32 s60, s8, 320\ns_add_u32 s60, s60, {L_RED1}\nv_lshlrev_b32 v2, 5, v17\nv_lshl_add_u32 v2, v16, 3, v2\nv_add_u32 v2, s60, v2")
        a(f"ds_write_b64 v2, v[{ACC[0]}:{ACC[1]}]")
        self.last_arriver(C_F1, "L_ln1", 44)
        a(f"v_min_u32 v2, 39, v0\nv_lshlrev_b32 v3, 3, v2\nv_add_u32 v3, {L_RED1}, v3\nv_lshlrev_b32 v2, 4, v2")
        for q in range(4): a(f"ds_read_b64 v[{44+2*q}:{45+2*q}], v3 offset:{320*q}")
        a(f"s_and_b32 s60, s2, 15\ns_lshl_b32 s60, s60, 2\ns_lshr_b32 s61, s2, 4\ns_add_u32 s60, s60, s61\ns_mul_i32 s60, s60, 640\ns_add_u32 s60, s60, {WS_G1}")
        a(f"s_lshl_b32 s61, s2, 6\ns_add_u32 s61, s61, {WS_DONE}")
        a("s_waitcnt lgkmcnt(0)")
        a("v_pk_add_f32 v[44:45], v[44:45], v[46:47]\nv_pk_add_f32 v[48:49], v[48:49], v[50:51]\nv_pk_add_f32 v[44:45], v[44:45], v[48:49]")
        a("v_mov_b32 v46, v45\nv_mov_b32 v45, s9\nv_mov_b32 v47, s9\nv_mov_b32 v4, 0")
        a("s_mov_b64 s[14:15], exec\ns_and_b32 exec_hi, exec_hi, 0xff")
        a("buffer_store_dwordx4 v[44:47], v2, s[44:47], s60 offen sc1")
        a("s_and_b32 exec_lo, exec_lo, 1\ns_mov_b32 exec_hi, 0")
        a("buffer_store_dword v45, v4, s[44:47], s61 offen sc1")
        a("s_mov_b64 exec, s[14:15]")
        self.stamp(3)
        a("L_ln1:")
        self.waitvm(0)
        X = list(range(48, 58))
        for m in range(5):
            self.lo(X[2*m], XR[m]); self.hi(X[2*m+1], XR[m])
        a(f"v_add_f32 v58, v{X[0]}, v{X[1]}")
        for k in range(2, 10): a(f"v_add_f32 v58, v58, v{X[k]}")
        self.allred(58, 59)
        a("v_mul_f32 v58, 0x3acccccd, v58")
        a("v_mov_b32 v60, 0")
        for k in range(10): a(f"v_sub_f32 v{X[k]}, v{X[k]}, v58\nv_fmac_f32 v60, v{X[k]}, v{X[k]}")
        self.allred(60, 59)
        a("v_mul_f32 v60, 0x3acccccd, v60")
        self.round2(58, 60, 59)
        a("v_add_f32 v60, 0x3727c5ac, v60")
        self.round2(60, 61, 59)
        a("v_sqrt_f32 v60, v60")
        self.round2(60, 61, 59)
        a("v_rcp_f32 v60, v60")
        self.lo(62, XP); self.hi(63, XP)
        a("v_sub_f32 v62, v62, v58\nv_sub_f32 v63, v63, v58")
        self.round2(62, 63, 59)
        a("v_mul_f32 v62, v62, v60\nv_mul_f32 v63, v63, v60")
        self.round2(62, 63, 59)
        WQp = []; WQf = [64]
        for m in range(10):
            lo, hi, WQf = self.permpair([WQ[2*m]], [WQ[2*m+1]], WQf)
            WQp.append((lo[0], hi[0]))
        a("s_mul_i32 s60, s8, 10\nv_add_u32 v2, s60, v17\nv_lshlrev_b32 v2, 4, v2\nv_mul_u32_u24 v3, 640, v16\nv_add_u32 v2, v2, v3\nv_mov_b32 v4, 0")
        a(f"s_mul_i32 s62, s7, 2560\ns_add_u32 s62, s62, {WS_G1}\ns_add_u32 s63, s62, 20480\ns_lshl_b32 s64, s6, 6\ns_add_u32 s64, s64, {WS_DONE}")
        def ld():
            a("buffer_load_dwordx4 v[44:47], v2, s[44:47], s62 offen sc1\nbuffer_load_dwordx4 v[48:51], v2, s[44:47], s63 offen sc1\nbuffer_load_dword v52, v4, s[44:47], s64 offen sc1")
        def ck():
            a("v_xor_b32 v53, s9, v45\nv_xor_b32 v54, s9, v47\nv_xor_b32 v55, s9, v49\nv_xor_b32 v56, s9, v51\nv_xor_b32 v57, s9, v52")
            a("v_or3_b32 v53, v53, v54, v55\nv_or3_b32 v53, v53, v56, v57\nv_cmp_ne_u32 vcc, 0, v53")
        self.poll(ld, ck, o.fsleep)
        self.stamp(4)
        for v in (44, 46, 48, 50): self.allred(v, 53, bits=(4, 5))
        self.round2(44, 46, 53); self.round2(48, 50, 53)
        a("v_add_f32 v48, 1.0, v48\nv_add_f32 v50, 1.0, v50")
        self.round2(48, 50, 53)
        a("v_mul_f32 v48, v62, v48\nv_mul_f32 v50, v63, v50")
        self.round2(48, 50, 53)
        a("v_add_f32 v48, v48, v44\nv_add_f32 v50, v50, v46\nv_cvt_pk_bf16_f32 v53, v48, v50")
        for m in range(10): a(f"v_readlane_b32 s{64+m}, v53, {m}")
        a("v_mov_b32 v44, 0\nv_mov_b32 v45, 0")
        for m in range(10):
            a(f"v_dot2c_f32_bf16 v44, s{64+m}, v{WQp[m][0]}\nv_dot2c_f32_bf16 v45, s{64+m}, v{WQp[m][1]}")
        a(f"s_lshl_b32 s60, s8, 9\ns_add_u32 s60, s60, {L_RED2}\nv_lshlrev_b32 v2, 3, v0\nv_add_u32 v2, s60, v2")
        a("ds_write_b64 v2, v[44:45]")
        self.last_arriver(C_F2, "L_h2", 46)
        a(f"v_lshlrev_b32 v2, 4, v0\nv_add_u32 v3, {L_RED2}, v2\ns_mov_b64 s[14:15], exec\ns_mov_b32 exec_hi, 0")
        for q in range(4): a(f"ds_read_b128 v[{44+4*q}:{47+4*q}], v3 offset:{512*q}")
        a(f"s_lshl_b32 s60, s6, 3\ns_add_u32 s60, s60, s7\ns_lshl_b32 s60, s60, 9\ns_add_u32 s60, s60, {WS_Q2}")
        a("s_waitcnt lgkmcnt(0)")
        self.sum4x4(44)
        a("buffer_store_dwordx4 v[44:47], v2, s[44:47], s60 offen sc1\ns_mov_b64 exec, s[14:15]")
        self.stamp(5)
        a("L_h2:")
        a("v_lshrrev_b32 v2, 3, v0\nv_lshlrev_b32 v2, 9, v2\nv_and_b32 v3, 7, v0\nv_lshl_add_u32 v2, v3, 4, v2")
        a(f"s_lshl_b32 s62, s6, 12\ns_lshl_b32 s60, s8, 7\ns_add_u32 s62, s62, s60\ns_add_u32 s62, s62, {WS_Q2}")
        self.poll(lambda: a("buffer_load_dwordx4 v[48:51], v2, s[44:47], s62 offen sc1"), lambda: self.chk_sent(range(48, 52), 52), o.fsleep)
        self.stamp(6)
        self.red4([48, 49, 50, 51]); self.ror(48, 8)
        a(f"s_lshl_b32 s60, s8, 6\ns_add_u32 s60, s60, {L_QBUF}\nv_lshlrev_b32 v3, 3, v3\nv_lshl_add_u32 v3, v16, 1, v3\nv_add_u32 v3, s60, v3")
        a("v_cvt_pk_bf16_f32 v48, v48, v48\nds_write_b16 v3, v48\ns_waitcnt lgkmcnt(0)")
        self.cnt_add(C_Q)
        a("s_cbranch_execz L_qk")
        a("s_cmp_eq_u32 s10, 1\ns_cbranch_scc1 L_W1\ns_cmp_eq_u32 s10, 2\ns_cbranch_scc1 L_G1\ns_cmp_eq_u32 s10, 3\ns_cbranch_scc1 L_M1")
        a("L_qk:")
        a("v_and_b32 v17, 15, v0")
        a(f"v_xor_b32 v2, v16, v17\nv_lshlrev_b32 v2, 4, v2\nv_lshl_add_u32 v2, v17, 8, v2\ns_lshl_b32 s60, s8, 15\nv_add_u32 v2, s60, v2")
        a("v_xor_b32 v3, 64, v2\nv_xor_b32 v4, 0x80, v2\nv_xor_b32 v5, 0xc0, v2")
        a(f"v_lshlrev_b32 v6, 4, v16\nv_add_u32 v6, {L_QBUF}, v6")
        self.spin_lds([C_Q, C_K], 44)
        self.stamp(7)
        QF = 20
        for s in range(4): a(f"ds_read_b128 v[{QF+4*s}:{QF+4*s+3}], v6 offset:{64*s}")
        KB = [44, 60]
        DD = [76 + 4*g for g in range(4)]
        S = [36, 37]
        def rd(t):
            for s in range(4): a(f"ds_read_b128 v[{KB[t%2]+4*s}:{KB[t%2]+4*s+3}], v{2+s} offset:{4096*t}")
        rd(0); rd(1)
        for t in range(8):
            a(f"s_waitcnt lgkmcnt({4 if t < 7 else 0})")
            d = DD[t % 4]
            for s in range(4):
                c = "0" if s == 0 else f"v[{d}:{d+3}]"
                a(f"v_mfma_f32_16x16x32_bf16 v[{d}:{d+3}], v[{QF+4*s}:{QF+4*s+3}], v[{KB[t%2]+4*s}:{KB[t%2]+4*s+3}], {c}")
            if t + 2 < 8:
                a("s_nop 7"); rd(t + 2)
            if t % 4 == 3:
                for g in range(4): a(f"v_mov_b32_dpp v{S[t//4]}, v{DD[g]} quad_perm:[0,1,2,3] row_mask:{hex(1<<g)} bank_mask:0xf")
        self.round2(36, 37, 38)
        a("v_mul_f32 v36, 0x3db504f3, v36\nv_mul_f32 v37, 0x3db504f3, v37")
        self.round2(36, 37, 38)
        a("v_max_f32 v39, v36, v37")
        self.allred(39, 38, op="max")
        a(f"s_lshl_b32 s60, s8, 2\ns_add_u32 s60, s60, {L_MAXB}\nv_mov_b32 v2, s60\nv_mov_b32 v3, {L_MAXB}\nds_write_b32 v2, v39\ns_waitcnt lgkmcnt(0)")
        self.cnt_add(C_MAX)
        self.spin_lds([C_MAX], 44)
        a("ds_read_b128 v[44:47], v3")
        a(f"s_lshl_b32 s60, s8, 4\ns_add_u32 s60, s60, {L_PBUF}\nv_lshlrev_b32 v2, 6, v17\nv_lshl_add_u32 v2, v16, 1, v2\nv_add_u32 v2, s60, v2")
        a("s_waitcnt lgkmcnt(0)")
        a("v_max3_f32 v44, v44, v45, v46\nv_max_f32 v40, v44, v47")
        a(f"v_sub_f32 v36, v36, v40\nv_sub_f32 v37, v37, v40\nv_mul_f32 v36, {hex(LOG2E)}, v36\nv_mul_f32 v37, {hex(LOG2E)}, v37\nv_exp_f32 v36, v36\nv_exp_f32 v37, v37")
        a("v_cvt_pk_bf16_f32 v38, v36, v37\nds_write_b16 v2, v38\nds_write_b16_d16_hi v2, v38 offset:8")
        self.lo(36, 38); self.hi(37, 38)
        a("v_add_f32 v41, v36, v37\ns_waitcnt lgkmcnt(0)")
        self.cnt_add(C_P)
        self.allred(41, 38)
        a(f"s_lshl_b32 s60, s6, 3\ns_add_u32 s60, s60, s7\ns_lshl_b32 s60, s60, 2\ns_add_u32 s60, s60, s8\ns_lshl_b32 s60, s60, 3\ns_add_u32 s60, s60, {WS_ML}\nv_mov_b32 v4, 0")
        a("s_mov_b64 s[14:15], exec\ns_and_b32 exec_lo, exec_lo, 1\ns_mov_b32 exec_hi, 0")
        a("buffer_store_dwordx2 v[40:41], v4, s[44:47], s60 offen sc1\ns_mov_b64 exec, s[14:15]")
        self.stamp(8)
        a("s_cbranch_execz L_dry_ret")
        a("s_cmp_eq_u32 s10, 1\ns_cbranch_scc1 L_W2\ns_cmp_eq_u32 s10, 2\ns_cbranch_scc1 L_G2\ns_cmp_eq_u32 s10, 3\ns_cbranch_scc1 L_M2")
        a("s_barrier")
        self.endwave()

        WW = [[96 + 4*i + q for q in range(4)] for i in range(8)]
        a("L_W1:")
        self.srd(48, 24, 5242880)
        a("v_lshrrev_b32 v2, 2, v0\nv_mul_u32_u24 v2, 10240, v2\nv_and_b32 v3, 3, v0\nv_lshl_add_u32 v2, v3, 4, v2")
        a("s_lshl_b32 s60, s4, 2\ns_add_u32 s60, s60, s8\ns_mul_i32 s60, s60, 163840\ns_lshl_b32 s61, s11, 6\ns_add_u32 s60, s60, s61\ns_add_u32 s61, s60, 5120")
        for i in range(8): a(f"buffer_load_dwordx4 v[{WW[i][0]}:{WW[i][3]}], v2, s[48:51], s{60 + i//4} offen offset:{1280*(i%4)} {WNT}")
        a("s_branch L_qk")
        a("L_W2:")
        self.waitvm(0)
        Tf = [128, 129, 130, 131]; Wp = []
        for m in range(4):
            lo, hi, Tf = self.permpair(WW[2*m], WW[2*m+1], Tf); Wp.append((lo, hi))
        a(f"v_and_b32 v3, 3, v0\nv_lshlrev_b32 v2, 5, v3\ns_lshl_b32 s65, s4, 2\ns_add_u32 s65, s65, s8\ns_lshl_b32 s62, s65, 8\ns_add_u32 s62, s62, {WS_ML}")
        def ld():
            for q, off in enumerate((0, 16, 128, 144)): a(f"buffer_load_dwordx4 v[{44+4*q}:{47+4*q}], v2, s[44:47], s62 offen offset:{off} sc1")
        self.poll(ld, lambda: self.chk_sent(range(44, 60), 60), o.fsleep)
        a("v_add_f32 v45, v45, v47\nv_add_f32 v49, v49, v51\nv_add_f32 v45, v45, v49\nv_add_f32 v53, v53, v55\nv_add_f32 v57, v57, v59\nv_add_f32 v53, v53, v57")
        a("v_max_f32 v46, v44, v52")
        self.allred(46, 60, op="max", bits=(0, 1))
        a(f"v_sub_f32 v44, v44, v46\nv_sub_f32 v52, v52, v46\nv_mul_f32 v44, {hex(LOG2E)}, v44\nv_mul_f32 v52, {hex(LOG2E)}, v52\nv_exp_f32 v44, v44\nv_exp_f32 v52, v52")
        a("v_mul_f32 v45, v45, v44\nv_fmac_f32 v45, v53, v52")
        self.allred(45, 60, bits=(0, 1))
        a("v_rcp_f32 v45, v45\nv_mul_f32 v20, v44, v45\nv_mul_f32 v22, v52, v45\nv_mov_b32 v21, v20\nv_mov_b32 v23, v22")
        a(f"v_lshrrev_b32 v4, 2, v0\nv_lshlrev_b32 v4, 5, v4\nv_lshl_add_u32 v4, v3, 9, v4")
        a(f"s_lshl_b32 s60, s8, 7\ns_add_u32 s60, s60, {L_REDW}\nv_lshlrev_b32 v5, 5, v3\nv_lshl_add_u32 v5, v16, 3, v5\nv_add_u32 v5, s60, v5")
        a(f"v_lshlrev_b32 v6, 4, v0\nv_add_u32 v7, {L_REDW}, v6")
        self.stamp(9)
        a("s_cbranch_execz L_dry_ret")
        a("s_barrier")
        self.stamp(10)
        a("L_Wtail:")
        a(f"s_lshl_b32 s62, s4, 2\ns_add_u32 s62, s62, s8\ns_lshl_b32 s62, s62, 12\ns_add_u32 s62, s62, {WS_O}")
        a(f"s_mul_i32 s63, s4, 2560\ns_lshl_b32 s60, s11, 7\ns_add_u32 s63, s63, s60\ns_add_u32 s63, s63, {WS_Y}")
        ACC = list(range(24, 32))
        for k in ACC: a(f"v_mov_b32 v{k}, 0")
        def ld():
            for q, off in enumerate((0, 16, 2048, 2064)): a(f"buffer_load_dwordx4 v[{44+4*q}:{47+4*q}], v4, s[44:47], s62 offen offset:{off} sc1")
        self.poll(ld, lambda: self.chk_sent(range(44, 60), 60), o.tsleep)
        self.stamp(11)
        for k in range(0, 8, 2): a(f"v_pk_mul_f32 v[{44+k}:{45+k}], v[{44+k}:{45+k}], v[20:21]")
        for k in range(0, 8, 2): a(f"v_pk_fma_f32 v[{44+k}:{45+k}], v[{52+k}:{53+k}], v[22:23], v[{44+k}:{45+k}]")
        for k in range(8): self.allred(44 + k, 60, bits=(0,))
        for k in range(8): self.allred(44 + k, 60, bits=(1,))
        for m in range(4): a(f"v_cvt_pk_bf16_f32 v{52+m}, v{44+2*m}, v{45+2*m}")
        for m in range(4):
            lo, hi = Wp[m]
            for k in range(4):
                a(f"v_dot2c_f32_bf16 v{ACC[2*k]}, v{lo[k]}, v{52+m}\nv_dot2c_f32_bf16 v{ACC[2*k+1]}, v{hi[k]}, v{52+m}")
        self.red8(ACC)
        self.ror(24, 4); self.ror(25, 4); self.ror(24, 8); self.ror(25, 8)
        a("ds_write_b64 v5, v[24:25]\ns_waitcnt lgkmcnt(0)")
        self.barrier()
        a("s_cbranch_execz L_Wpub\ns_cmp_lg_u32 s8, 0\ns_cbranch_scc1 L_Wend\nL_Wpub:")
        a("s_and_b32 exec_lo, exec_lo, 0xff\ns_mov_b32 exec_hi, 0")
        for q in range(4): a(f"ds_read_b128 v[{44+4*q}:{47+4*q}], v7 offset:{128*q}")
        a("s_waitcnt lgkmcnt(0)")
        self.sum4x4(44)
        a("buffer_store_dwordx4 v[44:47], v6, s[44:47], s63 offen sc1")
        a("L_Wend:")
        self.stamp(12)
        self.endwave()

        MW = [[96 + 4*k + q for q in range(4)] for k in range(20)]
        MC = list(range(176, 186))
        a("L_M1:")
        self.srd(48, 34, 1280); self.srd(52, 36, 4915200)
        a("s_mul_i32 s60, s8, 160\nv_lshrrev_b32 v2, 3, v0\nv_mul_u32_u24 v2, 20, v2\nv_add_u32 v2, s60, v2\nv_lshlrev_b32 v3, 1, v2")
        a(f"buffer_load_dwordx4 v[{MC[0]}:{MC[3]}], v3, s[48:51], 0 offen\nbuffer_load_dwordx4 v[{MC[4]}:{MC[7]}], v3, s[48:51], 0 offen offset:16\nbuffer_load_dwordx2 v[{MC[8]}:{MC[9]}], v3, s[48:51], 0 offen offset:32")
        a("v_mul_u32_u24 v2, 7680, v2\nv_and_b32 v3, 7, v0\nv_lshl_add_u32 v2, v3, 4, v2\ns_lshl_b32 s60, s11, 7\ns_add_u32 s60, s60, 2560")
        for k in range(20):
            a(f"buffer_load_dwordx4 v[{MW[k][0]}:{MW[k][3]}], v2, s[52:55], s60 offen {WNT}")
            if k < 19: a("s_addk_i32 s60, 7680")
        a("s_branch L_qk")
        a("L_M2:")
        self.waitvm(0)
        for m in range(10): self.silu2(MC[m], MC[m], [44, 45, 46, 47])
        ACC = list(range(24, 32))
        for k in ACC: a(f"v_mov_b32 v{k}, 0")
        Tf = [44, 45, 46, 47]
        for m in range(10):
            lo, hi, Tf = self.permpair(MW[2*m], MW[2*m+1], Tf)
            for k in range(4):
                a(f"v_dot2c_f32_bf16 v{ACC[2*k]}, v{lo[k]}, v{MC[m]}\nv_dot2c_f32_bf16 v{ACC[2*k+1]}, v{hi[k]}, v{MC[m]}")
        self.red8(ACC)
        self.ror(24, 8); self.ror(25, 8)
        a(f"s_lshl_b32 s60, s8, 8\ns_add_u32 s60, s60, {L_REDW}\nv_and_b32 v3, 7, v0\nv_lshlrev_b32 v2, 5, v3\nv_lshl_add_u32 v2, v16, 3, v2\nv_add_u32 v2, s60, v2")
        a("ds_write_b64 v2, v[24:25]")
        self.last_arriver(C_M, "L_Mend", 48)
        a(f"v_lshlrev_b32 v2, 4, v0\nv_add_u32 v3, {L_REDW}, v2\ns_mov_b64 s[14:15], exec\ns_and_b32 exec_lo, exec_lo, 0xffff\ns_mov_b32 exec_hi, 0")
        for q in range(4): a(f"ds_read_b128 v[{48+4*q}:{51+4*q}], v3 offset:{256*q}")
        a(f"s_lshl_b32 s60, s11, 8\ns_add_u32 s60, s60, {WS_MR}")
        a("s_waitcnt lgkmcnt(0)")
        self.sum4x4(48)
        self.round2(48, 49, 52); self.round2(50, 51, 52)
        a("buffer_store_dwordx4 v[48:51], v2, s[44:47], s60 offen sc1\ns_mov_b64 exec, s[14:15]")
        a("L_Mend:")
        self.stamp(9)
        a("s_cbranch_execz L_dry_ret")
        a("s_barrier")
        self.endwave()

        GW = [[96 + 4*k + q for q in range(4)] for k in range(10)]
        UW = [[136 + 4*k + q for q in range(4)] for k in range(10)]
        DW = [[176 + 2*n + q for q in range(2)] for n in range(32)]
        GX = list(range(240, 245))
        a("L_G1:")
        self.srd(48, 28, 2211840); self.srd(52, 30, 2211840); self.srd(56, 32, 2211840)
        a("s_mul_i32 s60, s8, 160\nv_lshrrev_b32 v2, 2, v0\nv_mul_u32_u24 v2, 10, v2\nv_add_u32 v2, s60, v2")
        a("v_mul_u32_u24 v3, 3456, v2\nv_and_b32 v4, 3, v0\nv_lshl_add_u32 v3, v4, 4, v3\ns_lshl_b32 s61, s11, 6")
        for k in range(10):
            a(f"buffer_load_dwordx4 v[{GW[k][0]}:{GW[k][3]}], v3, s[48:51], s61 offen {WNT}")
            a(f"buffer_load_dwordx4 v[{UW[k][0]}:{UW[k][3]}], v3, s[52:55], s61 offen {WNT}")
            if k < 9: a("s_addk_i32 s61, 3456")
        a("v_min_u32 v4, 39, v0\nv_lshlrev_b32 v4, 3, v4\ns_lshl_b32 s60, s60, 1\ns_mul_i32 s61, s11, 40960\ns_add_u32 s61, s61, s60")
        for n in range(32):
            a(f"buffer_load_dwordx2 v[{DW[n][0]}:{DW[n][1]}], v4, s[56:59], s61 offen offset:{1280*(n%4)} {WNT}")
            if n % 4 == 3 and n < 31: a("s_addk_i32 s61, 5120")
        self.srd(48, 16, 1280)
        a("v_lshlrev_b32 v2, 1, v2")
        a(f"buffer_load_dwordx4 v[{GX[0]}:{GX[3]}], v2, s[48:51], 0 offen\nbuffer_load_dword v{GX[4]}, v2, s[48:51], 0 offen offset:16")
        a("s_branch L_qk")
        a("L_G2:")
        self.waitvm(0)
        Tf = [92, 93, 94, 95]; Gp = []; Up = []
        for m in range(5):
            lo, hi, Tf = self.permpair(GW[2*m], GW[2*m+1], Tf); Gp.append((lo, hi))
        for m in range(5):
            lo, hi, Tf = self.permpair(UW[2*m], UW[2*m+1], Tf); Up.append((lo, hi))
        Tf = Tf[:2]; Dp = []
        for m in range(16):
            lo, hi, Tf = self.permpair(DW[2*m], DW[2*m+1], Tf); Dp.append((lo, hi))
        a("s_mul_i32 s60, s8, 160\nv_lshrrev_b32 v2, 2, v0\nv_mul_u32_u24 v2, 10, v2\nv_add_u32 v2, s60, v2\nv_lshlrev_b32 v2, 2, v2")
        a("v_and_b32 v3, 3, v0\nv_lshlrev_b32 v4, 4, v3\nv_lshl_add_u32 v4, v16, 2, v4\ns_min_u32 s60, s11, 39\ns_lshl_b32 s60, s60, 6\nv_add_u32 v4, s60, v4")
        a(f"s_mov_b32 s62, {WS_MR}\ns_mov_b32 s63, {WS_MR + 2560}\ns_mov_b32 s64, {WS_MR + 5120}\ns_mov_b32 s65, {WS_MR + 7680}")
        def ld10(b, so, vo=2, extra=0):
            a(f"buffer_load_dwordx4 v[{b}:{b+3}], v{vo}, s[44:47], s{so} offen offset:{extra} sc1\nbuffer_load_dwordx4 v[{b+4}:{b+7}], v{vo}, s[44:47], s{so} offen offset:{extra+16} sc1\nbuffer_load_dwordx2 v[{b+8}:{b+9}], v{vo}, s[44:47], s{so} offen offset:{extra+32} sc1")
        def ld():
            ld10(44, 62); ld10(54, 63); ld10(64, 64)
            a("buffer_load_dword v74, v4, s[44:47], s65 offen sc1")
        self.poll(ld, lambda: self.chk_sent(range(44, 75), 75), o.fsleep)
        self.stamp(9)
        XF = list(range(76, 86)); PP = list(range(20, 30)); QQ = list(range(30, 40)); GA = list(range(246, 256)); GB = 245
        IN = list(range(86, 91))
        for m in range(5):
            self.lo(XF[2*m], GX[m]); self.hi(XF[2*m+1], GX[m])
        a(f"v_mov_b32 v{GB}, v74")
        for k in range(10): a(f"v_add_f32 v{64+k}, 1.0, v{64+k}\nv_mov_b32 v{GA[k]}, v{44+k}")
        U1IN = list(range(240, 245))
        for m in range(5):
            a(f"v_cvt_pk_bf16_f32 v{IN[m]}, v{64+2*m}, v{65+2*m}")
            self.lo(64+2*m, IN[m]); self.hi(65+2*m, IN[m])
            a(f"v_cvt_pk_bf16_f32 v{U1IN[m]}, v{54+2*m}, v{55+2*m}")
        for k in range(10): a(f"v_mul_f32 v{PP[k]}, v{XF[k]}, v{64+k}\nv_mul_f32 v{QQ[k]}, v{GA[k]}, v{64+k}")
        a("s_lshl_b32 s60, s8, 8\nv_lshrrev_b32 v5, 1, v16\nv_lshlrev_b32 v5, 7, v5\nv_lshl_add_u32 v5, v3, 5, v5\nv_and_b32 v6, 1, v16\nv_lshl_add_u32 v5, v6, 4, v5\nv_add_u32 v5, s60, v5")
        GA_ACC = list(range(44, 52)); UA_ACC = list(range(52, 60))
        def gemv(dst):
            for k in GA_ACC + UA_ACC: a(f"v_mov_b32 v{k}, 0")
            for m in range(5):
                for (W, AC) in ((Gp, GA_ACC), (Up, UA_ACC)):
                    lo, hi = W[m]
                    for k in range(4):
                        a(f"v_dot2c_f32_bf16 v{AC[2*k]}, v{lo[k]}, v{IN[m]}\nv_dot2c_f32_bf16 v{AC[2*k+1]}, v{hi[k]}, v{IN[m]}")
        def gred():
            for k in range(8): a(f"v_permlane32_swap_b32 v{44+k}, v{52+k}")
            for k in range(0, 8, 2): a(f"v_pk_add_f32 v[{44+k}:{45+k}], v[{44+k}:{45+k}], v[{52+k}:{53+k}]")
            for k in range(4): a(f"v_permlane16_swap_b32 v{44+k}, v{48+k}")
            for k in range(0, 4, 2): a(f"v_pk_add_f32 v[{44+k}:{45+k}], v[{44+k}:{45+k}], v[{48+k}:{49+k}]")
            for n in (4, 8):
                for k in range(4): self.ror(44 + k, n)
        a(f"s_mov_b32 s66, {L_REDU1}\nL_Gpre:")
        gemv(None); gred()
        a("v_add_u32 v6, s66, v5\nds_write_b128 v6, v[44:47]")
        for m in range(5): a(f"v_mov_b32 v{IN[m]}, v{U1IN[m]}")
        a(f"s_cbranch_execz L_Gpre_done\ns_cmp_eq_u32 s66, {L_REDU2}\ns_mov_b32 s66, {L_REDU2}\ns_cbranch_scc0 L_Gpre\nL_Gpre_done:")
        a(f"v_add_u32 v5, {L_REDZ}, v5")
        a(f"v_lshlrev_b32 v7, 2, v0\nv_add_u32 v8, {L_REDZ}, v7\nv_add_u32 v7, {L_REDU1}, v7")
        a(f"v_mul_u32_u24 v9, 2560, v3\nv_add_u32 v9, v9, v2")
        a(f"v_add_u32 v10, {L_X2}, v2\nv_add_u32 v11, {L_X2}, v4")
        a(f"s_lshl_b32 s60, s8, 3\ns_add_u32 s60, s60, {L_STAT}\nv_lshrrev_b32 v12, 5, v0\nv_lshlrev_b32 v12, 2, v12\nv_add_u32 v12, s60, v12\nv_mov_b32 v13, {L_STAT}")
        a("s_waitcnt lgkmcnt(0)")
        self.stamp(10)
        a("s_cbranch_execz L_Gtail1")
        a("s_barrier")
        self.stamp(11)
        a("L_Gtail1:")
        for q in range(4): a(f"ds_read_b32 v{44+q}, v7 offset:{256*q}\nds_read_b32 v{48+q}, v7 offset:{1024+256*q}")
        a(f"s_mov_b32 s62, {WS_Y}\ns_mov_b32 s63, {WS_Y + 10240}")
        a("s_waitcnt lgkmcnt(0)")
        U1, U2 = 40, 41
        a(f"v_add_f32 v44, v44, v45\nv_add_f32 v46, v46, v47\nv_add_f32 v{U1}, v44, v46\nv_add_f32 v48, v48, v49\nv_add_f32 v50, v50, v51\nv_add_f32 v{U2}, v48, v50")
        YA = 60; YB = 70
        YB = 96 - 96 + 0
        YA = list(range(60, 70)); YBb = 70
        def ld():
            ld10(60, 62, 9); ld10(44, 63, 9)
        self.poll(ld, lambda: self.chk_sent(list(range(60, 70)) + list(range(44, 54)), 70), o.tsleep)
        self.stamp(12)
        for k in range(0, 10, 2): a(f"v_pk_add_f32 v[{60+k}:{61+k}], v[{60+k}:{61+k}], v[{44+k}:{45+k}]")
        for k in range(10): self.allred(60 + k, 70, bits=(0,))
        for k in range(10): self.allred(60 + k, 70, bits=(1,))
        for k in range(0, 10, 2): a(f"v_pk_fma_f32 v[{44+k}:{45+k}], v[{60+k}:{61+k}], v[{QQ[k]}:{QQ[k+1]}], v[{PP[k]}:{PP[k+1]}]")
        for m in range(5): a(f"v_cvt_pk_bf16_f32 v{IN[m]}, v{44+2*m}, v{45+2*m}")
        gemv(None)
        for k in range(0, 10, 2): a(f"v_pk_fma_f32 v[{60+k}:{61+k}], v[{60+k}:{61+k}], v[{GA[k]}:{GA[k+1]}], v[{XF[k]}:{XF[k+1]}]")
        a("v_pk_add_f32 v[70:71], v[60:61], v[62:63]\nv_pk_mul_f32 v[72:73], v[60:61], v[60:61]")
        a("v_pk_add_f32 v[70:71], v[70:71], v[64:65]\nv_pk_fma_f32 v[72:73], v[62:63], v[62:63], v[72:73]")
        a("v_pk_add_f32 v[70:71], v[70:71], v[66:67]\nv_pk_fma_f32 v[72:73], v[64:65], v[64:65], v[72:73]")
        a("v_pk_add_f32 v[70:71], v[70:71], v[68:69]\nv_pk_fma_f32 v[72:73], v[66:67], v[66:67], v[72:73]")
        a("v_pk_fma_f32 v[72:73], v[68:69], v[68:69], v[72:73]")
        a("v_add_f32 v70, v70, v71\nv_add_f32 v72, v72, v73")
        a("v_permlane32_swap_b32 v70, v72\nv_add_f32 v70, v70, v72")
        self.allred(70, 71, bits=(4,)); self.ror(70, 4); self.ror(70, 8)
        for k in range(5): a(f"ds_write_b64 v10, v[{60+2*k}:{61+2*k}] offset:{8*k}")
        a("ds_write_b32 v12, v70")
        gred()
        a("ds_write_b128 v5, v[44:47]\ns_waitcnt lgkmcnt(0)")
        a("s_cbranch_execz L_dry_ret")
        a("s_barrier")
        a("L_Gtail2:")
        for q in range(4): a(f"ds_read_b32 v{44+q}, v8 offset:{256*q}")
        a("ds_read_b128 v[48:51], v13\nds_read_b128 v[52:55], v13 offset:16\nds_read_b32 v42, v11")
        a(f"v_min_u32 v2, 39, v0\nv_lshlrev_b32 v2, 4, v2\ns_mul_i32 s62, s11, 2560\ns_mul_i32 s60, s8, 640\ns_add_u32 s62, s62, s60\ns_add_u32 s62, s62, {WS_OP}")
        a("s_waitcnt lgkmcnt(0)")
        a("v_pk_add_f32 v[48:49], v[48:49], v[50:51]\nv_pk_add_f32 v[52:53], v[52:53], v[54:55]\nv_add_f32 v44, v44, v45\nv_add_f32 v46, v46, v47")
        a("v_pk_add_f32 v[48:49], v[48:49], v[52:53]\nv_add_f32 v44, v44, v46")
        a("v_mul_f32 v48, 0x3acccccd, v48\nv_mul_f32 v49, 0x3acccccd, v49\nv_fma_f32 v49, -v48, v48, v49\nv_add_f32 v49, 0x3727c5ac, v49\nv_rsq_f32 v49, v49")
        a(f"v_fma_f32 v44, -v48, v{U1}, v44\nv_fma_f32 v44, v49, v44, v{U2}")
        a("v_mov_b32 v45, v44\nv_permlane32_swap_b32 v44, v45")
        a("v_mul_f32 v46, v44, v44\nv_mov_b32 v47, 0x3d372713\nv_fma_f32 v46, v46, v47, 1.0\nv_mul_f32 v46, v46, v44\nv_mul_f32 v46, 0xc0135761, v46")
        a("v_exp_f32 v46, v46\nv_mul_f32 v44, v44, v45\nv_add_f32 v46, 1.0, v46\nv_rcp_f32 v46, v46\nv_mul_f32 v44, v44, v46")
        a("v_mov_b32_dpp v45, v44 quad_perm:[1,1,3,3] row_mask:0xf bank_mask:0xf\nv_cvt_pk_bf16_f32 v44, v44, v45")
        for k in range(4): a(f"v_mov_b32 v{48+k}, 0")
        for m in range(16): a(f"v_readlane_b32 s{64+m}, v44, {2*m}")
        for m in range(16):
            lo, hi = Dp[m]
            for k in range(2):
                a(f"v_dot2c_f32_bf16 v{48+2*k}, s{64+m}, v{lo[k]}\nv_dot2c_f32_bf16 v{49+2*k}, s{64+m}, v{hi[k]}")
        a("s_and_b32 exec_hi, exec_hi, 0xff")
        a("buffer_store_dwordx4 v[48:51], v2, s[44:47], s62 offen sc1")
        self.stamp(13)
        a("s_cbranch_execz L_dry_ret")
        a("s_cmp_lg_u32 s8, 0\ns_cbranch_scc1 L_Gend\ns_cmp_ge_u32 s11, 40\ns_cbranch_scc1 L_Gend")
        a("s_mov_b64 exec, -1")
        a("L_final:")
        self.srd(48, 42, 54*2560, off=WS_OP); self.srd(52, 38, 1280)
        a("v_lshrrev_b32 v2, 2, v0\nv_mul_u32_u24 v2, 2560, v2\nv_and_b32 v3, 3, v0\nv_lshl_add_u32 v2, v3, 4, v2\nv_lshrrev_b32 v3, 1, v4")
        a("s_lshl_b32 s62, s11, 6\ns_add_u32 s63, s62, 40960\ns_add_u32 s64, s62, 81920\ns_add_u32 s65, s62, 122880")
        def ld():
            for u in range(4): a(f"buffer_load_dwordx4 v[{44+4*u}:{47+4*u}], v2, s[48:51], s{62+u} offen sc1")
        self.poll(ld, lambda: self.chk_sent(range(44, 60), 60), o.tsleep)
        self.stamp(14)
        self.sum4x4(44)
        self.red4([44, 45, 46, 47]); self.ror(44, 4); self.ror(44, 8)
        a(f"v_fma_f32 v44, v44, v{GB}, v42\nv_cvt_pk_bf16_f32 v44, v44, v44")
        a("s_and_b32 exec_lo, exec_lo, 0x000f000f\ns_and_b32 exec_hi, exec_hi, 0x000f000f")
        a("buffer_store_short v44, v3, s[52:55], 0 offen")
        a("s_cbranch_execz L_dry_ret")
        a("s_cmp_lg_u32 s11, 0\ns_cbranch_scc1 L_Gend")
        a("s_mov_b64 exec, 1\nv_mov_b32 v5, s9\nv_mov_b32 v6, 0\nbuffer_store_dword v5, v6, s[44:47], 0 offen sc1")
        a("L_Gend:")
        self.stamp(15)
        self.dump_stamps()
        a("L_end:\ns_endpgm")
        a(footer(256, 100, 256))
        return a.text()

if __name__ == "__main__":
    ap = argparse.ArgumentParser()
    ap.add_argument("-o", default="k.s")
    ap.add_argument("--depth", type=int, default=8)
    ap.add_argument("--nt", default="nt")
    ap.add_argument("--wnt", default="nt")
    ap.add_argument("--stamps", type=int, default=0)
    ap.add_argument("--dry", type=int, default=1)
    ap.add_argument("--fsleep", type=int, default=1)
    ap.add_argument("--tsleep", type=int, default=0)
    o = ap.parse_args()
    if o.nt == "pl": o.nt = ""
    if o.wnt == "pl": o.wnt = ""
    g = G(o); t = g.build()
    hdr = open("adaLN_cond__gqa_block_cached__glu_gated_geglu__decode.s.ref").read().split("; @launch")[0] if False else ""
    open(o.o, "w").write(hdr + t)
    print("nops inserted:", g.a.nops, "lines:", len(t.splitlines()))
```

```python
import sys, argparse
from asmlib import *

WS_EPOCH = 0x0
WS_Q2    = 0x20000
WS_O     = 0x40000
WS_ML    = 0x60000
WS_MR    = 0x67000
WS_X2    = 0x6A000
WS_Y     = 0x70000
WS_OP    = 0x7A000
WS_G1    = 0xA0000
WS_Z     = 0xC0000
WS_U     = 0x100000
WS_STAMP = 0x200000
L_FLAG = 0x20000
C_F1, C_F2, C_Q, C_K, C_P, C_MAX, C_T1, C_T2, C_T3, C_O, C_W, C_U, C_Z = [4*i for i in range(13)]
L_RED1 = 0x20100
L_RED2 = 0x20800
L_QBUF = 0x21000
L_MAXB = 0x21100
L_LSUM = 0x21110
L_PBUF = 0x21200
L_REDO = 0x21800
L_REDW = 0x22000
L_GU   = 0x22400
L_GZ   = 0x23400
L_GX2  = 0x23D00
LDS_BYTES = 0x24000
LOG2E = 0x3fb8aa3b
TAGADD = 0x61C88647

class G:
    def __init__(self, opt):
        self.o = opt
        self.a = Asm()
        self.n = 0
    def lab(self, p="L"):
        self.n += 1
        return f"{p}_{self.n}"
    def stamp(self, k):
        if not self.o.stamps: return
        a = self.a; sk = self.lab("st")
        a(f"s_cbranch_execz {sk}\ns_memrealtime s[96:97]\ns_waitcnt lgkmcnt(0)\nv_writelane_b32 v19, s96, {k}\n{sk}:")
    def note(self, k, sreg):
        if not self.o.stamps: return
        a = self.a; sk = self.lab("st")
        a(f"s_cbranch_execz {sk}\nv_writelane_b32 v19, {sreg}, {k}\n{sk}:")
    def stamp_init(self):
        if not self.o.stamps: return
        self.a("v_mov_b32 v19, 0\nv_writelane_b32 v19, s96, 0")
    def dump_stamps(self):
        if not self.o.stamps: return
        a = self.a
        a("s_mov_b64 exec, -1")
        a("s_lshl_b32 s60, s2, 3\ns_add_u32 s60, s60, s3\ns_lshl_b32 s60, s60, 8")
        a(f"s_add_u32 s60, s60, {WS_STAMP}\nv_lshlrev_b32 v1, 2, v0")
        a(f"buffer_store_dword v19, v1, s[44:47], s60 offen")
    def waitvm(self, n):
        a = self.a; sk = self.lab("wv")
        a(f"s_cbranch_execz {sk}\ns_waitcnt vmcnt({n})\n{sk}:")
    def barrier(self):
        a = self.a; sk = self.lab("bar")
        a(f"s_cbranch_execz {sk}\ns_barrier\n{sk}:")
    def srd(self, q, ptr, size, off=0):
        a = self.a
        if off: a(f"s_add_u32 s{q}, s{ptr}, {off}\ns_addc_u32 s{q+1}, s{ptr+1}, 0")
        else: a(f"s_mov_b32 s{q}, s{ptr}\ns_mov_b32 s{q+1}, s{ptr+1}")
        a(f"s_mov_b32 s{q+2}, {size}\ns_mov_b32 s{q+3}, 0x20000")
    def lo(self, d, s): self.a(f"v_lshlrev_b32 v{d}, 16, v{s}")
    def hi(self, d, s): self.a(f"v_and_b32 v{d}, 0xffff0000, v{s}")
    def round2(self, x, y, t):
        self.a(f"v_cvt_pk_bf16_f32 v{t}, v{x}, v{y}"); self.lo(x, t); self.hi(y, t)
    def allred(self, v, t, op="add", bits=(0, 1, 2, 3, 4, 5)):
        a = self.a
        d = {0: "quad_perm:[1,0,3,2]", 1: "quad_perm:[2,3,0,1]", 2: "row_half_mirror", 3: "row_mirror"}
        for b in bits:
            if b < 4: a(f"v_{op}_f32_dpp v{v}, v{v}, v{v} {d[b]} row_mask:0xf bank_mask:0xf")
            else:
                a(f"v_mov_b32 v{t}, v{v}\nv_permlane{16 if b == 4 else 32}_swap_b32 v{t}, v{v}\nv_{op}_f32 v{v}, v{v}, v{t}")
    def ror(self, v, n): self.a(f"v_add_f32_dpp v{v}, v{v}, v{v} row_ror:{n} row_mask:0xf bank_mask:0xf")
    def red8(self, acc):
        a = self.a
        for k in range(4): a(f"v_permlane32_swap_b32 v{acc[k]}, v{acc[k+4]}")
        for k in range(4): a(f"v_add_f32 v{acc[k]}, v{acc[k]}, v{acc[k+4]}")
        for k in range(2): a(f"v_permlane16_swap_b32 v{acc[k]}, v{acc[k+2]}")
        for k in range(2): a(f"v_add_f32 v{acc[k]}, v{acc[k]}, v{acc[k+2]}")
    def red4(self, v):
        a = self.a
        a(f"v_permlane32_swap_b32 v{v[0]}, v{v[2]}\nv_permlane32_swap_b32 v{v[1]}, v{v[3]}")
        a(f"v_add_f32 v{v[0]}, v{v[0]}, v{v[2]}\nv_add_f32 v{v[1]}, v{v[1]}, v{v[3]}")
        a(f"v_permlane16_swap_b32 v{v[0]}, v{v[1]}\nv_add_f32 v{v[0]}, v{v[0]}, v{v[1]}")
    def permpair(self, A, B, T):
        a = self.a
        for k in range(len(A)):
            a(f"v_perm_b32 v{T[k]}, v{B[k]}, v{A[k]}, s12")
            a(f"v_perm_b32 v{B[k]}, v{B[k]}, v{A[k]}, s13")
        return list(T), list(B), list(A)
    def silu2(self, src, dst, t):
        a = self.a
        x0, x1, e0, e1 = t
        self.lo(x0, src); self.hi(x1, src)
        a(f"v_mul_f32 v{e0}, 0xbfb8aa3b, v{x0}\nv_mul_f32 v{e1}, 0xbfb8aa3b, v{x1}")
        a(f"v_exp_f32 v{e0}, v{e0}\nv_exp_f32 v{e1}, v{e1}")
        a(f"v_add_f32 v{e0}, 1.0, v{e0}\nv_add_f32 v{e1}, 1.0, v{e1}")
        a(f"v_rcp_f32 v{e0}, v{e0}\nv_rcp_f32 v{e1}, v{e1}")
        a(f"v_mul_f32 v{x0}, v{x0}, v{e0}\nv_mul_f32 v{x1}, v{x1}, v{e1}")
        a(f"v_cvt_pk_bf16_f32 v{dst}, v{x0}, v{x1}")
    def cnt_add(self, cnt, rtn=None):
        a = self.a
        a("s_mov_b64 s[14:15], exec\ns_and_b32 exec_lo, exec_lo, 1\ns_mov_b32 exec_hi, 0")
        if rtn is None: a(f"ds_add_u32 v14, v15 offset:{cnt}")
        else: a(f"ds_add_rtn_u32 v{rtn}, v14, v15 offset:{cnt}")
        a("s_mov_b64 exec, s[14:15]")
    def last_arriver(self, cnt, skip, t):
        a = self.a; go = self.lab("la")
        a("s_waitcnt lgkmcnt(0)")
        self.cnt_add(cnt, t)
        a(f"s_waitcnt lgkmcnt(0)\ns_cbranch_execz {go}\nv_readfirstlane_b32 s60, v{t}\ns_cmp_lg_u32 s60, 3\ns_cbranch_scc1 {skip}\n{go}:")
    def spin_lds(self, cnts, t):
        a = self.a; top = self.lab("sp"); out = self.lab("spo")
        a(f"s_mov_b32 s61, 0\n{top}:")
        for i, c in enumerate(cnts): a(f"ds_read_b32 v{t+i}, v14 offset:{c}")
        a(f"s_waitcnt lgkmcnt(0)\ns_cbranch_execz {out}")
        for i in range(1, len(cnts)): a(f"v_add_u32 v{t}, v{t}, v{t+i}")
        a(f"v_readfirstlane_b32 s60, v{t}\ns_cmp_ge_u32 s60, {4*len(cnts)}\ns_cbranch_scc1 {out}")
        a(f"s_sleep 1\ns_add_u32 s61, s61, 1\ns_cmp_lt_u32 s61, 0x40000\ns_cbranch_scc1 {top}\n{out}:")
    def poll(self, loads, check, sleep=0, nk=None, pre=0, rk=None):
        a = self.a; top = self.lab("pl"); out = self.lab("plo"); full = self.lab("plf"); nx = self.lab("pln")
        a(f"s_mov_b32 s61, 0\ns_mov_b64 s[14:15], exec")
        if pre: a("s_and_b32 exec_lo, exec_lo, 1\ns_mov_b32 exec_hi, 0\ns_mov_b32 s99, 1")
        a(f"{top}:")
        if not self.o.nohopld: loads()
        self.waitvm(0)
        if rk is not None and self.o.stamps:
            sk = self.lab("rs")
            a(f"s_cbranch_execz {sk}\ns_memrealtime s[96:97]\ns_min_u32 s60, s61, 7\ns_add_u32 s60, s60, {rk}\ns_mov_b32 m0, s60\ns_waitcnt lgkmcnt(0)\nv_writelane_b32 v19, s96, m0\n{sk}:")
        check()
        a(f"s_cbranch_vccz {full if pre else out}")
        if self.o.nopoll: a(f"s_branch {out}")
        if self.o.masked: a("s_mov_b64 exec, vcc")
        if pre:
            a(f"s_cmp_eq_u32 s99, 0\ns_cbranch_scc1 {nx}\ns_sleep {pre}\n{nx}:")
        if sleep: a(f"s_sleep {sleep}")
        a(f"s_add_u32 s61, s61, 1\ns_cmp_lt_u32 s61, 0x8000\ns_cbranch_scc1 {top}")
        if pre:
            a(f"s_branch {out}\n{full}:\ns_cmp_eq_u32 s99, 0\ns_cbranch_scc1 {out}\ns_mov_b32 s99, 0\ns_andn2_b64 exec, s[14:15], exec\ns_cbranch_execnz {top}")
        a(f"{out}:\ns_mov_b64 exec, s[14:15]")
        if nk is not None: self.note(nk, "s61")
    def swait(self, loads, regs, ref, eq):
        if not self.o.swait: return
        a = self.a; top = self.lab("sw"); out = self.lab("swo"); again = self.lab("swa")
        a(f"s_cbranch_execz {out}\ns_mov_b32 s61, 0\n{top}:")
        loads()
        a("s_waitcnt lgkmcnt(0)")
        for r in regs:
            a(f"s_cmp_{'lg' if eq else 'eq'}_u32 s{r}, {ref}\ns_cbranch_scc1 {again}")
        a(f"s_branch {out}\n{again}:")
        a(f"s_add_u32 s61, s61, 1\ns_cmp_lt_u32 s61, 0x8000\ns_cbranch_scc1 {top}\n{out}:")
    def chk_sent(self, regs, t):
        a = self.a
        regs = list(regs)
        if len(regs) == 1:
            a(f"v_cmp_eq_u32 vcc, -1, v{regs[0]}"); return
        if len(regs) % 2 == 0:
            a(f"v_max_u32 v{t}, v{regs[0]}, v{regs[1]}"); rest = regs[2:]
        else:
            a(f"v_max3_u32 v{t}, v{regs[0]}, v{regs[1]}, v{regs[2]}"); rest = regs[3:]
        for i in range(0, len(rest), 2): a(f"v_max3_u32 v{t}, v{t}, v{rest[i]}, v{rest[i+1]}")
        a(f"v_cmp_eq_u32 vcc, -1, v{t}")
    def tag(self, regs, rnd=False):
        for r in regs:
            if rnd: self.a(f"v_add_u32 v{r}, 0x80, v{r}")
            self.a(f"v_bfi_b32 v{r}, s98, v18, v{r}")
    def chk_tag(self, regs, t):
        a = self.a; regs = list(regs)
        a(f"v_xor_b32 v{t}, v{regs[0]}, v18")
        for r in regs[1:]: a(f"v_bitop3_b32 v{t}, v{r}, v18, v{t} bitop3:0xbe")
        a(f"v_and_b32 v{t}, s98, v{t}\nv_cmp_ne_u32 vcc, 0, v{t}")
    def sum4x4(self, base):
        a = self.a; b = base
        for h in (0, 2):
            a(f"v_pk_add_f32 v[{b+h}:{b+h+1}], v[{b+h}:{b+h+1}], v[{b+4+h}:{b+5+h}]")
            a(f"v_pk_add_f32 v[{b+8+h}:{b+9+h}], v[{b+8+h}:{b+9+h}], v[{b+12+h}:{b+13+h}]")
        for h in (0, 2):
            a(f"v_pk_add_f32 v[{b+h}:{b+h+1}], v[{b+h}:{b+h+1}], v[{b+8+h}:{b+9+h}]")
    def endwave(self):
        a = self.a
        a("s_cbranch_execz L_dry_ret")
        self.dump_stamps()
        a("s_endpgm")

    def build(self):
        a = self.a; o = self.o; D = o.depth; NT = o.nt; WNT = o.wnt; LNT = o.lnt
        a(header(256, 512, LDS_BYTES))
        a("s_cmp_ge_u32 s2, 256\ns_cbranch_scc1 L_end")
        a("s_load_dwordx16 s[16:31], s[0:1], 0\ns_load_dwordx8 s[32:39], s[0:1], 64\ns_load_dwordx4 s[40:43], s[0:1], 96")
        if o.stamps:
            a("s_memrealtime s[96:97]")
        a("v_lshrrev_b32 v1, 6, v0\nv_and_b32 v0, 63, v0\nv_readfirstlane_b32 s3, v1")
        a("s_and_b32 s4, s2, 7\ns_lshr_b32 s5, s2, 3\ns_lshr_b32 s6, s5, 3")
        if o.hx: a(f"s_add_u32 s60, s4, {o.hx}\ns_and_b32 s60, s60, 7\ns_lshl_b32 s60, s60, 2")
        else: a("s_lshl_b32 s60, s4, 2")
        a("s_add_u32 s6, s6, s60\ns_and_b32 s7, s5, 7")
        a("s_mov_b32 s12, 0x05040100\ns_mov_b32 s13, 0x07060302")
        a(f"v_mov_b32 v14, {L_FLAG}\nv_mov_b32 v15, 1")
        a("s_cmp_ge_u32 s3, 4\ns_cbranch_scc1 L_aux")
        a("v_lshrrev_b32 v4, 4, v0\nv_and_b32 v5, 15, v0\ns_lshl_b32 s60, s3, 2\nv_add_u32 v6, s60, v4")
        a("v_xor_b32 v2, v5, v6\nv_lshlrev_b32 v2, 4, v2\nv_lshl_add_u32 v2, v4, 8, v2\nv_lshlrev_b32 v3, 4, v0")
        a("s_lshl_b32 s62, s6, 20\ns_lshl_b32 s60, s7, 17\ns_add_u32 s62, s62, s60\ns_lshl_b32 s60, s3, 10\ns_add_u32 s62, s62, s60\ns_mov_b32 m0, s60\ns_mov_b32 s63, s62")
        a("s_waitcnt lgkmcnt(0)")
        self.stamp_init()
        self.srd(48, 18, 0x2000000)
        a("s_mov_b32 s61, 0")
        if o.d0 > 0:
            a("L_k1:")
            a(f"buffer_load_dwordx4 v2, s[48:51], s62 offen {NT} lds")
            a(f"s_addk_i32 s62, 0x1000\ns_addk_i32 m0, 0x1000\ns_add_u32 s61, s61, 1\ns_cmp_lt_u32 s61, {o.d0}\ns_cbranch_scc1 L_k1")
        a("s_barrier")
        N = 64
        VB = 128
        Vr = [[VB + 4 * t + k for k in range(4)] for t in range(32)]
        trig = sorted([(o.t1, C_T1), (o.t2, C_T2), (o.t3, C_T3)])
        Tfree = [32, 33, 34, 35]; pairs = {}
        cur = o.d0; j = 0
        first = True
        for n, c in [(n, c) for n, c in trig if n <= 32] + [(32, None)]:
            if n > cur:
                lb = f"L_k2_{j}"; j += 1
                a(f"{lb}:\ns_waitcnt vmcnt({D-1})")
                a(f"buffer_load_dwordx4 v2, s[48:51], s62 offen {NT} lds")
                a(f"s_addk_i32 s62, 0x1000\ns_addk_i32 m0, 0x1000\ns_add_u32 s61, s61, 1\ns_cmp_lt_u32 s61, {n}\ns_cbranch_scc1 {lb}")
                cur = n
            if first:
                first = False
                a("s_load_dword s9, s[42:43], 0")
                self.srd(52, 20, 0x2000000); self.srd(44, 42, 0x10000000)
                a("s_mov_b32 s8, s3\ns_mov_b32 s10, 0\ns_mov_b32 s11, 0\ns_mov_b32 s98, 0xff")
                for r in range(7, 14): a(f"v_mov_b32 v{r}, 0")
            if c is not None: self.cnt_add(c)
        self.stamp(1)
        if o.stamps:
            a("s_getreg_b32 s60, hwreg(HW_REG_XCC_ID)\ns_add_u32 s60, s60, 1"); self.note(50, "s60")
        def doperm(u):
            nonlocal Tfree
            lo, hi, Tfree = self.permpair(Vr[2*u], Vr[2*u+1], Tfree)
            pairs[u] = (lo, hi)
        GW = list(range(96, 106)); UW = list(range(106, 116)); XF = list(range(20, 25))
        def gpulls():
            self.srd(56, 28, 2211840); self.srd(64, 30, 2211840)
            a("s_mul_i32 s68, s4, 80\ns_mul_i32 s60, s8, 20\ns_add_u32 s68, s68, s60")
            a("s_mul_i32 s60, s68, 3456\ns_lshl_b32 s61, s5, 7\ns_add_u32 s60, s60, s61\ns_cmp_ge_u32 s5, 27\ns_cselect_b32 s60, 0x40000000, s60")
            a("v_lshrrev_b32 v13, 5, v0\nv_mul_u32_u24 v13, 34560, v13\nv_and_b32 v1, 31, v0\nv_lshl_add_u32 v13, v1, 2, v13")
            for k in range(10):
                a(f"buffer_load_dword v{GW[k]}, v13, s[56:59], s60 offen offset:{3456*(k%2)} {LNT}\nbuffer_load_dword v{UW[k]}, v13, s[64:67], s60 offen offset:{3456*(k%2)} {LNT}")
                if k % 2 == 1 and k < 9: a("s_addk_i32 s60, 6912")
        after = lambda t: (31 - t) + (20 if t < o.gpos <= 32 else 0)
        for t in range(33):
            if t == o.gpos: gpulls()
            if t == 32: break
            n = 32 + t
            extra = 20 if (o.gpos <= t < o.gpos + D) else 0
            a(f"s_waitcnt vmcnt({D-1+extra})")
            if n - D == 31:
                self.cnt_add(C_K); self.stamp(2)
            for tn, c in trig:
                if tn == n and tn > 32: self.cnt_add(c)
            a(f"buffer_load_dwordx4 v[{Vr[t][0]}:{Vr[t][3]}], v3, s[52:55], s63 offen {NT}")
            if t < 31: a("s_addk_i32 s63, 0x1000")
            for u in range(16):
                if u not in pairs and 32 + 2*u + 1 <= n - D: doperm(u)
        for tn, c in trig:
            if tn >= N: self.cnt_add(c)
        if o.sprio: a(f"s_setprio {o.sprio}")
        a(f"s_waitcnt lgkmcnt(0)\ns_add_u32 s9, s9, {TAGADD}\nv_mov_b32 v18, s9")
        self.stamp(3)
        a(f"v_lshlrev_b32 v7, 6, v6\nv_add_u32 v7, {L_PBUF}, v7")
        a(f"v_lshlrev_b32 v8, 5, v5\nv_lshl_add_u32 v8, v4, 3, v8\ns_lshl_b32 s60, s3, 9\ns_add_u32 s60, s60, {L_REDO}\nv_add_u32 v8, s60, v8")
        a(f"v_lshlrev_b32 v9, 4, v0\nv_add_u32 v10, {L_REDO}, v9\nv_mov_b32 v11, {L_LSUM}\nv_mov_b32 v12, 0")
        a("L_pv:")
        a(f"s_lshl_b32 s60, s6, 3\ns_add_u32 s60, s60, s7\ns_lshl_b32 s63, s60, 4\ns_add_u32 s63, s63, {WS_ML}\ns_lshl_b32 s60, s60, 9\ns_add_u32 s62, s60, {WS_O}")
        ACC = list(range(36, 44)); P = list(range(48, 64))
        for k in ACC: a(f"v_mov_b32 v{k}, 0")
        self.spin_lds([C_P], 44)
        self.stamp(4)
        for q in range(4): a(f"ds_read_b128 v[{48+4*q}:{51+4*q}], v7 offset:{16*q}")
        a("s_waitcnt lgkmcnt(0)")
        for u in range(16):
            if u not in pairs:
                self.waitvm(after(2*u+1))
                doperm(u)
            lo, hi = pairs[u]
            for k in range(4):
                a(f"v_dot2c_f32_bf16 v{ACC[2*k]}, v{lo[k]}, v{P[u]}")
                a(f"v_dot2c_f32_bf16 v{ACC[2*k+1]}, v{hi[k]}, v{P[u]}")
        self.stamp(5)
        self.red8(ACC)
        a(f"ds_write_b64 v8, v[{ACC[0]}:{ACC[1]}]")
        self.last_arriver(C_O, "L_send", 44)
        a("s_mov_b64 s[76:77], exec\ns_mov_b32 exec_hi, 0")
        for q in range(4): a(f"ds_read_b128 v[{48+4*q}:{51+4*q}], v10 offset:{512*q}")
        a("ds_read_b128 v[64:67], v11\nds_read_b32 v68, v11 offset:16")
        a("s_waitcnt lgkmcnt(2)")
        self.sum4x4(48)
        self.tag(range(48, 52))
        a("buffer_store_dwordx4 v[48:51], v9, s[44:47], s62 offen sc1")
        a("s_and_b32 exec_lo, exec_lo, 1\ns_waitcnt lgkmcnt(0)")
        a("v_add_f32 v64, v64, v65\nv_add_f32 v66, v66, v67\nv_add_f32 v69, v64, v66")
        self.tag([68, 69])
        a("v_mov_b32 v70, v68\nv_mov_b32 v71, v69")
        a("buffer_store_dwordx4 v[68:71], v12, s[44:47], s63 offen sc1")
        a("s_mov_b64 exec, s[76:77]")
        self.stamp(6)
        a("L_send:")
        a("s_cbranch_execz L_dry_ret")
        a("s_cmp_ge_u32 s5, 27\ns_cbranch_scc1 L_wend")
        if o.gpos > 32: gpulls()
        a("L_G2:")
        a("s_mul_i32 s64, s4, 80\ns_mul_i32 s60, s8, 20\ns_add_u32 s64, s64, s60")
        a("v_lshrrev_b32 v4, 5, v0\nv_mul_u32_u24 v3, 10, v4\nv_and_b32 v6, 1, v0\nv_mul_u32_u24 v7, 5, v6\nv_add_u32 v3, v3, v7")
        a("v_lshlrev_b32 v7, 1, v3\nv_lshlrev_b32 v3, 2, v3\ns_lshl_b32 s60, s64, 1")
        for k in range(5): a(f"v_mov_b32 v{XF[k]}, 0")
        self.srd(56, 16, 1280)
        for k in range(5): a(f"buffer_load_short_d16_hi v{XF[k]}, v7, s[56:59], s60 offen offset:{2*k}")
        a(f"s_lshl_b32 s65, s64, 2\ns_add_u32 s62, s65, {WS_MR}\ns_add_u32 s63, s62, 2560\ns_add_u32 s66, s62, 5120")
        GA = list(range(26, 31)); SB = list(range(44, 49)); TT = list(range(32, 37))
        def ld5(b, so, vo):
            a(f"buffer_load_dwordx4 v[{b}:{b+3}], v{vo}, s[44:47], s{so} offen sc1\nbuffer_load_dword v{b+4}, v{vo}, s[44:47], s{so} offen offset:16 sc1")
        def ld():
            ld5(GA[0], 62, 3); ld5(SB[0], 63, 3); ld5(TT[0], 66, 3)
        a("v_mov_b32 v8, s12\nv_mov_b32 v9, 0x01000504\nv_cmp_eq_u32 vcc, 1, v6\nv_cndmask_b32 v8, v8, v9, vcc")
        a(f"s_lshl_b32 s60, s8, 9\ns_add_u32 s60, s60, {L_GU}\nv_lshlrev_b32 v9, 3, v0\nv_add_u32 v10, s60, v9")
        a(f"s_mul_i32 s60, s8, 528\ns_add_u32 s60, s60, {L_GZ}\nv_add_u32 v9, s60, v9")
        a(f"v_lshlrev_b32 v11, 2, v4\nv_lshl_add_u32 v11, v6, 3, v11\ns_add_u32 s60, s60, 512\nv_add_u32 v11, s60, v11")
        a(f"s_mul_i32 s60, s8, 80\ns_add_u32 s60, s60, {L_GX2}\nv_add_u32 v12, s60, v3")
        a(f"v_bfe_u32 v13, v0, 1, 4\nv_mul_u32_u24 v13, 2560, v13\nv_add_u32 v13, v13, v3")
        self.poll(ld, lambda: self.chk_tag(GA + SB + TT, 50), o.msleep)
        self.stamp(7)
        Gp = []; Up = []; Tf = [116]
        for W, Lp in ((GW, Gp), (UW, Up)):
            for m in range(5):
                lo, hi, Tf = self.permpair([W[m]], [W[5+m]], Tf); Lp.append((lo[0], hi[0]))
        for k in range(5):
            self.hi(GA[k], GA[k]); self.hi(TT[k], TT[k])
            a(f"v_add_f32 v{TT[k]}, 1.0, v{TT[k]}")
        IN = list(range(38, 43))
        def pack5(src, keep=None):
            for k in range(5): a(f"v_cvt_pk_bf16_f32 v{52+k}, v{src[k]}, v{src[k]}")
            for k in range(5): a(f"v_mov_b32_dpp v{58+k}, v{52+k} quad_perm:[1,0,3,2] row_mask:0xf bank_mask:0xf")
            if keep:
                for k in range(5): self.lo(keep[k], 52 + k)
            for k in range(5): a(f"v_perm_b32 v{IN[k]}, v{58+k}, v{52+k}, v8")
        def gpass():
            for m in range(5):
                for i, (Lp, b) in enumerate(((Gp, 64), (Up, 66))):
                    for h in range(2):
                        if m == 0: a(f"v_dot2_f32_bf16 v{b+h}, v{Lp[m][h]}, v{IN[m]}, 0")
                        else: a(f"v_dot2c_f32_bf16 v{b+h}, v{Lp[m][h]}, v{IN[m]}")
        def gred():
            a("v_permlane32_swap_b32 v64, v66\nv_permlane32_swap_b32 v65, v67\nv_pk_add_f32 v[64:65], v[64:65], v[66:67]")
        pack5(TT, keep=TT); gpass(); gred()
        a("ds_write_b64 v10, v[64:65]")
        for k in range(5): self.hi(SB[k], SB[k])
        pack5(SB); gpass(); gred()
        a("ds_write_b64 v10, v[64:65] offset:2048")
        a(f"s_mul_i32 s67, s4, 27\ns_add_u32 s67, s67, s5")
        self.last_arriver(C_U, "L_Gtail", 50)
        a(f"v_lshlrev_b32 v2, 11, v4\nv_and_b32 v5, 31, v0\nv_lshl_add_u32 v2, v5, 4, v2\nv_add_u32 v2, {L_GU}, v2\nv_lshlrev_b32 v5, 4, v0")
        for q in range(4): a(f"ds_read_b128 v[{68+4*q}:{71+4*q}], v2 offset:{512*q}")
        a(f"s_lshl_b32 s60, s67, 10\ns_add_u32 s60, s60, {WS_U}\ns_waitcnt lgkmcnt(0)")
        self.sum4x4(68); self.tag(range(68, 72))
        a("buffer_store_dwordx4 v[68:71], v5, s[44:47], s60 offen sc1")
        a("L_Gtail:")
        self.stamp(8)
        a(f"s_add_u32 s62, s65, {WS_Y}\ns_mul_i32 s63, s67, 640\ns_add_u32 s63, s63, {WS_Z}")
        a(f"v_lshlrev_b32 v5, 4, v0\nv_add_u32 v2, {L_GZ}, v5")
        YY = list(range(44, 49))
        if o.btrig:
            a("s_cmp_ge_u32 s5, 20\ns_cbranch_scc1 L_Gb")
            self.spin_lds([C_W], 50)
            a("L_Gb:")
        self.poll(lambda: ld5(YY[0], 62, 13), lambda: self.chk_tag(YY, 50), o.tsleep, 35, pre=o.pre)
        self.stamp(9)
        for k in range(5): self.allred(YY[k], 50, bits=(1,))
        for n in (4, 8):
            for k in range(5): self.ror(YY[k], n)
        for k in range(5): a(f"v_mov_b32 v{52+k}, v{YY[k]}")
        for k in range(5): a(f"v_permlane16_swap_b32 v{52+k}, v{YY[k]}")
        for k in range(5): a(f"v_add_f32 v{YY[k]}, v{YY[k]}, v{52+k}")
        for k in range(5): a(f"v_fma_f32 v{YY[k]}, v{YY[k]}, v{GA[k]}, v{XF[k]}")
        ZZ = list(range(70, 75))
        for k in range(5): a(f"v_mul_f32 v{ZZ[k]}, v{YY[k]}, v{TT[k]}")
        pack5(ZZ); gpass()
        a("v_add_f32 v76, v44, v45\nv_mul_f32 v77, v44, v44\nv_add_f32 v78, v46, v47\nv_fmac_f32 v77, v45, v45\nv_add_f32 v76, v76, v48\nv_fmac_f32 v77, v46, v46\nv_add_f32 v76, v76, v78\nv_fmac_f32 v77, v47, v47\nv_fmac_f32 v77, v48, v48")
        gred()
        a("ds_write_b64 v9, v[64:65]")
        a("v_permlane32_swap_b32 v76, v77\nv_add_f32 v76, v76, v77")
        self.allred(76, 50, bits=(0,))
        a("ds_write_b32 v11, v76")
        for k in range(5): a(f"ds_write_b32 v12, v{YY[k]} offset:{4*k}")
        self.last_arriver(C_Z, "L_wend", 50)
        a("s_and_b32 exec_hi, exec_hi, 1")
        for q in range(4): a(f"ds_read_b128 v[{68+4*q}:{71+4*q}], v2 offset:{528*q}")
        a("s_waitcnt lgkmcnt(0)")
        self.sum4x4(68); self.tag(range(68, 72))
        a("buffer_store_dwordx4 v[68:71], v5, s[44:47], s63 offen sc1")
        self.stamp(10)
        a("s_cbranch_execz L_Gx2\ns_cmp_lg_u32 s5, 0\ns_cbranch_scc1 L_wend\nL_Gx2:")
        a(f"s_and_b32 exec_lo, exec_lo, 0xfffff\ns_mov_b32 exec_hi, 0\nv_add_u32 v2, {L_GX2}, v5\nds_read_b128 v[52:55], v2")
        a(f"s_mul_i32 s60, s4, 320\ns_add_u32 s60, s60, {WS_X2}\ns_waitcnt lgkmcnt(0)")
        self.tag(range(52, 56))
        a("buffer_store_dwordx4 v[52:55], v5, s[44:47], s60 offen sc1")
        a("L_wend:")
        self.endwave()

        a("L_aux:")
        if o.prio: a(f"s_setprio {o.prio}")
        a("s_sub_u32 s8, s3, 4")
        a("v_lshlrev_b32 v6, 2, v0\ns_cmp_lg_u32 s8, 0\ns_cbranch_scc1 L_noinit")
        a(f"v_add_u32 v16, v14, v6\nv_mov_b32 v17, 0\nds_write_b32 v16, v17\nL_noinit:")
        CR = list(range(160, 165))
        WM = [[96 + 4*k + q for q in range(4)] for k in range(5)]
        XR = list(range(166, 171)); XP = 171
        WQ = list(range(136, 156))
        a("s_mul_i32 s67, s2, 205\ns_lshr_b32 s67, s67, 12\ns_mul_i32 s60, s67, 20\ns_sub_u32 s66, s2, s60")
        a("s_cmp_lt_u32 s2, 80\ns_cbranch_scc1 L_unit")
        a("s_sub_u32 s61, s2, 80\ns_mul_i32 s67, s61, 205\ns_lshr_b32 s67, s67, 13\ns_mul_i32 s60, s67, 40\ns_sub_u32 s66, s61, s60\ns_add_u32 s66, s66, 20")
        a("L_unit:")
        a("s_mul_i32 s68, s67, 160\ns_mul_i32 s60, s8, 40\ns_add_u32 s68, s68, s60")
        a("s_mul_i32 s69, s68, 7680\ns_lshl_b32 s60, s66, 7\ns_add_u32 s69, s69, s60\ns_lshl_b32 s68, s68, 1")
        a("v_lshrrev_b32 v3, 3, v0\nv_mul_u32_u24 v5, 7680, v3\nv_and_b32 v4, 7, v0\nv_lshl_add_u32 v5, v4, 4, v5\nv_lshlrev_b32 v3, 1, v3")
        a("s_mul_i32 s70, s7, 80\ns_mul_i32 s61, s8, 20\ns_add_u32 s70, s70, s61")
        a("s_lshl_b32 s71, s70, 13\ns_lshl_b32 s61, s6, 8\ns_add_u32 s71, s71, s61")
        a("s_waitcnt lgkmcnt(0)")
        self.stamp_init()
        a("s_load_dword s9, s[42:43], 0")
        self.srd(44, 42, 0x10000000)
        a("s_cmp_ge_u32 s2, 240\ns_cbranch_scc1 L_noprod")
        self.srd(52, 36, 4915200); self.srd(48, 34, 1280)
        for k in range(5):
            if not o.nofront: a(f"buffer_load_dwordx4 v[{WM[k][0]}:{WM[k][3]}], v5, s[52:55], s69 offen {WNT}")
            if k < 4: a("s_add_u32 s69, s69, 61440")
        for k in range(5): a(f"buffer_load_ushort v{CR[k]}, v3, s[48:51], s68 offen offset:{16*k}")
        a("L_noprod:")
        if o.b1early: a("s_barrier")
        self.srd(52, 22, 5242880); self.srd(48, 16, 1280)
        for k in range(20):
            if not o.nofront: a(f"buffer_load_dword v{WQ[k]}, v6, s[52:55], s71 offen {WNT}")
            if k < 19: a("s_addk_i32 s71, 0x2000")
        a("v_lshrrev_b32 v16, 4, v0\nv_and_b32 v17, 15, v0\nv_min_u32 v17, 9, v17")
        a("v_mul_u32_u24 v4, 20, v0\ns_lshl_b32 s61, s70, 1\nv_lshlrev_b32 v5, 2, v17")
        a(f"buffer_load_dwordx4 v[{XR[0]}:{XR[3]}], v4, s[48:51], 0 offen\nbuffer_load_dword v{XR[4]}, v4, s[48:51], 0 offen offset:16")
        a(f"buffer_load_dword v{XP}, v5, s[48:51], s61 offen")
        a("s_waitcnt lgkmcnt(0)")
        if not o.b1early: a("s_barrier")
        self.stamp(1)
        a(f"s_add_u32 s9, s9, {TAGADD}\ns_mov_b32 s98, 0xff\nv_mov_b32 v18, s9")
        for r in range(7, 14): a(f"v_mov_b32 v{r}, 0")
        a("s_mov_b32 s10, 1\ns_mov_b32 s11, s5\ns_cmp_lt_u32 s5, 20\ns_cbranch_scc1 L_roled")
        a("s_mov_b32 s10, 3\ns_sub_u32 s11, s5, 20\ns_lshl_b32 s11, s11, 3\ns_add_u32 s11, s11, s4\ns_cmp_lt_u32 s5, 25\ns_cbranch_scc1 L_roled")
        a("s_mov_b32 s10, 2\ns_sub_u32 s11, 31, s5\ns_lshl_b32 s11, s11, 3\ns_add_u32 s11, s11, s4\ns_cmp_lt_u32 s11, 54\ns_cbranch_scc1 L_roled\ns_mov_b32 s10, 0")
        a("L_roled:")
        if o.fdry:
            a("s_mov_b64 exec, 0\ns_branch L_front")
        a("L_fdry_ret:\ns_mov_b64 exec, -1")
        self.stamp(2)
        a("L_front:")
        a("s_cmp_ge_u32 s2, 240\ns_cbranch_scc1 L_ln1")
        self.waitvm(23)
        self.stamp(20)
        for k in range(5):
            x, e = CR[k], 44 + k
            a(f"v_lshlrev_b32 v{x}, 16, v{x}\nv_mul_f32 v{e}, 0xbfb8aa3b, v{x}\nv_exp_f32 v{e}, v{e}")
        for k in range(5): a(f"v_add_f32 v{44+k}, 1.0, v{44+k}\nv_rcp_f32 v{44+k}, v{44+k}")
        for k in range(5): a(f"v_mul_f32 v{44+k}, v{CR[k]}, v{44+k}")
        a("v_cvt_pk_bf16_f32 v36, v44, v45\nv_cvt_pk_bf16_f32 v37, v46, v47\nv_cvt_pk_bf16_f32 v38, v48, 0")
        ACC = list(range(48, 56))
        for k in ACC: a(f"v_mov_b32 v{k}, 0")
        Tf = [44, 45, 46, 47]
        for m in range(2):
            lo, hi, Tf = self.permpair(WM[2*m], WM[2*m+1], Tf)
            for k in range(4):
                a(f"v_dot2c_f32_bf16 v{ACC[2*k]}, v{lo[k]}, v{36+m}\nv_dot2c_f32_bf16 v{ACC[2*k+1]}, v{hi[k]}, v{36+m}")
        for k in range(4):
            a(f"v_and_b32 v{Tf[k]}, 0xffff, v{WM[4][k]}\nv_lshrrev_b32 v{WM[4][k]}, 16, v{WM[4][k]}")
            a(f"v_dot2c_f32_bf16 v{ACC[2*k]}, v{Tf[k]}, v38\nv_dot2c_f32_bf16 v{ACC[2*k+1]}, v{WM[4][k]}, v38")
        self.red8(ACC); self.ror(48, 8); self.ror(49, 8)
        a(f"s_lshl_b32 s60, s8, 8\ns_add_u32 s60, s60, {L_RED1}\nv_and_b32 v3, 7, v0\nv_lshlrev_b32 v2, 5, v3\nv_lshl_add_u32 v2, v16, 3, v2\nv_add_u32 v2, s60, v2")
        a("ds_write_b64 v2, v[48:49]")
        self.last_arriver(C_F1, "L_ln1", 44)
        a(f"v_lshlrev_b32 v3, 3, v0\nv_add_u32 v3, {L_RED1}, v3\nv_lshlrev_b32 v2, 4, v0\ns_mov_b64 s[14:15], exec\ns_mov_b32 exec_hi, 0")
        for q in range(4): a(f"ds_read_b64 v[{44+2*q}:{45+2*q}], v3 offset:{256*q}")
        a("s_mul_i32 s67, s2, 205\ns_lshr_b32 s67, s67, 12\ns_mul_i32 s60, s67, 20\ns_sub_u32 s66, s2, s60")
        a("s_cmp_lt_u32 s2, 80\ns_cbranch_scc1 L_unit2")
        a("s_sub_u32 s61, s2, 80\ns_mul_i32 s67, s61, 205\ns_lshr_b32 s67, s67, 13\ns_mul_i32 s60, s67, 40\ns_sub_u32 s66, s61, s60\ns_add_u32 s66, s66, 20")
        a("L_unit2:")
        a(f"s_mul_i32 s60, s67, 30720\ns_lshl_b32 s61, s66, 9\ns_add_u32 s60, s60, s61\ns_add_u32 s60, s60, {WS_G1}")
        a("s_waitcnt lgkmcnt(0)")
        a("v_pk_add_f32 v[44:45], v[44:45], v[46:47]\nv_pk_add_f32 v[48:49], v[48:49], v[50:51]\nv_pk_add_f32 v[44:45], v[44:45], v[48:49]")
        a("v_mov_b32 v46, v45\nv_mov_b32 v45, s9\nv_mov_b32 v47, s9\nv_mov_b32 v4, 0")
        if not o.nostore: a("buffer_store_dwordx4 v[44:47], v2, s[44:47], s60 offen sc1")
        a("s_mov_b64 exec, s[14:15]")
        self.stamp(3)
        a("L_ln1:")
        if o.fdry == 1: a("s_cbranch_execz L_fdry_ret")
        self.waitvm(2)
        self.stamp(21)
        a("s_nop 0")
        WQp = []; WQf = [64]
        for m in range(10):
            lo, hi, WQf = self.permpair([WQ[2*m]], [WQ[2*m+1]], WQf)
            WQp.append((lo[0], hi[0]))
        self.waitvm(0)
        X = list(range(48, 58))
        for m in range(5):
            self.lo(X[2*m], XR[m]); self.hi(X[2*m+1], XR[m])
        a(f"v_add_f32 v58, v{X[0]}, v{X[1]}")
        for k in range(2, 10): a(f"v_add_f32 v58, v58, v{X[k]}")
        self.allred(58, 59)
        a("v_mul_f32 v58, 0x3acccccd, v58")
        a("v_mov_b32 v60, 0")
        for k in range(10): a(f"v_sub_f32 v{X[k]}, v{X[k]}, v58\nv_fmac_f32 v60, v{X[k]}, v{X[k]}")
        self.allred(60, 59)
        a("v_mul_f32 v60, 0x3acccccd, v60")
        self.round2(58, 60, 59)
        a("v_add_f32 v60, 0x3727c5ac, v60")
        self.round2(60, 61, 59)
        a("v_sqrt_f32 v60, v60")
        self.round2(60, 61, 59)
        a("v_rcp_f32 v60, v60")
        self.lo(62, XP); self.hi(63, XP)
        a("v_sub_f32 v62, v62, v58\nv_sub_f32 v63, v63, v58")
        self.round2(62, 63, 59)
        a("v_mul_f32 v62, v62, v60\nv_mul_f32 v63, v63, v60")
        self.round2(62, 63, 59)
        a("s_mul_i32 s60, s7, 80\ns_mul_i32 s61, s8, 20\ns_add_u32 s60, s60, s61")
        a("v_mul_u32_u24 v2, 30720, v16\nv_lshl_add_u32 v2, v17, 4, v2")
        a(f"s_lshl_b32 s62, s60, 3\ns_add_u32 s62, s62, {WS_G1}\ns_add_u32 s63, s62, 5120")
        self.spin_lds([C_T1], 44)
        self.stamp(22)
        def ld():
            a("buffer_load_dwordx4 v[44:47], v2, s[44:47], s62 offen sc1\nbuffer_load_dwordx4 v[48:51], v2, s[44:47], s63 offen sc1")
        def ck():
            a("v_xor_b32 v53, s9, v45\nv_xor_b32 v54, s9, v47\nv_xor_b32 v55, s9, v49\nv_xor_b32 v56, s9, v51")
            a("v_or3_b32 v53, v53, v54, v55\nv_or_b32 v53, v53, v56\nv_cmp_ne_u32 vcc, 0, v53")
        self.poll(ld, ck, o.fsleep, 32)
        self.stamp(4)
        for v in (44, 46, 48, 50): self.allred(v, 53, bits=(4, 5))
        self.round2(44, 46, 53); self.round2(48, 50, 53)
        a("v_add_f32 v48, 1.0, v48\nv_add_f32 v50, 1.0, v50")
        self.round2(48, 50, 53)
        a("v_mul_f32 v48, v62, v48\nv_mul_f32 v50, v63, v50")
        self.round2(48, 50, 53)
        a("v_add_f32 v48, v48, v44\nv_add_f32 v50, v50, v46\nv_cvt_pk_bf16_f32 v53, v48, v50")
        for m in range(10): a(f"v_readlane_b32 s{64+m}, v53, {m}")
        a("v_mov_b32 v44, 0\nv_mov_b32 v45, 0")
        for m in range(10):
            a(f"v_dot2c_f32_bf16 v44, s{64+m}, v{WQp[m][0]}\nv_dot2c_f32_bf16 v45, s{64+m}, v{WQp[m][1]}")
        a(f"s_lshl_b32 s60, s8, 9\ns_add_u32 s60, s60, {L_RED2}\nv_lshlrev_b32 v2, 3, v0\nv_add_u32 v2, s60, v2")
        a("ds_write_b64 v2, v[44:45]")
        self.last_arriver(C_F2, "L_h2", 46)
        a(f"v_lshlrev_b32 v2, 4, v0\nv_add_u32 v3, {L_RED2}, v2\ns_mov_b64 s[14:15], exec\ns_mov_b32 exec_hi, 0")
        for q in range(4): a(f"ds_read_b128 v[{44+4*q}:{47+4*q}], v3 offset:{512*q}")
        a(f"s_lshl_b32 s60, s6, 3\ns_add_u32 s60, s60, s7\ns_lshl_b32 s60, s60, 9\ns_add_u32 s60, s60, {WS_Q2}")
        a("s_waitcnt lgkmcnt(0)")
        self.sum4x4(44)
        self.tag(range(44, 48), rnd=True)
        if not o.nostore: a("buffer_store_dwordx4 v[44:47], v2, s[44:47], s60 offen sc1")
        a("s_mov_b64 exec, s[14:15]")
        self.stamp(5)
        a("L_h2:")
        if o.fdry == 2: a("s_cbranch_execz L_fdry_ret")
        if o.dry:
            if o.fdry == 3: a("s_cbranch_execz L_h2b")
            a("s_mov_b64 exec, 0")
            a("s_cmp_eq_u32 s8, 0\ns_cbranch_scc1 L_pv")
            a("s_cmp_eq_u32 s8, 1\ns_cbranch_scc1 L_G2")
            a("s_cmp_eq_u32 s10, 1\ns_cbranch_scc1 L_W2")
            a("s_cmp_eq_u32 s10, 2\ns_cbranch_scc0 L_dry_ret")
            a("s_cmp_eq_u32 s8, 2\ns_cbranch_scc1 L_D2\ns_branch L_final")
        a("L_dry_ret:\ns_mov_b64 exec, -1")
        self.stamp(24)
        a("L_h2b:")
        a("v_lshrrev_b32 v2, 3, v0\nv_lshlrev_b32 v2, 9, v2\nv_and_b32 v3, 7, v0\nv_lshl_add_u32 v2, v3, 4, v2")
        a(f"s_lshl_b32 s62, s6, 12\ns_lshl_b32 s60, s8, 7\ns_add_u32 s62, s62, s60\ns_add_u32 s62, s62, {WS_Q2}")
        a("s_cbranch_execz L_M\ns_cmp_lg_u32 s10, 3\ns_cbranch_scc1 L_Mend\ns_cmp_lg_u32 s8, 0\ns_cbranch_scc1 L_Mend\nL_M:")
        a("v_and_b32 v4, 15, v0\nv_mul_u32_u24 v5, 30720, v16\nv_lshl_add_u32 v5, v4, 5, v5\nv_lshlrev_b32 v4, 4, v4")
        a(f"s_lshl_b32 s63, s11, 9\ns_add_u32 s63, s63, {WS_G1 + 1280*8}\ns_lshl_b32 s64, s11, 8\ns_add_u32 s64, s64, {WS_MR}")
        def ld():
            a("buffer_load_dwordx4 v[44:47], v5, s[44:47], s63 offen sc1\nbuffer_load_dwordx4 v[48:51], v5, s[44:47], s63 offen offset:16 sc1")
        self.poll(ld, ck, o.fsleep)
        for v in (44, 46, 48, 50): self.allred(v, 53, bits=(4, 5))
        self.round2(44, 46, 53); self.round2(48, 50, 53)
        a("v_mov_b32 v45, v46\nv_mov_b32 v46, v48\nv_mov_b32 v47, v50")
        self.tag(range(44, 48))
        a("s_mov_b64 s[14:15], exec\ns_and_b32 exec_lo, exec_lo, 0xffff\ns_mov_b32 exec_hi, 0")
        if not o.nostore: a("buffer_store_dwordx4 v[44:47], v4, s[44:47], s64 offen sc1")
        a("s_mov_b64 exec, s[14:15]\nL_Mend:")
        self.spin_lds([C_T2], 44)
        self.stamp(23)
        self.poll(lambda: a("buffer_load_dwordx4 v[48:51], v2, s[44:47], s62 offen sc1"), lambda: self.chk_tag(range(48, 52), 52), o.fsleep, 33)
        self.stamp(6)
        self.red4([48, 49, 50, 51]); self.ror(48, 8)
        a(f"s_lshl_b32 s60, s8, 6\ns_add_u32 s60, s60, {L_QBUF}\nv_lshlrev_b32 v3, 3, v3\nv_lshl_add_u32 v3, v16, 1, v3\nv_add_u32 v3, s60, v3")
        a("v_cvt_pk_bf16_f32 v48, v48, v48\nds_write_b16 v3, v48\ns_waitcnt lgkmcnt(0)")
        self.cnt_add(C_Q)
        a("L_qk:")
        a("v_and_b32 v17, 15, v0")
        a(f"v_xor_b32 v2, v16, v17\nv_lshlrev_b32 v2, 4, v2\nv_lshl_add_u32 v2, v17, 8, v2\ns_lshl_b32 s60, s8, 15\nv_add_u32 v2, s60, v2")
        a("v_xor_b32 v3, 64, v2\nv_xor_b32 v4, 0x80, v2\nv_xor_b32 v5, 0xc0, v2")
        a(f"v_lshlrev_b32 v6, 4, v16\nv_add_u32 v6, {L_QBUF}, v6")
        self.spin_lds([C_Q, C_K], 44)
        self.stamp(7)
        QF = 20
        for s in range(4): a(f"ds_read_b128 v[{QF+4*s}:{QF+4*s+3}], v6 offset:{64*s}")
        KB = [44, 60]
        DD = [76 + 4*g for g in range(4)]
        S = [36, 37]
        def rd(t):
            for s in range(4): a(f"ds_read_b128 v[{KB[t%2]+4*s}:{KB[t%2]+4*s+3}], v{2+s} offset:{4096*t}")
        rd(0); rd(1)
        for t in range(8):
            a(f"s_waitcnt lgkmcnt({4 if t < 7 else 0})")
            d = DD[t % 4]
            for s in range(4):
                c = "0" if s == 0 else f"v[{d}:{d+3}]"
                a(f"v_mfma_f32_16x16x32_bf16 v[{d}:{d+3}], v[{QF+4*s}:{QF+4*s+3}], v[{KB[t%2]+4*s}:{KB[t%2]+4*s+3}], {c}")
            if t + 2 < 8:
                a("s_nop 7"); rd(t + 2)
            if t % 4 == 3:
                for g in range(4): a(f"v_mov_b32_dpp v{S[t//4]}, v{DD[g]} quad_perm:[0,1,2,3] row_mask:{hex(1<<g)} bank_mask:0xf")
        self.round2(36, 37, 38)
        a("v_mul_f32 v36, 0x3db504f3, v36\nv_mul_f32 v37, 0x3db504f3, v37")
        self.round2(36, 37, 38)
        a("v_max_f32 v39, v36, v37")
        self.allred(39, 38, op="max")
        a(f"s_lshl_b32 s60, s8, 2\ns_add_u32 s60, s60, {L_MAXB}\nv_mov_b32 v2, s60\nv_mov_b32 v3, {L_MAXB}\nds_write_b32 v2, v39\ns_waitcnt lgkmcnt(0)")
        self.cnt_add(C_MAX)
        self.spin_lds([C_MAX], 44)
        a("ds_read_b128 v[44:47], v3")
        a(f"s_lshl_b32 s60, s8, 4\ns_add_u32 s60, s60, {L_PBUF}\nv_lshlrev_b32 v2, 6, v17\nv_lshl_add_u32 v2, v16, 1, v2\nv_add_u32 v2, s60, v2")
        a("s_waitcnt lgkmcnt(0)")
        a("v_max3_f32 v44, v44, v45, v46\nv_max_f32 v40, v44, v47")
        a(f"v_sub_f32 v36, v36, v40\nv_sub_f32 v37, v37, v40\nv_mul_f32 v36, {hex(LOG2E)}, v36\nv_mul_f32 v37, {hex(LOG2E)}, v37\nv_exp_f32 v36, v36\nv_exp_f32 v37, v37")
        a("v_cvt_pk_bf16_f32 v38, v36, v37\nds_write_b16 v2, v38\nds_write_b16_d16_hi v2, v38 offset:8")
        self.lo(36, 38); self.hi(37, 38)
        a("v_add_f32 v41, v36, v37")
        self.allred(41, 38)
        a(f"s_lshl_b32 s60, s8, 2\ns_add_u32 s60, s60, {L_LSUM}\nv_mov_b32 v2, s60\nv_mov_b32 v3, {L_LSUM}\nds_write_b32 v2, v41\nds_write_b32 v3, v40 offset:16\ns_waitcnt lgkmcnt(0)")
        self.cnt_add(C_P)
        self.stamp(8)
        if o.fdry == 3: a("s_cbranch_execz L_fdry_ret")
        if o.norole:
            self.dump_stamps()
            a("s_endpgm")
        a("s_cmp_eq_u32 s10, 2\ns_cbranch_scc1 L_D1\ns_cmp_eq_u32 s10, 1\ns_cbranch_scc0 L_wend")
        WW = [[96 + 4*i + q for q in range(4)] for i in range(8)]
        self.spin_lds([C_O if o.wtrig else C_T3], 44)
        self.srd(48, 24, 5242880)
        def wids():
            a(f"s_add_u32 s64, s4, {o.wx}\ns_and_b32 s64, s64, 7")
            a("s_cmp_ge_u32 s5, 10\ns_cselect_b32 s60, 1, 0\ns_lshl_b32 s64, s64, 1\ns_add_u32 s64, s64, s60\ns_mul_i32 s60, s60, 10\ns_sub_u32 s65, s5, s60")
            a("s_lshr_b32 s60, s8, 1\ns_lshl_b32 s66, s64, 1\ns_add_u32 s66, s66, s60\ns_and_b32 s67, s8, 1")
        wids()
        a("v_lshrrev_b32 v2, 3, v0\nv_mul_u32_u24 v2, 10240, v2\nv_and_b32 v3, 7, v0\nv_lshl_add_u32 v2, v3, 4, v2")
        a("s_lshl_b32 s60, s66, 1\ns_add_u32 s60, s60, s67\ns_mul_i32 s60, s60, 81920\ns_lshl_b32 s61, s65, 7\ns_add_u32 s60, s60, s61\ns_add_u32 s61, s60, 5120")
        for i in range(8): a(f"buffer_load_dwordx4 v[{WW[i][0]}:{WW[i][3]}], v2, s[48:51], s{60 + i//4} offen offset:{1280*(i%4)} {LNT}")
        a("L_W2:")
        wids()
        a("v_and_b32 v3, 7, v0\nv_lshlrev_b32 v2, 4, v3")
        a(f"v_lshrrev_b32 v4, 3, v0\nv_lshlrev_b32 v4, 5, v4\nv_lshl_add_u32 v4, v3, 9, v4")
        a(f"s_lshl_b32 s60, s8, 8\ns_add_u32 s60, s60, {L_REDW}\nv_lshlrev_b32 v5, 5, v3\nv_lshl_add_u32 v5, v16, 3, v5\nv_add_u32 v5, s60, v5")
        a(f"v_lshlrev_b32 v6, 4, v0\nv_add_u32 v7, {L_REDW}, v6")
        a(f"s_lshl_b32 s68, s66, 7\ns_add_u32 s68, s68, {WS_ML}\ns_lshl_b32 s62, s66, 12\ns_lshl_b32 s60, s67, 8\ns_add_u32 s62, s62, s60\ns_add_u32 s62, s62, {WS_O}")
        a(f"s_mul_i32 s63, s64, 2560\ns_lshl_b32 s60, s65, 8\ns_add_u32 s63, s63, s60\ns_add_u32 s63, s63, {WS_Y}")
        self.waitvm(0)
        Tf = [128, 129, 130, 131]; Wp = []
        for m in range(4):
            lo, hi, Tf = self.permpair(WW[2*m], WW[2*m+1], Tf); Wp.append((lo, hi))
        self.stamp(9)
        if not o.wtrig: self.spin_lds([C_O], 44)
        self.stamp(10)
        def ld():
            a("buffer_load_dwordx4 v[52:55], v2, s[44:47], s68 offen sc1")
            a("buffer_load_dwordx4 v[44:47], v4, s[44:47], s62 offen sc1\nbuffer_load_dwordx4 v[48:51], v4, s[44:47], s62 offen offset:16 sc1")
        self.poll(ld, lambda: self.chk_tag(list(range(44, 56)), 60), o.asleep, 34, rk=40, pre=o.prea)
        self.stamp(11)
        a("v_and_b32 v52, 0xffff0000, v52\nv_mov_b32 v54, v52")
        self.allred(54, 60, op="max", bits=(0, 1, 2))
        a(f"v_sub_f32 v52, v52, v54\nv_mul_f32 v52, {hex(LOG2E)}, v52\nv_exp_f32 v56, v52\nv_mul_f32 v53, v53, v56")
        for k in range(0, 8, 2): a(f"v_pk_mul_f32 v[{44+k}:{45+k}], v[{44+k}:{45+k}], v[56:57] op_sel_hi:[1,0]")
        for bit in (0, 1, 2):
            self.allred(53, 60, bits=(bit,))
            for k in range(8): self.allred(44 + k, 60, bits=(bit,))
        a("v_rcp_f32 v56, v53")
        for k in range(0, 8, 2): a(f"v_pk_mul_f32 v[{44+k}:{45+k}], v[{44+k}:{45+k}], v[56:57] op_sel_hi:[1,0]")
        for m in range(4): a(f"v_cvt_pk_bf16_f32 v{52+m}, v{44+2*m}, v{45+2*m}")
        ACC = list(range(24, 32))
        for m in range(4):
            lo, hi = Wp[m]
            for k in range(4):
                if m == 0: a(f"v_dot2_f32_bf16 v{ACC[2*k]}, v{lo[k]}, v{52+m}, 0\nv_dot2_f32_bf16 v{ACC[2*k+1]}, v{hi[k]}, v{52+m}, 0")
                else: a(f"v_dot2c_f32_bf16 v{ACC[2*k]}, v{lo[k]}, v{52+m}\nv_dot2c_f32_bf16 v{ACC[2*k+1]}, v{hi[k]}, v{52+m}")
        self.red8(ACC)
        self.ror(24, 8); self.ror(25, 8)
        a("ds_write_b64 v5, v[24:25]")
        self.last_arriver(C_W, "L_wend", 60)
        a("s_and_b32 exec_lo, exec_lo, 0xffff\ns_mov_b32 exec_hi, 0")
        for q in range(4): a(f"ds_read_b128 v[{44+4*q}:{47+4*q}], v7 offset:{256*q}")
        a("s_waitcnt lgkmcnt(0)")
        self.sum4x4(44)
        self.tag(range(44, 48))
        a("buffer_store_dwordx4 v[44:47], v6, s[44:47], s63 offen sc1")
        self.stamp(12)
        a("s_branch L_wend")

        DW = [[96 + 2*n + q for q in range(2)] for n in range(32)]
        a("L_D1:")
        self.spin_lds([C_O if o.dtrig else C_T3], 44)
        self.srd(48, 32, 2211840)
        def dids():
            a("s_mul_i32 s64, s8, 192\ns_cmp_eq_u32 s8, 3\ns_cselect_b32 s64, 512, s64\ns_cmp_ge_u32 s8, 2\ns_cselect_b32 s65, 31, 47")
        dids()
        a("v_min_u32 v4, s65, v0\nv_lshlrev_b32 v2, 3, v4\ns_lshl_b32 s60, s64, 1\ns_mul_i32 s61, s11, 40960\ns_add_u32 s61, s61, s60")
        for n in range(32):
            a(f"buffer_load_dwordx2 v[{DW[n][0]}:{DW[n][1]}], v2, s[48:51], s61 offen offset:{1280*(n%4)} {LNT}")
            if n % 4 == 3 and n < 31: a("s_addk_i32 s61, 5120")
        a("L_D2:")
        dids()
        a("v_min_u32 v4, s65, v0\nv_lshlrev_b32 v4, 4, v4")
        a(f"s_mul_i32 s70, s11, 2560\ns_lshl_b32 s60, s64, 2\ns_add_u32 s70, s70, s60\ns_add_u32 s70, s70, {WS_OP}")
        a("v_lshrrev_b32 v5, 3, v0\nv_and_b32 v6, 7, v0\nv_lshlrev_b32 v6, 4, v6")
        a("v_mul_u32_u24 v7, 17280, v5\nv_add_u32 v8, v7, v6\nv_mul_u32_u24 v9, 27648, v5\nv_add_u32 v9, v9, v6")
        a("s_lshr_b32 s60, s11, 1\ns_and_b32 s61, s11, 1\ns_lshl_b32 s61, s61, 7")
        a(f"s_mul_i32 s66, s60, 640\ns_add_u32 s66, s66, {WS_Z}\ns_add_u32 s67, s66, s61\ns_lshl_b32 s68, s60, 10\ns_add_u32 s68, s68, s61\ns_add_u32 s68, s68, {WS_U}")
        a(f"v_and_b32 v10, 3, v0\nv_lshlrev_b32 v10, 4, v10\ns_min_u32 s60, s11, 39\ns_lshl_b32 s69, s60, 6\ns_add_u32 s71, s69, {WS_MR + 7680}")
        self.waitvm(0)
        Tf = [160, 161]; Dp = []
        for m in range(16):
            lo, hi, Tf = self.permpair(DW[2*m], DW[2*m+1], Tf); Dp.append((lo, hi))
        self.stamp(9)
        def ld():
            for q in range(4): a(f"buffer_load_dwordx4 v[{44+4*q}:{47+4*q}], v9, s[44:47], s68 offen offset:{256*q} sc1")
            a("buffer_load_dwordx4 v[60:63], v10, s[44:47], s71 offen sc1")
        self.poll(ld, lambda: self.chk_tag(range(44, 64), 64), o.usleep, 37, pre=o.pre)
        def R(b):
            for k in range(4): a(f"v_permlane32_swap_b32 v{b+k}, v{b+4+k}")
            a(f"v_pk_add_f32 v[{b}:{b+1}], v[{b}:{b+1}], v[{b+4}:{b+5}]\nv_pk_add_f32 v[{b+2}:{b+3}], v[{b+2}:{b+3}], v[{b+6}:{b+7}]")
            a(f"v_permlane16_swap_b32 v{b}, v{b+2}\nv_permlane16_swap_b32 v{b+1}, v{b+3}\nv_pk_add_f32 v[{b}:{b+1}], v[{b}:{b+1}], v[{b+2}:{b+3}]")
            self.ror(b, 8); self.ror(b + 1, 8)
        R(44); R(52)
        a("v_mov_b32 v20, v44\nv_mov_b32 v21, v45\nv_mov_b32 v22, v52\nv_mov_b32 v23, v53")
        for g in range(4): a(f"v_mov_b32_dpp v24, v{60+g} quad_perm:[0,1,2,3] row_mask:{hex(1<<g)} bank_mask:0xf")
        self.hi(24, 24)
        a("v_mov_b32 v26, 0x3d372713")
        self.stamp(10)
        def ld():
            a("buffer_load_dwordx4 v[52:55], v7, s[44:47], s66 offen offset:512 sc1")
            a("buffer_load_dwordx4 v[44:47], v8, s[44:47], s67 offen sc1\nbuffer_load_dwordx4 v[48:51], v8, s[44:47], s67 offen offset:256 sc1")
        self.poll(ld, lambda: self.chk_tag(range(44, 56), 60), o.tsleep, 38, pre=o.pre)
        self.stamp(11)
        a("v_permlane32_swap_b32 v52, v53")
        for k in range(4): a(f"v_permlane32_swap_b32 v{44+k}, v{48+k}")
        a("v_add_f32 v52, v52, v53\nv_pk_add_f32 v[44:45], v[44:45], v[48:49]\nv_pk_add_f32 v[46:47], v[46:47], v[50:51]\nv_mov_b32 v53, v52")
        a("v_permlane16_swap_b32 v44, v46\nv_permlane16_swap_b32 v45, v47\nv_permlane16_swap_b32 v52, v53")
        a("v_pk_add_f32 v[44:45], v[44:45], v[46:47]\nv_add_f32 v52, v52, v53")
        self.ror(52, 8); self.ror(44, 8); self.ror(45, 8)
        a("v_mul_f32 v52, 0x3acccccd, v52")
        a("v_readlane_b32 s60, v52, 0\nv_readlane_b32 s61, v52, 32")
        a("v_mov_b32 v54, s60\nv_mov_b32 v55, s61\nv_fma_f32 v55, -v54, v54, v55\nv_add_f32 v55, 0x3727c5ac, v55\nv_rsq_f32 v56, v55")
        a("v_fma_f32 v44, -v54, v20, v44\nv_fma_f32 v45, -v54, v21, v45\nv_fma_f32 v44, v56, v44, v22\nv_fma_f32 v45, v56, v45, v23")
        a("v_mov_b32 v46, v44\nv_mov_b32 v47, v45\nv_permlane32_swap_b32 v44, v46\nv_permlane32_swap_b32 v45, v47")
        a("v_mul_f32 v48, v44, v44\nv_mul_f32 v49, v45, v45\nv_fma_f32 v48, v48, v26, 1.0\nv_fma_f32 v49, v49, v26, 1.0\nv_mul_f32 v48, v48, v44\nv_mul_f32 v49, v49, v45")
        a("v_mul_f32 v48, 0xc0135761, v48\nv_mul_f32 v49, 0xc0135761, v49\nv_exp_f32 v48, v48\nv_exp_f32 v49, v49\nv_mul_f32 v44, v44, v46\nv_mul_f32 v45, v45, v47")
        a("v_add_f32 v48, 1.0, v48\nv_add_f32 v49, 1.0, v49\nv_rcp_f32 v48, v48\nv_rcp_f32 v49, v49\nv_mul_f32 v44, v44, v48\nv_mul_f32 v45, v45, v49\nv_cvt_pk_bf16_f32 v44, v44, v45")
        for m in range(16): a(f"v_readlane_b32 s{72+m}, v44, {16*(m&1) + (m>>1)}")
        for m in range(16):
            lo, hi = Dp[m]
            for k in range(2):
                if m == 0: a(f"v_dot2_f32_bf16 v{48+2*k}, s{72+m}, v{lo[k]}, 0\nv_dot2_f32_bf16 v{49+2*k}, s{72+m}, v{hi[k]}, 0")
                else: a(f"v_dot2c_f32_bf16 v{48+2*k}, s{72+m}, v{lo[k]}\nv_dot2c_f32_bf16 v{49+2*k}, s{72+m}, v{hi[k]}")
        self.tag(range(48, 52))
        a("s_cmp_ge_u32 s8, 2\ns_cselect_b32 s60, 0, 0xffff\ns_and_b32 exec_hi, exec_hi, s60")
        a("buffer_store_dwordx4 v[48:51], v4, s[44:47], s70 offen sc1")
        self.stamp(13)
        a("s_cbranch_execz L_dry_ret")
        a("s_cmp_lg_u32 s8, 0\ns_cbranch_scc1 L_wend\ns_cmp_ge_u32 s11, 40\ns_cbranch_scc1 L_wend")
        a("s_mov_b64 exec, -1")
        a("L_final:")
        self.srd(52, 38, 1280)
        a("v_lshrrev_b32 v2, 2, v0\nv_mul_u32_u24 v2, 2560, v2\nv_add_u32 v2, v2, v10\nv_lshrrev_b32 v3, 1, v10\nv_lshl_add_u32 v3, v16, 1, v3")
        a(f"s_add_u32 s62, s69, {WS_OP}\ns_add_u32 s63, s62, 40960\ns_add_u32 s64, s62, 81920\ns_add_u32 s65, s62, 122880\ns_add_u32 s66, s69, {WS_X2}\ns_lshr_b32 s67, s69, 1")
        def ld():
            a("buffer_load_dwordx4 v[60:63], v10, s[44:47], s66 offen sc1")
            for u in range(3): a(f"buffer_load_dwordx4 v[{44+4*u}:{47+4*u}], v2, s[44:47], s{62+u} offen sc1")
            a("s_mov_b64 s[76:77], exec\ns_and_b32 exec_lo, exec_lo, 0xffffff\ns_mov_b32 exec_hi, 0")
            a("buffer_load_dwordx4 v[56:59], v2, s[44:47], s65 offen sc1\ns_mov_b64 exec, s[76:77]")
        for k in range(56, 60): a(f"v_and_b32 v{k}, s98, v18")
        self.poll(ld, lambda: self.chk_tag(range(44, 64), 64), o.tsleep, 36, pre=o.prec)
        self.stamp(14)
        self.sum4x4(44)
        for g in range(4): a(f"v_mov_b32_dpp v64, v{60+g} quad_perm:[0,1,2,3] row_mask:{hex(1<<g)} bank_mask:0xf")
        self.red4([44, 45, 46, 47]); self.ror(44, 4); self.ror(44, 8)
        a("v_fma_f32 v44, v44, v24, v64\nv_cvt_pk_bf16_f32 v44, v44, v44")
        a("s_and_b32 exec_lo, exec_lo, 0x000f000f\ns_and_b32 exec_hi, exec_hi, 0x000f000f")
        a("buffer_store_short v44, v3, s[52:55], s67 offen")
        a("s_cbranch_execz L_dry_ret")
        a("s_cmp_lg_u32 s11, 0\ns_cbranch_scc1 L_fin2")
        a("s_mov_b64 exec, 1\nv_mov_b32 v6, 0\nbuffer_store_dword v18, v6, s[44:47], 0 offen sc1")
        a("L_fin2:")
        self.stamp(15)
        self.dump_stamps()
        a("L_end:\ns_endpgm")
        a(footer(256, 100, 256))
        return a.text()

if __name__ == "__main__":
    ap = argparse.ArgumentParser()
    ap.add_argument("-o", default="k.s")
    for k, v in dict(depth=6, d0=2, stamps=0, dry=1, fdry=0, prio=3, sprio=3, masked=1, swait=0, fsleep=8, msleep=4, tsleep=0, usleep=2,
                     nopoll=0, b1early=1, nofront=0, nostore=0, norole=0, nohopld=0, t1=20, t2=40, t3=58, wtrig=0, dtrig=1, gpos=99, btrig=1, pre=4, prec=0, asleep=1, wx=0, prea=0, hx=0).items():
        ap.add_argument("--" + k, type=int, default=v)
    for k in ("nt", "wnt", "lnt"): ap.add_argument("--" + k, default="nt")
    o = ap.parse_args()
    for k in ("nt", "wnt", "lnt"):
        if getattr(o, k) == "pl": setattr(o, k, "")
    g = G(o); t = g.build()
    open(o.o, "w").write(t)
    print("nops inserted:", g.a.nops, "lines:", len(t.splitlines()))
```

```python
import sys, argparse
from asmlib import *

WS_EPOCH = 0x0
WS_Q2    = 0x20000
WS_O     = 0x40000
WS_ML    = 0x60000
WS_MR    = 0x67000
WS_X2    = 0x6A000
WS_Y     = 0x70000
WS_OP    = 0x7A000
WS_G1    = 0xA0000
WS_Z     = 0xC0000
WS_U     = 0x100000
WS_STAMP = 0x200000
L_FLAG = 0x20000
C_F1, C_F2, C_Q, C_K, C_P, C_MAX, C_T1, C_T2, C_T3, C_O, C_W, C_U, C_Z = [4*i for i in range(13)]
L_RED1 = 0x20100
L_RED2 = 0x20800
L_QBUF = 0x21000
L_MAXB = 0x21100
L_LSUM = 0x21110
L_PBUF = 0x21200
L_REDO = 0x21800
L_REDW = 0x22000
L_GU   = 0x22400
L_GZ   = 0x23400
L_GX2  = 0x23D00
LDS_BYTES = 0x24000
LOG2E = 0x3fb8aa3b
TAGADD = 0x61C88647

class G:
    def __init__(self, opt):
        self.o = opt
        self.a = Asm()
        self.n = 0
    def lab(self, p="L"):
        self.n += 1
        return f"{p}_{self.n}"
    def stamp(self, k):
        if not self.o.stamps: return
        a = self.a; sk = self.lab("st")
        a(f"s_cbranch_execz {sk}\ns_memrealtime s[96:97]\ns_waitcnt lgkmcnt(0)\nv_writelane_b32 v19, s96, {k}\n{sk}:")
    def note(self, k, sreg):
        if not self.o.stamps: return
        a = self.a; sk = self.lab("st")
        a(f"s_cbranch_execz {sk}\nv_writelane_b32 v19, {sreg}, {k}\n{sk}:")
    def stamp_init(self):
        if not self.o.stamps: return
        self.a("v_mov_b32 v19, 0\nv_writelane_b32 v19, s96, 0")
    def dump_stamps(self):
        if not self.o.stamps: return
        a = self.a
        a("s_mov_b64 exec, -1")
        a("s_lshl_b32 s60, s2, 3\ns_add_u32 s60, s60, s3\ns_lshl_b32 s60, s60, 8")
        a(f"s_add_u32 s60, s60, {WS_STAMP}\nv_lshlrev_b32 v1, 2, v0")
        if self.o.stamps == 2:
            self.srd(48, 40, 256)
            a("v_not_b32 v2, v19\nv_cmp_eq_u32 vcc, 0, v0\nv_cndmask_b32 v19, v19, v2, vcc")
            a("s_cmp_ge_u32 s3, 4\ns_cselect_b32 s60, 64, 0\ns_mov_b32 exec_lo, 0xffff\ns_mov_b32 exec_hi, 0")
            a("buffer_atomic_umax v19, v1, s[48:51], s60 offen")
        else:
            a(f"buffer_store_dword v19, v1, s[44:47], s60 offen")
    def waitvm(self, n):
        a = self.a; sk = self.lab("wv")
        a(f"s_cbranch_execz {sk}\ns_waitcnt vmcnt({n})\n{sk}:")
    def barrier(self):
        a = self.a; sk = self.lab("bar")
        a(f"s_cbranch_execz {sk}\ns_barrier\n{sk}:")
    def srd(self, q, ptr, size, off=0):
        a = self.a
        if off: a(f"s_add_u32 s{q}, s{ptr}, {off}\ns_addc_u32 s{q+1}, s{ptr+1}, 0")
        else: a(f"s_mov_b32 s{q}, s{ptr}\ns_mov_b32 s{q+1}, s{ptr+1}")
        a(f"s_mov_b32 s{q+2}, {size}\ns_mov_b32 s{q+3}, 0x20000")
    def lo(self, d, s): self.a(f"v_lshlrev_b32 v{d}, 16, v{s}")
    def hi(self, d, s): self.a(f"v_and_b32 v{d}, 0xffff0000, v{s}")
    def round2(self, x, y, t):
        self.a(f"v_cvt_pk_bf16_f32 v{t}, v{x}, v{y}"); self.lo(x, t); self.hi(y, t)
    def allred(self, v, t, op="add", bits=(0, 1, 2, 3, 4, 5)):
        a = self.a
        d = {0: "quad_perm:[1,0,3,2]", 1: "quad_perm:[2,3,0,1]", 2: "row_half_mirror", 3: "row_mirror"}
        for b in bits:
            if b < 4: a(f"v_{op}_f32_dpp v{v}, v{v}, v{v} {d[b]} row_mask:0xf bank_mask:0xf")
            else:
                a(f"v_mov_b32 v{t}, v{v}\nv_permlane{16 if b == 4 else 32}_swap_b32 v{t}, v{v}\nv_{op}_f32 v{v}, v{v}, v{t}")
    def ror(self, v, n): self.a(f"v_add_f32_dpp v{v}, v{v}, v{v} row_ror:{n} row_mask:0xf bank_mask:0xf")
    def red8(self, acc):
        a = self.a
        for k in range(4): a(f"v_permlane32_swap_b32 v{acc[k]}, v{acc[k+4]}")
        for k in range(4): a(f"v_add_f32 v{acc[k]}, v{acc[k]}, v{acc[k+4]}")
        for k in range(2): a(f"v_permlane16_swap_b32 v{acc[k]}, v{acc[k+2]}")
        for k in range(2): a(f"v_add_f32 v{acc[k]}, v{acc[k]}, v{acc[k+2]}")
    def red4(self, v):
        a = self.a
        a(f"v_permlane32_swap_b32 v{v[0]}, v{v[2]}\nv_permlane32_swap_b32 v{v[1]}, v{v[3]}")
        a(f"v_add_f32 v{v[0]}, v{v[0]}, v{v[2]}\nv_add_f32 v{v[1]}, v{v[1]}, v{v[3]}")
        a(f"v_permlane16_swap_b32 v{v[0]}, v{v[1]}\nv_add_f32 v{v[0]}, v{v[0]}, v{v[1]}")
    def permpair(self, A, B, T):
        a = self.a
        for k in range(len(A)):
            a(f"v_perm_b32 v{T[k]}, v{B[k]}, v{A[k]}, s12")
            a(f"v_perm_b32 v{B[k]}, v{B[k]}, v{A[k]}, s13")
        return list(T), list(B), list(A)
    def silu2(self, src, dst, t):
        a = self.a
        x0, x1, e0, e1 = t
        self.lo(x0, src); self.hi(x1, src)
        a(f"v_mul_f32 v{e0}, 0xbfb8aa3b, v{x0}\nv_mul_f32 v{e1}, 0xbfb8aa3b, v{x1}")
        a(f"v_exp_f32 v{e0}, v{e0}\nv_exp_f32 v{e1}, v{e1}")
        a(f"v_add_f32 v{e0}, 1.0, v{e0}\nv_add_f32 v{e1}, 1.0, v{e1}")
        a(f"v_rcp_f32 v{e0}, v{e0}\nv_rcp_f32 v{e1}, v{e1}")
        a(f"v_mul_f32 v{x0}, v{x0}, v{e0}\nv_mul_f32 v{x1}, v{x1}, v{e1}")
        a(f"v_cvt_pk_bf16_f32 v{dst}, v{x0}, v{x1}")
    def cnt_add(self, cnt, rtn=None):
        a = self.a
        a("s_mov_b64 s[14:15], exec\ns_and_b32 exec_lo, exec_lo, 1\ns_mov_b32 exec_hi, 0")
        if rtn is None: a(f"ds_add_u32 v14, v15 offset:{cnt}")
        else: a(f"ds_add_rtn_u32 v{rtn}, v14, v15 offset:{cnt}")
        a("s_mov_b64 exec, s[14:15]")
    def last_arriver(self, cnt, skip, t):
        a = self.a; go = self.lab("la")
        a("s_waitcnt lgkmcnt(0)")
        self.cnt_add(cnt, t)
        a(f"s_waitcnt lgkmcnt(0)\ns_cbranch_execz {go}\nv_readfirstlane_b32 s60, v{t}\ns_cmp_lg_u32 s60, 3\ns_cbranch_scc1 {skip}\n{go}:")
    def spin_lds(self, cnts, t):
        a = self.a; top = self.lab("sp"); out = self.lab("spo")
        a(f"s_mov_b32 s61, 0\n{top}:")
        for i, c in enumerate(cnts): a(f"ds_read_b32 v{t+i}, v14 offset:{c}")
        a(f"s_waitcnt lgkmcnt(0)\ns_cbranch_execz {out}")
        for i in range(1, len(cnts)): a(f"v_add_u32 v{t}, v{t}, v{t+i}")
        a(f"v_readfirstlane_b32 s60, v{t}\ns_cmp_ge_u32 s60, {4*len(cnts)}\ns_cbranch_scc1 {out}")
        a(f"s_sleep 1\ns_add_u32 s61, s61, 1\ns_cmp_lt_u32 s61, 0x40000\ns_cbranch_scc1 {top}\n{out}:")
    def poll(self, loads, check, sleep=0, nk=None, pre=0, rk=None):
        a = self.a; top = self.lab("pl"); out = self.lab("plo"); full = self.lab("plf"); nx = self.lab("pln")
        a(f"s_mov_b32 s61, 0\ns_mov_b64 s[14:15], exec")
        if pre: a("s_and_b32 exec_lo, exec_lo, 1\ns_mov_b32 exec_hi, 0\ns_mov_b32 s99, 1")
        a(f"{top}:")
        if not self.o.nohopld: loads()
        self.waitvm(0)
        if rk is not None and self.o.stamps:
            sk = self.lab("rs")
            a(f"s_cbranch_execz {sk}\ns_memrealtime s[96:97]\ns_min_u32 s60, s61, 7\ns_add_u32 s60, s60, {rk}\ns_mov_b32 m0, s60\ns_waitcnt lgkmcnt(0)\nv_writelane_b32 v19, s96, m0\n{sk}:")
        check()
        a(f"s_cbranch_vccz {full if pre else out}")
        if self.o.nopoll: a(f"s_branch {out}")
        if self.o.masked: a("s_mov_b64 exec, vcc")
        if pre:
            a(f"s_cmp_eq_u32 s99, 0\ns_cbranch_scc1 {nx}\ns_sleep {pre}\n{nx}:")
        if sleep: a(f"s_sleep {sleep}")
        a(f"s_add_u32 s61, s61, 1\ns_cmp_lt_u32 s61, 0x8000\ns_cbranch_scc1 {top}")
        if pre:
            a(f"s_branch {out}\n{full}:\ns_cmp_eq_u32 s99, 0\ns_cbranch_scc1 {out}\ns_mov_b32 s99, 0\ns_andn2_b64 exec, s[14:15], exec\ns_cbranch_execnz {top}")
        a(f"{out}:\ns_mov_b64 exec, s[14:15]")
        if nk is not None: self.note(nk, "s61")
    def swait(self, loads, regs, ref, eq):
        if not self.o.swait: return
        a = self.a; top = self.lab("sw"); out = self.lab("swo"); again = self.lab("swa")
        a(f"s_cbranch_execz {out}\ns_mov_b32 s61, 0\n{top}:")
        loads()
        a("s_waitcnt lgkmcnt(0)")
        for r in regs:
            a(f"s_cmp_{'lg' if eq else 'eq'}_u32 s{r}, {ref}\ns_cbranch_scc1 {again}")
        a(f"s_branch {out}\n{again}:")
        a(f"s_add_u32 s61, s61, 1\ns_cmp_lt_u32 s61, 0x8000\ns_cbranch_scc1 {top}\n{out}:")
    def chk_sent(self, regs, t):
        a = self.a
        regs = list(regs)
        if len(regs) == 1:
            a(f"v_cmp_eq_u32 vcc, -1, v{regs[0]}"); return
        if len(regs) % 2 == 0:
            a(f"v_max_u32 v{t}, v{regs[0]}, v{regs[1]}"); rest = regs[2:]
        else:
            a(f"v_max3_u32 v{t}, v{regs[0]}, v{regs[1]}, v{regs[2]}"); rest = regs[3:]
        for i in range(0, len(rest), 2): a(f"v_max3_u32 v{t}, v{t}, v{rest[i]}, v{rest[i+1]}")
        a(f"v_cmp_eq_u32 vcc, -1, v{t}")
    def tag(self, regs, rnd=False):
        for r in regs:
            if rnd: self.a(f"v_add_u32 v{r}, 0x80, v{r}")
            self.a(f"v_bfi_b32 v{r}, s98, v18, v{r}")
    def chk_tag(self, regs, t):
        a = self.a; regs = list(regs)
        a(f"v_xor_b32 v{t}, v{regs[0]}, v18")
        for r in regs[1:]: a(f"v_bitop3_b32 v{t}, v{r}, v18, v{t} bitop3:0xbe")
        a(f"v_and_b32 v{t}, s98, v{t}\nv_cmp_ne_u32 vcc, 0, v{t}")
    def sum4x4(self, base):
        a = self.a; b = base
        for h in (0, 2):
            a(f"v_pk_add_f32 v[{b+h}:{b+h+1}], v[{b+h}:{b+h+1}], v[{b+4+h}:{b+5+h}]")
            a(f"v_pk_add_f32 v[{b+8+h}:{b+9+h}], v[{b+8+h}:{b+9+h}], v[{b+12+h}:{b+13+h}]")
        for h in (0, 2):
            a(f"v_pk_add_f32 v[{b+h}:{b+h+1}], v[{b+h}:{b+h+1}], v[{b+8+h}:{b+9+h}]")
    def endwave(self):
        a = self.a
        a("s_cbranch_execz L_dry_ret")
        self.dump_stamps()
        a("s_endpgm")

    def build(self):
        a = self.a; o = self.o; D = o.depth; NT = o.nt; WNT = o.wnt; LNT = o.lnt
        a(header(256, 512, LDS_BYTES))
        a("s_cmp_ge_u32 s2, 256\ns_cbranch_scc1 L_end")
        a("s_load_dwordx16 s[16:31], s[0:1], 0\ns_load_dwordx8 s[32:39], s[0:1], 64\ns_load_dwordx4 s[40:43], s[0:1], 96")
        if o.stamps:
            a("s_memrealtime s[96:97]")
        a("v_lshrrev_b32 v1, 6, v0\nv_and_b32 v0, 63, v0\nv_readfirstlane_b32 s3, v1")
        a("s_and_b32 s4, s2, 7\ns_lshr_b32 s5, s2, 3\ns_lshr_b32 s6, s5, 3")
        if o.hx: a(f"s_add_u32 s60, s4, {o.hx}\ns_and_b32 s60, s60, 7\ns_lshl_b32 s60, s60, 2")
        else: a("s_lshl_b32 s60, s4, 2")
        a("s_add_u32 s6, s6, s60\ns_and_b32 s7, s5, 7")
        a("s_mov_b32 s12, 0x05040100\ns_mov_b32 s13, 0x07060302")
        a(f"v_mov_b32 v14, {L_FLAG}\nv_mov_b32 v15, 1")
        a("s_cmp_ge_u32 s3, 4\ns_cbranch_scc1 L_aux")
        a("v_lshrrev_b32 v4, 4, v0\nv_and_b32 v5, 15, v0\ns_lshl_b32 s60, s3, 2\nv_add_u32 v6, s60, v4")
        a("v_xor_b32 v2, v5, v6\nv_lshlrev_b32 v2, 4, v2\nv_lshl_add_u32 v2, v4, 8, v2\nv_lshlrev_b32 v3, 4, v0")
        a("s_lshl_b32 s62, s6, 20\ns_lshl_b32 s60, s7, 17\ns_add_u32 s62, s62, s60\ns_lshl_b32 s60, s3, 10\ns_add_u32 s62, s62, s60\ns_mov_b32 m0, s60\ns_mov_b32 s63, s62")
        a("s_waitcnt lgkmcnt(0)")
        self.stamp_init()
        self.srd(48, 18, 0x2000000)
        a("s_mov_b32 s61, 0")
        if o.d0 > 0:
            a("L_k1:")
            a(f"buffer_load_dwordx4 v2, s[48:51], s62 offen {NT} lds")
            a(f"s_addk_i32 s62, 0x1000\ns_addk_i32 m0, 0x1000\ns_add_u32 s61, s61, 1\ns_cmp_lt_u32 s61, {o.d0}\ns_cbranch_scc1 L_k1")
        a("s_barrier")
        N = 64
        VB = 128
        Vr = [[VB + 4 * t + k for k in range(4)] for t in range(32)]
        trig = sorted([(o.t1, C_T1), (o.t2, C_T2), (o.t3, C_T3)])
        Tfree = [32, 33, 34, 35]; pairs = {}
        cur = o.d0; j = 0
        first = True
        for n, c in [(n, c) for n, c in trig if n <= 32] + [(32, None)]:
            if n > cur:
                lb = f"L_k2_{j}"; j += 1
                a(f"{lb}:\ns_waitcnt vmcnt({D-1})")
                a(f"buffer_load_dwordx4 v2, s[48:51], s62 offen {NT} lds")
                a(f"s_addk_i32 s62, 0x1000\ns_addk_i32 m0, 0x1000\ns_add_u32 s61, s61, 1\ns_cmp_lt_u32 s61, {n}\ns_cbranch_scc1 {lb}")
                cur = n
            if first:
                first = False
                a("s_load_dword s9, s[42:43], 0")
                self.srd(52, 20, 0x2000000); self.srd(44, 42, 0x10000000)
                a("s_mov_b32 s8, s3\ns_mov_b32 s10, 0\ns_mov_b32 s11, 0\ns_mov_b32 s98, 0xff")
                for r in range(7, 14): a(f"v_mov_b32 v{r}, 0")
            if c is not None: self.cnt_add(c)
        self.stamp(1)
        if o.stamps:
            a("s_getreg_b32 s60, hwreg(HW_REG_XCC_ID)\ns_add_u32 s60, s60, 1"); self.note(50, "s60")
        def doperm(u):
            nonlocal Tfree
            lo, hi, Tfree = self.permpair(Vr[2*u], Vr[2*u+1], Tfree)
            pairs[u] = (lo, hi)
        GW = list(range(96, 106)); UW = list(range(106, 116)); XF = list(range(20, 25))
        def gpulls():
            self.srd(56, 28, 2211840); self.srd(64, 30, 2211840)
            a("s_mul_i32 s68, s4, 80\ns_mul_i32 s60, s8, 20\ns_add_u32 s68, s68, s60")
            a("s_mul_i32 s60, s68, 3456\ns_lshl_b32 s61, s5, 7\ns_add_u32 s60, s60, s61\ns_cmp_ge_u32 s5, 27\ns_cselect_b32 s60, 0x40000000, s60")
            a("v_lshrrev_b32 v13, 5, v0\nv_mul_u32_u24 v13, 34560, v13\nv_and_b32 v1, 31, v0\nv_lshl_add_u32 v13, v1, 2, v13")
            for k in range(10):
                a(f"buffer_load_dword v{GW[k]}, v13, s[56:59], s60 offen offset:{3456*(k%2)} {LNT}\nbuffer_load_dword v{UW[k]}, v13, s[64:67], s60 offen offset:{3456*(k%2)} {LNT}")
                if k % 2 == 1 and k < 9: a("s_addk_i32 s60, 6912")
        after = lambda t: (31 - t) + (20 if t < o.gpos <= 32 else 0)
        for t in range(33):
            if t == o.gpos: gpulls()
            if t == 32: break
            n = 32 + t
            extra = 20 if (o.gpos <= t < o.gpos + D) else 0
            a(f"s_waitcnt vmcnt({D-1+extra})")
            if n - D == 31:
                self.cnt_add(C_K); self.stamp(2)
            for tn, c in trig:
                if tn == n and tn > 32: self.cnt_add(c)
            a(f"buffer_load_dwordx4 v[{Vr[t][0]}:{Vr[t][3]}], v3, s[52:55], s63 offen {NT}")
            if t < 31: a("s_addk_i32 s63, 0x1000")
            for u in range(16):
                if u not in pairs and 32 + 2*u + 1 <= n - D: doperm(u)
        for tn, c in trig:
            if tn >= N: self.cnt_add(c)
        if o.sprio: a(f"s_setprio {o.sprio}")
        a(f"s_waitcnt lgkmcnt(0)\ns_add_u32 s9, s9, {TAGADD}\nv_mov_b32 v18, s9")
        self.stamp(3)
        a(f"v_lshlrev_b32 v7, 6, v6\nv_add_u32 v7, {L_PBUF}, v7")
        a(f"v_lshlrev_b32 v8, 5, v5\nv_lshl_add_u32 v8, v4, 3, v8\ns_lshl_b32 s60, s3, 9\ns_add_u32 s60, s60, {L_REDO}\nv_add_u32 v8, s60, v8")
        a(f"v_lshlrev_b32 v9, 4, v0\nv_add_u32 v10, {L_REDO}, v9\nv_mov_b32 v11, {L_LSUM}\nv_mov_b32 v12, 0")
        a("L_pv:")
        a(f"s_lshl_b32 s60, s6, 3\ns_add_u32 s60, s60, s7\ns_lshl_b32 s63, s60, 4\ns_add_u32 s63, s63, {WS_ML}\ns_lshl_b32 s60, s60, 9\ns_add_u32 s62, s60, {WS_O}")
        ACC = list(range(36, 44)); P = list(range(48, 64))
        for k in ACC: a(f"v_mov_b32 v{k}, 0")
        self.spin_lds([C_P], 44)
        self.stamp(4)
        for q in range(4): a(f"ds_read_b128 v[{48+4*q}:{51+4*q}], v7 offset:{16*q}")
        a("s_waitcnt lgkmcnt(0)")
        for u in range(16):
            if u not in pairs:
                self.waitvm(after(2*u+1))
                doperm(u)
            lo, hi = pairs[u]
            for k in range(4):
                a(f"v_dot2c_f32_bf16 v{ACC[2*k]}, v{lo[k]}, v{P[u]}")
                a(f"v_dot2c_f32_bf16 v{ACC[2*k+1]}, v{hi[k]}, v{P[u]}")
        self.stamp(5)
        self.red8(ACC)
        a(f"ds_write_b64 v8, v[{ACC[0]}:{ACC[1]}]")
        self.last_arriver(C_O, "L_send", 44)
        a("s_mov_b64 s[76:77], exec\ns_mov_b32 exec_hi, 0")
        for q in range(4): a(f"ds_read_b128 v[{48+4*q}:{51+4*q}], v10 offset:{512*q}")
        a("ds_read_b128 v[64:67], v11\nds_read_b32 v68, v11 offset:16")
        a("s_waitcnt lgkmcnt(2)")
        self.sum4x4(48)
        self.tag(range(48, 52))
        a("buffer_store_dwordx4 v[48:51], v9, s[44:47], s62 offen sc1")
        a("s_and_b32 exec_lo, exec_lo, 1\ns_waitcnt lgkmcnt(0)")
        a("v_add_f32 v64, v64, v65\nv_add_f32 v66, v66, v67\nv_add_f32 v69, v64, v66")
        self.tag([68, 69])
        a("v_mov_b32 v70, v68\nv_mov_b32 v71, v69")
        a("buffer_store_dwordx4 v[68:71], v12, s[44:47], s63 offen sc1")
        a("s_mov_b64 exec, s[76:77]")
        self.stamp(6)
        a("L_send:")
        a("s_cbranch_execz L_dry_ret")
        a("s_cmp_ge_u32 s5, 27\ns_cbranch_scc1 L_wend")
        if o.gpos > 32: gpulls()
        a("L_G2:")
        a("s_mul_i32 s64, s4, 80\ns_mul_i32 s60, s8, 20\ns_add_u32 s64, s64, s60")
        a("v_lshrrev_b32 v4, 5, v0\nv_mul_u32_u24 v3, 10, v4\nv_and_b32 v6, 1, v0\nv_mul_u32_u24 v7, 5, v6\nv_add_u32 v3, v3, v7")
        a("v_lshlrev_b32 v7, 1, v3\nv_lshlrev_b32 v3, 2, v3\ns_lshl_b32 s60, s64, 1")
        for k in range(5): a(f"v_mov_b32 v{XF[k]}, 0")
        self.srd(56, 16, 1280)
        for k in range(5): a(f"buffer_load_short_d16_hi v{XF[k]}, v7, s[56:59], s60 offen offset:{2*k}")
        a(f"s_lshl_b32 s65, s64, 2\ns_add_u32 s62, s65, {WS_MR}\ns_add_u32 s63, s62, 2560\ns_add_u32 s66, s62, 5120")
        GA = list(range(26, 31)); SB = list(range(44, 49)); TT = list(range(32, 37))
        def ld5(b, so, vo):
            a(f"buffer_load_dwordx4 v[{b}:{b+3}], v{vo}, s[44:47], s{so} offen sc1\nbuffer_load_dword v{b+4}, v{vo}, s[44:47], s{so} offen offset:16 sc1")
        def ld():
            ld5(GA[0], 62, 3); ld5(SB[0], 63, 3); ld5(TT[0], 66, 3)
        a("v_mov_b32 v8, s12\nv_mov_b32 v9, 0x01000504\nv_cmp_eq_u32 vcc, 1, v6\nv_cndmask_b32 v8, v8, v9, vcc")
        a(f"s_lshl_b32 s60, s8, 9\ns_add_u32 s60, s60, {L_GU}\nv_lshlrev_b32 v9, 3, v0\nv_add_u32 v10, s60, v9")
        a(f"s_mul_i32 s60, s8, 528\ns_add_u32 s60, s60, {L_GZ}\nv_add_u32 v9, s60, v9")
        a(f"v_lshlrev_b32 v11, 2, v4\nv_lshl_add_u32 v11, v6, 3, v11\ns_add_u32 s60, s60, 512\nv_add_u32 v11, s60, v11")
        a(f"s_mul_i32 s60, s8, 80\ns_add_u32 s60, s60, {L_GX2}\nv_add_u32 v12, s60, v3")
        a(f"v_bfe_u32 v13, v0, 1, 4\nv_mul_u32_u24 v13, 2560, v13\nv_add_u32 v13, v13, v3")
        self.poll(ld, lambda: self.chk_tag(GA + SB + TT, 50), o.msleep)
        self.stamp(7)
        Gp = []; Up = []; Tf = [116]
        for W, Lp in ((GW, Gp), (UW, Up)):
            for m in range(5):
                lo, hi, Tf = self.permpair([W[m]], [W[5+m]], Tf); Lp.append((lo[0], hi[0]))
        for k in range(5):
            self.hi(GA[k], GA[k]); self.hi(TT[k], TT[k])
            a(f"v_add_f32 v{TT[k]}, 1.0, v{TT[k]}")
        IN = list(range(38, 43))
        def pack5(src, keep=None):
            for k in range(5): a(f"v_cvt_pk_bf16_f32 v{52+k}, v{src[k]}, v{src[k]}")
            for k in range(5): a(f"v_mov_b32_dpp v{58+k}, v{52+k} quad_perm:[1,0,3,2] row_mask:0xf bank_mask:0xf")
            if keep:
                for k in range(5): self.lo(keep[k], 52 + k)
            for k in range(5): a(f"v_perm_b32 v{IN[k]}, v{58+k}, v{52+k}, v8")
        def gpass():
            for m in range(5):
                for i, (Lp, b) in enumerate(((Gp, 64), (Up, 66))):
                    for h in range(2):
                        if m == 0: a(f"v_dot2_f32_bf16 v{b+h}, v{Lp[m][h]}, v{IN[m]}, 0")
                        else: a(f"v_dot2c_f32_bf16 v{b+h}, v{Lp[m][h]}, v{IN[m]}")
        def gred():
            a("v_permlane32_swap_b32 v64, v66\nv_permlane32_swap_b32 v65, v67\nv_pk_add_f32 v[64:65], v[64:65], v[66:67]")
        pack5(TT, keep=TT); gpass(); gred()
        a("ds_write_b64 v10, v[64:65]")
        for k in range(5): self.hi(SB[k], SB[k])
        pack5(SB); gpass(); gred()
        a("ds_write_b64 v10, v[64:65] offset:2048")
        a(f"s_mul_i32 s67, s4, 27\ns_add_u32 s67, s67, s5")
        self.last_arriver(C_U, "L_Gtail", 50)
        a(f"v_lshlrev_b32 v2, 11, v4\nv_and_b32 v5, 31, v0\nv_lshl_add_u32 v2, v5, 4, v2\nv_add_u32 v2, {L_GU}, v2\nv_lshlrev_b32 v5, 4, v0")
        for q in range(4): a(f"ds_read_b128 v[{68+4*q}:{71+4*q}], v2 offset:{512*q}")
        a(f"s_lshl_b32 s60, s67, 10\ns_add_u32 s60, s60, {WS_U}\ns_waitcnt lgkmcnt(0)")
        self.sum4x4(68); self.tag(range(68, 72))
        a("buffer_store_dwordx4 v[68:71], v5, s[44:47], s60 offen sc1")
        a("L_Gtail:")
        self.stamp(8)
        a(f"s_add_u32 s62, s65, {WS_Y}\ns_mul_i32 s63, s67, 640\ns_add_u32 s63, s63, {WS_Z}")
        a(f"v_lshlrev_b32 v5, 4, v0\nv_add_u32 v2, {L_GZ}, v5")
        YY = list(range(44, 49))
        if o.btrig:
            a("s_cmp_ge_u32 s5, 20\ns_cbranch_scc1 L_Gb")
            self.spin_lds([C_W], 50)
            a("L_Gb:")
        self.poll(lambda: ld5(YY[0], 62, 13), lambda: self.chk_tag(YY, 50), o.tsleep, 35, pre=o.pre)
        self.stamp(9)
        for k in range(5): self.allred(YY[k], 50, bits=(1,))
        for n in (4, 8):
            for k in range(5): self.ror(YY[k], n)
        for k in range(5): a(f"v_mov_b32 v{52+k}, v{YY[k]}")
        for k in range(5): a(f"v_permlane16_swap_b32 v{52+k}, v{YY[k]}")
        for k in range(5): a(f"v_add_f32 v{YY[k]}, v{YY[k]}, v{52+k}")
        for k in range(5): a(f"v_fma_f32 v{YY[k]}, v{YY[k]}, v{GA[k]}, v{XF[k]}")
        ZZ = list(range(70, 75))
        for k in range(5): a(f"v_mul_f32 v{ZZ[k]}, v{YY[k]}, v{TT[k]}")
        pack5(ZZ); gpass()
        a("v_add_f32 v76, v44, v45\nv_mul_f32 v77, v44, v44\nv_add_f32 v78, v46, v47\nv_fmac_f32 v77, v45, v45\nv_add_f32 v76, v76, v48\nv_fmac_f32 v77, v46, v46\nv_add_f32 v76, v76, v78\nv_fmac_f32 v77, v47, v47\nv_fmac_f32 v77, v48, v48")
        gred()
        a("ds_write_b64 v9, v[64:65]")
        a("v_permlane32_swap_b32 v76, v77\nv_add_f32 v76, v76, v77")
        self.allred(76, 50, bits=(0,))
        a("ds_write_b32 v11, v76")
        for k in range(5): a(f"ds_write_b32 v12, v{YY[k]} offset:{4*k}")
        self.last_arriver(C_Z, "L_wend", 50)
        a("s_and_b32 exec_hi, exec_hi, 1")
        for q in range(4): a(f"ds_read_b128 v[{68+4*q}:{71+4*q}], v2 offset:{528*q}")
        a("s_waitcnt lgkmcnt(0)")
        self.sum4x4(68); self.tag(range(68, 72))
        a("buffer_store_dwordx4 v[68:71], v5, s[44:47], s63 offen sc1")
        self.stamp(10)
        a("s_cbranch_execz L_Gx2\ns_cmp_lg_u32 s5, 0\ns_cbranch_scc1 L_wend\nL_Gx2:")
        a(f"s_and_b32 exec_lo, exec_lo, 0xfffff\ns_mov_b32 exec_hi, 0\nv_add_u32 v2, {L_GX2}, v5\nds_read_b128 v[52:55], v2")
        a(f"s_mul_i32 s60, s4, 320\ns_add_u32 s60, s60, {WS_X2}\ns_waitcnt lgkmcnt(0)")
        self.tag(range(52, 56))
        a("buffer_store_dwordx4 v[52:55], v5, s[44:47], s60 offen sc1")
        a("L_wend:")
        self.endwave()

        a("L_aux:")
        if o.prio: a(f"s_setprio {o.prio}")
        a("s_sub_u32 s8, s3, 4")
        a("v_lshlrev_b32 v6, 2, v0\ns_cmp_lg_u32 s8, 0\ns_cbranch_scc1 L_noinit")
        a(f"v_add_u32 v16, v14, v6\nv_mov_b32 v17, 0\nds_write_b32 v16, v17\nL_noinit:")
        CR = list(range(160, 165))
        WM = [[96 + 4*k + q for q in range(4)] for k in range(5)]
        XR = list(range(166, 171)); XP = 171
        WQ = list(range(136, 156))
        a("s_mul_i32 s67, s2, 205\ns_lshr_b32 s67, s67, 12\ns_mul_i32 s60, s67, 20\ns_sub_u32 s66, s2, s60")
        a("s_cmp_lt_u32 s2, 80\ns_cbranch_scc1 L_unit")
        a("s_sub_u32 s61, s2, 80\ns_mul_i32 s67, s61, 205\ns_lshr_b32 s67, s67, 13\ns_mul_i32 s60, s67, 40\ns_sub_u32 s66, s61, s60\ns_add_u32 s66, s66, 20")
        a("L_unit:")
        a("s_mul_i32 s68, s67, 160\ns_mul_i32 s60, s8, 40\ns_add_u32 s68, s68, s60")
        a("s_mul_i32 s69, s68, 7680\ns_lshl_b32 s60, s66, 7\ns_add_u32 s69, s69, s60\ns_lshl_b32 s68, s68, 1")
        a("v_lshrrev_b32 v3, 3, v0\nv_mul_u32_u24 v5, 7680, v3\nv_and_b32 v4, 7, v0\nv_lshl_add_u32 v5, v4, 4, v5\nv_lshlrev_b32 v3, 1, v3")
        a("s_mul_i32 s70, s7, 80\ns_mul_i32 s61, s8, 20\ns_add_u32 s70, s70, s61")
        a("s_lshl_b32 s71, s70, 13\ns_lshl_b32 s61, s6, 8\ns_add_u32 s71, s71, s61")
        a("s_waitcnt lgkmcnt(0)")
        self.stamp_init()
        a("s_load_dword s9, s[42:43], 0")
        self.srd(44, 42, 0x10000000)
        a("s_cmp_ge_u32 s2, 240\ns_cbranch_scc1 L_noprod")
        self.srd(52, 36, 4915200); self.srd(48, 34, 1280)
        for k in range(5):
            if not o.nofront: a(f"buffer_load_dwordx4 v[{WM[k][0]}:{WM[k][3]}], v5, s[52:55], s69 offen {WNT}")
            if k < 4: a("s_add_u32 s69, s69, 61440")
        for k in range(5): a(f"buffer_load_ushort v{CR[k]}, v3, s[48:51], s68 offen offset:{16*k}")
        a("L_noprod:")
        if o.b1early: a("s_barrier")
        self.srd(52, 22, 5242880); self.srd(48, 16, 1280)
        for k in range(20):
            if not o.nofront: a(f"buffer_load_dword v{WQ[k]}, v6, s[52:55], s71 offen {WNT}")
            if k < 19: a("s_addk_i32 s71, 0x2000")
        a("v_lshrrev_b32 v16, 4, v0\nv_and_b32 v17, 15, v0\nv_min_u32 v17, 9, v17")
        a("v_mul_u32_u24 v4, 20, v0\ns_lshl_b32 s61, s70, 1\nv_lshlrev_b32 v5, 2, v17")
        a(f"buffer_load_dwordx4 v[{XR[0]}:{XR[3]}], v4, s[48:51], 0 offen\nbuffer_load_dword v{XR[4]}, v4, s[48:51], 0 offen offset:16")
        a(f"buffer_load_dword v{XP}, v5, s[48:51], s61 offen")
        a("s_waitcnt lgkmcnt(0)")
        if not o.b1early: a("s_barrier")
        self.stamp(1)
        a(f"s_add_u32 s9, s9, {TAGADD}\ns_mov_b32 s98, 0xff\nv_mov_b32 v18, s9")
        for r in range(7, 14): a(f"v_mov_b32 v{r}, 0")
        a("s_mov_b32 s10, 1\ns_mov_b32 s11, s5\ns_cmp_lt_u32 s5, 20\ns_cbranch_scc1 L_roled")
        a("s_mov_b32 s10, 3\ns_sub_u32 s11, s5, 20\ns_lshl_b32 s11, s11, 3\ns_add_u32 s11, s11, s4\ns_cmp_lt_u32 s5, 25\ns_cbranch_scc1 L_roled")
        a("s_mov_b32 s10, 2\ns_sub_u32 s11, 31, s5\ns_lshl_b32 s11, s11, 3\ns_add_u32 s11, s11, s4\ns_cmp_lt_u32 s11, 54\ns_cbranch_scc1 L_roled\ns_mov_b32 s10, 0")
        a("L_roled:")
        if o.fdry:
            a("s_mov_b64 exec, 0\ns_branch L_front")
        a("L_fdry_ret:\ns_mov_b64 exec, -1")
        self.stamp(2)
        a("L_front:")
        a("s_cmp_ge_u32 s2, 240\ns_cbranch_scc1 L_ln1")
        self.waitvm(23)
        self.stamp(20)
        for k in range(5):
            x, e = CR[k], 44 + k
            a(f"v_lshlrev_b32 v{x}, 16, v{x}\nv_mul_f32 v{e}, 0xbfb8aa3b, v{x}\nv_exp_f32 v{e}, v{e}")
        for k in range(5): a(f"v_add_f32 v{44+k}, 1.0, v{44+k}\nv_rcp_f32 v{44+k}, v{44+k}")
        for k in range(5): a(f"v_mul_f32 v{44+k}, v{CR[k]}, v{44+k}")
        a("v_cvt_pk_bf16_f32 v36, v44, v45\nv_cvt_pk_bf16_f32 v37, v46, v47\nv_cvt_pk_bf16_f32 v38, v48, 0")
        ACC = list(range(48, 56))
        for k in ACC: a(f"v_mov_b32 v{k}, 0")
        Tf = [44, 45, 46, 47]
        for m in range(2):
            lo, hi, Tf = self.permpair(WM[2*m], WM[2*m+1], Tf)
            for k in range(4):
                a(f"v_dot2c_f32_bf16 v{ACC[2*k]}, v{lo[k]}, v{36+m}\nv_dot2c_f32_bf16 v{ACC[2*k+1]}, v{hi[k]}, v{36+m}")
        for k in range(4):
            a(f"v_and_b32 v{Tf[k]}, 0xffff, v{WM[4][k]}\nv_lshrrev_b32 v{WM[4][k]}, 16, v{WM[4][k]}")
            a(f"v_dot2c_f32_bf16 v{ACC[2*k]}, v{Tf[k]}, v38\nv_dot2c_f32_bf16 v{ACC[2*k+1]}, v{WM[4][k]}, v38")
        self.red8(ACC); self.ror(48, 8); self.ror(49, 8)
        a(f"s_lshl_b32 s60, s8, 8\ns_add_u32 s60, s60, {L_RED1}\nv_and_b32 v3, 7, v0\nv_lshlrev_b32 v2, 5, v3\nv_lshl_add_u32 v2, v16, 3, v2\nv_add_u32 v2, s60, v2")
        a("ds_write_b64 v2, v[48:49]")
        self.last_arriver(C_F1, "L_ln1", 44)
        a(f"v_lshlrev_b32 v3, 3, v0\nv_add_u32 v3, {L_RED1}, v3\nv_lshlrev_b32 v2, 4, v0\ns_mov_b64 s[14:15], exec\ns_mov_b32 exec_hi, 0")
        for q in range(4): a(f"ds_read_b64 v[{44+2*q}:{45+2*q}], v3 offset:{256*q}")
        a("s_mul_i32 s67, s2, 205\ns_lshr_b32 s67, s67, 12\ns_mul_i32 s60, s67, 20\ns_sub_u32 s66, s2, s60")
        a("s_cmp_lt_u32 s2, 80\ns_cbranch_scc1 L_unit2")
        a("s_sub_u32 s61, s2, 80\ns_mul_i32 s67, s61, 205\ns_lshr_b32 s67, s67, 13\ns_mul_i32 s60, s67, 40\ns_sub_u32 s66, s61, s60\ns_add_u32 s66, s66, 20")
        a("L_unit2:")
        a(f"s_mul_i32 s60, s67, 30720\ns_lshl_b32 s61, s66, 9\ns_add_u32 s60, s60, s61\ns_add_u32 s60, s60, {WS_G1}")
        a("s_waitcnt lgkmcnt(0)")
        a("v_pk_add_f32 v[44:45], v[44:45], v[46:47]\nv_pk_add_f32 v[48:49], v[48:49], v[50:51]\nv_pk_add_f32 v[44:45], v[44:45], v[48:49]")
        a("v_mov_b32 v46, v45\nv_mov_b32 v45, s9\nv_mov_b32 v47, s9\nv_mov_b32 v4, 0")
        if not o.nostore: a("buffer_store_dwordx4 v[44:47], v2, s[44:47], s60 offen sc1")
        a("s_mov_b64 exec, s[14:15]")
        self.stamp(3)
        a("L_ln1:")
        if o.fdry == 1: a("s_cbranch_execz L_fdry_ret")
        self.waitvm(2)
        self.stamp(21)
        a("s_nop 0")
        WQp = []; WQf = [64]
        for m in range(10):
            lo, hi, WQf = self.permpair([WQ[2*m]], [WQ[2*m+1]], WQf)
            WQp.append((lo[0], hi[0]))
        self.waitvm(0)
        X = list(range(48, 58))
        for m in range(5):
            self.lo(X[2*m], XR[m]); self.hi(X[2*m+1], XR[m])
        a(f"v_add_f32 v58, v{X[0]}, v{X[1]}")
        for k in range(2, 10): a(f"v_add_f32 v58, v58, v{X[k]}")
        self.allred(58, 59)
        a("v_mul_f32 v58, 0x3acccccd, v58")
        a("v_mov_b32 v60, 0")
        for k in range(10): a(f"v_sub_f32 v{X[k]}, v{X[k]}, v58\nv_fmac_f32 v60, v{X[k]}, v{X[k]}")
        self.allred(60, 59)
        a("v_mul_f32 v60, 0x3acccccd, v60")
        self.round2(58, 60, 59)
        a("v_add_f32 v60, 0x3727c5ac, v60")
        self.round2(60, 61, 59)
        a("v_sqrt_f32 v60, v60")
        self.round2(60, 61, 59)
        a("v_rcp_f32 v60, v60")
        self.lo(62, XP); self.hi(63, XP)
        a("v_sub_f32 v62, v62, v58\nv_sub_f32 v63, v63, v58")
        self.round2(62, 63, 59)
        a("v_mul_f32 v62, v62, v60\nv_mul_f32 v63, v63, v60")
        self.round2(62, 63, 59)
        a("s_mul_i32 s60, s7, 80\ns_mul_i32 s61, s8, 20\ns_add_u32 s60, s60, s61")
        a("v_mul_u32_u24 v2, 30720, v16\nv_lshl_add_u32 v2, v17, 4, v2")
        a(f"s_lshl_b32 s62, s60, 3\ns_add_u32 s62, s62, {WS_G1}\ns_add_u32 s63, s62, 5120")
        self.spin_lds([C_T1], 44)
        self.stamp(22)
        def ld():
            a("buffer_load_dwordx4 v[44:47], v2, s[44:47], s62 offen sc1\nbuffer_load_dwordx4 v[48:51], v2, s[44:47], s63 offen sc1")
        def ck():
            a("v_xor_b32 v53, s9, v45\nv_xor_b32 v54, s9, v47\nv_xor_b32 v55, s9, v49\nv_xor_b32 v56, s9, v51")
            a("v_or3_b32 v53, v53, v54, v55\nv_or_b32 v53, v53, v56\nv_cmp_ne_u32 vcc, 0, v53")
        self.poll(ld, ck, o.fsleep, 32)
        self.stamp(4)
        for v in (44, 46, 48, 50): self.allred(v, 53, bits=(4, 5))
        self.round2(44, 46, 53); self.round2(48, 50, 53)
        a("v_add_f32 v48, 1.0, v48\nv_add_f32 v50, 1.0, v50")
        self.round2(48, 50, 53)
        a("v_mul_f32 v48, v62, v48\nv_mul_f32 v50, v63, v50")
        self.round2(48, 50, 53)
        a("v_add_f32 v48, v48, v44\nv_add_f32 v50, v50, v46\nv_cvt_pk_bf16_f32 v53, v48, v50")
        for m in range(10): a(f"v_readlane_b32 s{64+m}, v53, {m}")
        a("v_mov_b32 v44, 0\nv_mov_b32 v45, 0")
        for m in range(10):
            a(f"v_dot2c_f32_bf16 v44, s{64+m}, v{WQp[m][0]}\nv_dot2c_f32_bf16 v45, s{64+m}, v{WQp[m][1]}")
        a(f"s_lshl_b32 s60, s8, 9\ns_add_u32 s60, s60, {L_RED2}\nv_lshlrev_b32 v2, 3, v0\nv_add_u32 v2, s60, v2")
        a("ds_write_b64 v2, v[44:45]")
        self.last_arriver(C_F2, "L_h2", 46)
        a(f"v_lshlrev_b32 v2, 4, v0\nv_add_u32 v3, {L_RED2}, v2\ns_mov_b64 s[14:15], exec\ns_mov_b32 exec_hi, 0")
        for q in range(4): a(f"ds_read_b128 v[{44+4*q}:{47+4*q}], v3 offset:{512*q}")
        a(f"s_lshl_b32 s60, s6, 3\ns_add_u32 s60, s60, s7\ns_lshl_b32 s60, s60, 9\ns_add_u32 s60, s60, {WS_Q2}")
        a("s_waitcnt lgkmcnt(0)")
        self.sum4x4(44)
        self.tag(range(44, 48), rnd=True)
        if not o.nostore: a("buffer_store_dwordx4 v[44:47], v2, s[44:47], s60 offen sc1")
        a("s_mov_b64 exec, s[14:15]")
        self.stamp(5)
        a("L_h2:")
        if o.fdry == 2: a("s_cbranch_execz L_fdry_ret")
        if o.dry:
            if o.fdry == 3: a("s_cbranch_execz L_h2b")
            a("s_mov_b64 exec, 0")
            a("s_cmp_eq_u32 s8, 0\ns_cbranch_scc1 L_pv")
            a("s_cmp_eq_u32 s8, 1\ns_cbranch_scc1 L_G2")
            a("s_cmp_eq_u32 s10, 1\ns_cbranch_scc1 L_W2")
            a("s_cmp_eq_u32 s10, 2\ns_cbranch_scc0 L_dry_ret")
            a("s_cmp_eq_u32 s8, 2\ns_cbranch_scc1 L_D2\ns_branch L_final")
        a("L_dry_ret:\ns_mov_b64 exec, -1")
        self.stamp(24)
        a("L_h2b:")
        a("v_lshrrev_b32 v2, 3, v0\nv_lshlrev_b32 v2, 9, v2\nv_and_b32 v3, 7, v0\nv_lshl_add_u32 v2, v3, 4, v2")
        a(f"s_lshl_b32 s62, s6, 12\ns_lshl_b32 s60, s8, 7\ns_add_u32 s62, s62, s60\ns_add_u32 s62, s62, {WS_Q2}")
        a("s_cbranch_execz L_M\ns_cmp_lg_u32 s10, 3\ns_cbranch_scc1 L_Mend\ns_cmp_lg_u32 s8, 0\ns_cbranch_scc1 L_Mend\nL_M:")
        a("v_and_b32 v4, 15, v0\nv_mul_u32_u24 v5, 30720, v16\nv_lshl_add_u32 v5, v4, 5, v5\nv_lshlrev_b32 v4, 4, v4")
        a(f"s_lshl_b32 s63, s11, 9\ns_add_u32 s63, s63, {WS_G1 + 1280*8}\ns_lshl_b32 s64, s11, 8\ns_add_u32 s64, s64, {WS_MR}")
        def ld():
            a("buffer_load_dwordx4 v[44:47], v5, s[44:47], s63 offen sc1\nbuffer_load_dwordx4 v[48:51], v5, s[44:47], s63 offen offset:16 sc1")
        self.poll(ld, ck, o.fsleep)
        for v in (44, 46, 48, 50): self.allred(v, 53, bits=(4, 5))
        self.round2(44, 46, 53); self.round2(48, 50, 53)
        a("v_mov_b32 v45, v46\nv_mov_b32 v46, v48\nv_mov_b32 v47, v50")
        self.tag(range(44, 48))
        a("s_mov_b64 s[14:15], exec\ns_and_b32 exec_lo, exec_lo, 0xffff\ns_mov_b32 exec_hi, 0")
        if not o.nostore: a("buffer_store_dwordx4 v[44:47], v4, s[44:47], s64 offen sc1")
        a("s_mov_b64 exec, s[14:15]\nL_Mend:")
        self.spin_lds([C_T2], 44)
        self.stamp(23)
        self.poll(lambda: a("buffer_load_dwordx4 v[48:51], v2, s[44:47], s62 offen sc1"), lambda: self.chk_tag(range(48, 52), 52), o.fsleep, 33)
        self.stamp(6)
        self.red4([48, 49, 50, 51]); self.ror(48, 8)
        a(f"s_lshl_b32 s60, s8, 6\ns_add_u32 s60, s60, {L_QBUF}\nv_lshlrev_b32 v3, 3, v3\nv_lshl_add_u32 v3, v16, 1, v3\nv_add_u32 v3, s60, v3")
        a("v_cvt_pk_bf16_f32 v48, v48, v48\nds_write_b16 v3, v48\ns_waitcnt lgkmcnt(0)")
        self.cnt_add(C_Q)
        a("L_qk:")
        a("v_and_b32 v17, 15, v0")
        a(f"v_xor_b32 v2, v16, v17\nv_lshlrev_b32 v2, 4, v2\nv_lshl_add_u32 v2, v17, 8, v2\ns_lshl_b32 s60, s8, 15\nv_add_u32 v2, s60, v2")
        a("v_xor_b32 v3, 64, v2\nv_xor_b32 v4, 0x80, v2\nv_xor_b32 v5, 0xc0, v2")
        a(f"v_lshlrev_b32 v6, 4, v16\nv_add_u32 v6, {L_QBUF}, v6")
        self.spin_lds([C_Q, C_K], 44)
        self.stamp(7)
        QF = 20
        for s in range(4): a(f"ds_read_b128 v[{QF+4*s}:{QF+4*s+3}], v6 offset:{64*s}")
        KB = [44, 60]
        DD = [76 + 4*g for g in range(4)]
        S = [36, 37]
        def rd(t):
            for s in range(4): a(f"ds_read_b128 v[{KB[t%2]+4*s}:{KB[t%2]+4*s+3}], v{2+s} offset:{4096*t}")
        rd(0); rd(1)
        for t in range(8):
            a(f"s_waitcnt lgkmcnt({4 if t < 7 else 0})")
            d = DD[t % 4]
            for s in range(4):
                c = "0" if s == 0 else f"v[{d}:{d+3}]"
                a(f"v_mfma_f32_16x16x32_bf16 v[{d}:{d+3}], v[{QF+4*s}:{QF+4*s+3}], v[{KB[t%2]+4*s}:{KB[t%2]+4*s+3}], {c}")
            if t + 2 < 8:
                a("s_nop 7"); rd(t + 2)
            if t % 4 == 3:
                for g in range(4): a(f"v_mov_b32_dpp v{S[t//4]}, v{DD[g]} quad_perm:[0,1,2,3] row_mask:{hex(1<<g)} bank_mask:0xf")
        self.round2(36, 37, 38)
        a("v_mul_f32 v36, 0x3db504f3, v36\nv_mul_f32 v37, 0x3db504f3, v37")
        self.round2(36, 37, 38)
        a("v_max_f32 v39, v36, v37")
        self.allred(39, 38, op="max")
        a(f"s_lshl_b32 s60, s8, 2\ns_add_u32 s60, s60, {L_MAXB}\nv_mov_b32 v2, s60\nv_mov_b32 v3, {L_MAXB}\nds_write_b32 v2, v39\ns_waitcnt lgkmcnt(0)")
        self.cnt_add(C_MAX)
        self.spin_lds([C_MAX], 44)
        a("ds_read_b128 v[44:47], v3")
        a(f"s_lshl_b32 s60, s8, 4\ns_add_u32 s60, s60, {L_PBUF}\nv_lshlrev_b32 v2, 6, v17\nv_lshl_add_u32 v2, v16, 1, v2\nv_add_u32 v2, s60, v2")
        a("s_waitcnt lgkmcnt(0)")
        a("v_max3_f32 v44, v44, v45, v46\nv_max_f32 v40, v44, v47")
        a(f"v_sub_f32 v36, v36, v40\nv_sub_f32 v37, v37, v40\nv_mul_f32 v36, {hex(LOG2E)}, v36\nv_mul_f32 v37, {hex(LOG2E)}, v37\nv_exp_f32 v36, v36\nv_exp_f32 v37, v37")
        a("v_cvt_pk_bf16_f32 v38, v36, v37\nds_write_b16 v2, v38\nds_write_b16_d16_hi v2, v38 offset:8")
        self.lo(36, 38); self.hi(37, 38)
        a("v_add_f32 v41, v36, v37")
        self.allred(41, 38)
        a(f"s_lshl_b32 s60, s8, 2\ns_add_u32 s60, s60, {L_LSUM}\nv_mov_b32 v2, s60\nv_mov_b32 v3, {L_LSUM}\nds_write_b32 v2, v41\nds_write_b32 v3, v40 offset:16\ns_waitcnt lgkmcnt(0)")
        self.cnt_add(C_P)
        self.stamp(8)
        if o.fdry == 3: a("s_cbranch_execz L_fdry_ret")
        if o.norole:
            self.dump_stamps()
            a("s_endpgm")
        a("s_cmp_eq_u32 s10, 2\ns_cbranch_scc1 L_D1\ns_cmp_eq_u32 s10, 1\ns_cbranch_scc0 L_wend")
        WW = [[96 + 4*i + q for q in range(4)] for i in range(8)]
        self.spin_lds([C_O if o.wtrig else C_T3], 44)
        self.srd(48, 24, 5242880)
        def wids():
            a(f"s_add_u32 s64, s4, {o.wx}\ns_and_b32 s64, s64, 7")
            a("s_cmp_ge_u32 s5, 10\ns_cselect_b32 s60, 1, 0\ns_lshl_b32 s64, s64, 1\ns_add_u32 s64, s64, s60\ns_mul_i32 s60, s60, 10\ns_sub_u32 s65, s5, s60")
            a("s_lshr_b32 s60, s8, 1\ns_lshl_b32 s66, s64, 1\ns_add_u32 s66, s66, s60\ns_and_b32 s67, s8, 1")
        wids()
        a("v_lshrrev_b32 v2, 3, v0\nv_mul_u32_u24 v2, 10240, v2\nv_and_b32 v3, 7, v0\nv_lshl_add_u32 v2, v3, 4, v2")
        a("s_lshl_b32 s60, s66, 1\ns_add_u32 s60, s60, s67\ns_mul_i32 s60, s60, 81920\ns_lshl_b32 s61, s65, 7\ns_add_u32 s60, s60, s61\ns_add_u32 s61, s60, 5120")
        for i in range(8): a(f"buffer_load_dwordx4 v[{WW[i][0]}:{WW[i][3]}], v2, s[48:51], s{60 + i//4} offen offset:{1280*(i%4)} {LNT}")
        a("L_W2:")
        wids()
        a("v_and_b32 v3, 7, v0\nv_lshlrev_b32 v2, 4, v3")
        a(f"v_lshrrev_b32 v4, 3, v0\nv_lshlrev_b32 v4, 5, v4\nv_lshl_add_u32 v4, v3, 9, v4")
        a(f"s_lshl_b32 s60, s8, 8\ns_add_u32 s60, s60, {L_REDW}\nv_lshlrev_b32 v5, 5, v3\nv_lshl_add_u32 v5, v16, 3, v5\nv_add_u32 v5, s60, v5")
        a(f"v_lshlrev_b32 v6, 4, v0\nv_add_u32 v7, {L_REDW}, v6")
        a(f"s_lshl_b32 s68, s66, 7\ns_add_u32 s68, s68, {WS_ML}\ns_lshl_b32 s62, s66, 12\ns_lshl_b32 s60, s67, 8\ns_add_u32 s62, s62, s60\ns_add_u32 s62, s62, {WS_O}")
        a(f"s_mul_i32 s63, s64, 2560\ns_lshl_b32 s60, s65, 8\ns_add_u32 s63, s63, s60\ns_add_u32 s63, s63, {WS_Y}")
        self.waitvm(0)
        Tf = [128, 129, 130, 131]; Wp = []
        for m in range(4):
            lo, hi, Tf = self.permpair(WW[2*m], WW[2*m+1], Tf); Wp.append((lo, hi))
        self.stamp(9)
        if not o.wtrig: self.spin_lds([C_O], 44)
        self.stamp(10)
        def ld():
            a("buffer_load_dwordx4 v[52:55], v2, s[44:47], s68 offen sc1")
            a("buffer_load_dwordx4 v[44:47], v4, s[44:47], s62 offen sc1\nbuffer_load_dwordx4 v[48:51], v4, s[44:47], s62 offen offset:16 sc1")
        self.poll(ld, lambda: self.chk_tag(list(range(44, 56)), 60), o.asleep, 34, rk=40, pre=o.prea)
        self.stamp(11)
        a("v_and_b32 v52, 0xffff0000, v52\nv_mov_b32 v54, v52")
        self.allred(54, 60, op="max", bits=(0, 1, 2))
        a(f"v_sub_f32 v52, v52, v54\nv_mul_f32 v52, {hex(LOG2E)}, v52\nv_exp_f32 v56, v52\nv_mul_f32 v53, v53, v56")
        for k in range(0, 8, 2): a(f"v_pk_mul_f32 v[{44+k}:{45+k}], v[{44+k}:{45+k}], v[56:57] op_sel_hi:[1,0]")
        for bit in (0, 1, 2):
            self.allred(53, 60, bits=(bit,))
            for k in range(8): self.allred(44 + k, 60, bits=(bit,))
        a("v_rcp_f32 v56, v53")
        for k in range(0, 8, 2): a(f"v_pk_mul_f32 v[{44+k}:{45+k}], v[{44+k}:{45+k}], v[56:57] op_sel_hi:[1,0]")
        for m in range(4): a(f"v_cvt_pk_bf16_f32 v{52+m}, v{44+2*m}, v{45+2*m}")
        ACC = list(range(24, 32))
        for m in range(4):
            lo, hi = Wp[m]
            for k in range(4):
                if m == 0: a(f"v_dot2_f32_bf16 v{ACC[2*k]}, v{lo[k]}, v{52+m}, 0\nv_dot2_f32_bf16 v{ACC[2*k+1]}, v{hi[k]}, v{52+m}, 0")
                else: a(f"v_dot2c_f32_bf16 v{ACC[2*k]}, v{lo[k]}, v{52+m}\nv_dot2c_f32_bf16 v{ACC[2*k+1]}, v{hi[k]}, v{52+m}")
        self.red8(ACC)
        self.ror(24, 8); self.ror(25, 8)
        a("ds_write_b64 v5, v[24:25]")
        self.last_arriver(C_W, "L_wend", 60)
        a("s_and_b32 exec_lo, exec_lo, 0xffff\ns_mov_b32 exec_hi, 0")
        for q in range(4): a(f"ds_read_b128 v[{44+4*q}:{47+4*q}], v7 offset:{256*q}")
        a("s_waitcnt lgkmcnt(0)")
        self.sum4x4(44)
        self.tag(range(44, 48))
        a("buffer_store_dwordx4 v[44:47], v6, s[44:47], s63 offen sc1")
        self.stamp(12)
        a("s_branch L_wend")

        DW = [[96 + 2*n + q for q in range(2)] for n in range(32)]
        a("L_D1:")
        self.spin_lds([C_O if o.dtrig else C_T3], 44)
        self.srd(48, 32, 2211840)
        def dids():
            a("s_mul_i32 s64, s8, 192\ns_cmp_eq_u32 s8, 3\ns_cselect_b32 s64, 512, s64\ns_cmp_ge_u32 s8, 2\ns_cselect_b32 s65, 31, 47")
        dids()
        a("v_min_u32 v4, s65, v0\nv_lshlrev_b32 v2, 3, v4\ns_lshl_b32 s60, s64, 1\ns_mul_i32 s61, s11, 40960\ns_add_u32 s61, s61, s60")
        for n in range(32):
            a(f"buffer_load_dwordx2 v[{DW[n][0]}:{DW[n][1]}], v2, s[48:51], s61 offen offset:{1280*(n%4)} {LNT}")
            if n % 4 == 3 and n < 31: a("s_addk_i32 s61, 5120")
        a("L_D2:")
        dids()
        a("v_min_u32 v4, s65, v0\nv_lshlrev_b32 v4, 4, v4")
        a(f"s_mul_i32 s70, s11, 2560\ns_lshl_b32 s60, s64, 2\ns_add_u32 s70, s70, s60\ns_add_u32 s70, s70, {WS_OP}")
        a("v_lshrrev_b32 v5, 3, v0\nv_and_b32 v6, 7, v0\nv_lshlrev_b32 v6, 4, v6")
        a("v_mul_u32_u24 v7, 17280, v5\nv_add_u32 v8, v7, v6\nv_mul_u32_u24 v9, 27648, v5\nv_add_u32 v9, v9, v6")
        a("s_lshr_b32 s60, s11, 1\ns_and_b32 s61, s11, 1\ns_lshl_b32 s61, s61, 7")
        a(f"s_mul_i32 s66, s60, 640\ns_add_u32 s66, s66, {WS_Z}\ns_add_u32 s67, s66, s61\ns_lshl_b32 s68, s60, 10\ns_add_u32 s68, s68, s61\ns_add_u32 s68, s68, {WS_U}")
        a(f"v_and_b32 v10, 3, v0\nv_lshlrev_b32 v10, 4, v10\ns_min_u32 s60, s11, 39\ns_lshl_b32 s69, s60, 6\ns_add_u32 s71, s69, {WS_MR + 7680}")
        self.waitvm(0)
        Tf = [160, 161]; Dp = []
        for m in range(16):
            lo, hi, Tf = self.permpair(DW[2*m], DW[2*m+1], Tf); Dp.append((lo, hi))
        self.stamp(9)
        def ld():
            for q in range(4): a(f"buffer_load_dwordx4 v[{44+4*q}:{47+4*q}], v9, s[44:47], s68 offen offset:{256*q} sc1")
            a("buffer_load_dwordx4 v[60:63], v10, s[44:47], s71 offen sc1")
        self.poll(ld, lambda: self.chk_tag(range(44, 64), 64), o.usleep, 37, pre=o.pre)
        def R(b):
            for k in range(4): a(f"v_permlane32_swap_b32 v{b+k}, v{b+4+k}")
            a(f"v_pk_add_f32 v[{b}:{b+1}], v[{b}:{b+1}], v[{b+4}:{b+5}]\nv_pk_add_f32 v[{b+2}:{b+3}], v[{b+2}:{b+3}], v[{b+6}:{b+7}]")
            a(f"v_permlane16_swap_b32 v{b}, v{b+2}\nv_permlane16_swap_b32 v{b+1}, v{b+3}\nv_pk_add_f32 v[{b}:{b+1}], v[{b}:{b+1}], v[{b+2}:{b+3}]")
            self.ror(b, 8); self.ror(b + 1, 8)
        R(44); R(52)
        a("v_mov_b32 v20, v44\nv_mov_b32 v21, v45\nv_mov_b32 v22, v52\nv_mov_b32 v23, v53")
        for g in range(4): a(f"v_mov_b32_dpp v24, v{60+g} quad_perm:[0,1,2,3] row_mask:{hex(1<<g)} bank_mask:0xf")
        self.hi(24, 24)
        a("v_mov_b32 v26, 0x3d372713")
        self.stamp(10)
        def ld():
            a("buffer_load_dwordx4 v[52:55], v7, s[44:47], s66 offen offset:512 sc1")
            a("buffer_load_dwordx4 v[44:47], v8, s[44:47], s67 offen sc1\nbuffer_load_dwordx4 v[48:51], v8, s[44:47], s67 offen offset:256 sc1")
        self.poll(ld, lambda: self.chk_tag(range(44, 56), 60), o.tsleep, 38, pre=o.pre)
        self.stamp(11)
        a("v_permlane32_swap_b32 v52, v53")
        for k in range(4): a(f"v_permlane32_swap_b32 v{44+k}, v{48+k}")
        a("v_add_f32 v52, v52, v53\nv_pk_add_f32 v[44:45], v[44:45], v[48:49]\nv_pk_add_f32 v[46:47], v[46:47], v[50:51]\nv_mov_b32 v53, v52")
        a("v_permlane16_swap_b32 v44, v46\nv_permlane16_swap_b32 v45, v47\nv_permlane16_swap_b32 v52, v53")
        a("v_pk_add_f32 v[44:45], v[44:45], v[46:47]\nv_add_f32 v52, v52, v53")
        self.ror(52, 8); self.ror(44, 8); self.ror(45, 8)
        a("v_mul_f32 v52, 0x3acccccd, v52")
        a("v_readlane_b32 s60, v52, 0\nv_readlane_b32 s61, v52, 32")
        a("v_mov_b32 v54, s60\nv_mov_b32 v55, s61\nv_fma_f32 v55, -v54, v54, v55\nv_add_f32 v55, 0x3727c5ac, v55\nv_rsq_f32 v56, v55")
        a("v_fma_f32 v44, -v54, v20, v44\nv_fma_f32 v45, -v54, v21, v45\nv_fma_f32 v44, v56, v44, v22\nv_fma_f32 v45, v56, v45, v23")
        a("v_mov_b32 v46, v44\nv_mov_b32 v47, v45\nv_permlane32_swap_b32 v44, v46\nv_permlane32_swap_b32 v45, v47")
        a("v_mul_f32 v48, v44, v44\nv_mul_f32 v49, v45, v45\nv_fma_f32 v48, v48, v26, 1.0\nv_fma_f32 v49, v49, v26, 1.0\nv_mul_f32 v48, v48, v44\nv_mul_f32 v49, v49, v45")
        a("v_mul_f32 v48, 0xc0135761, v48\nv_mul_f32 v49, 0xc0135761, v49\nv_exp_f32 v48, v48\nv_exp_f32 v49, v49\nv_mul_f32 v44, v44, v46\nv_mul_f32 v45, v45, v47")
        a("v_add_f32 v48, 1.0, v48\nv_add_f32 v49, 1.0, v49\nv_rcp_f32 v48, v48\nv_rcp_f32 v49, v49\nv_mul_f32 v44, v44, v48\nv_mul_f32 v45, v45, v49\nv_cvt_pk_bf16_f32 v44, v44, v45")
        for m in range(16): a(f"v_readlane_b32 s{72+m}, v44, {16*(m&1) + (m>>1)}")
        for m in range(16):
            lo, hi = Dp[m]
            for k in range(2):
                if m == 0: a(f"v_dot2_f32_bf16 v{48+2*k}, s{72+m}, v{lo[k]}, 0\nv_dot2_f32_bf16 v{49+2*k}, s{72+m}, v{hi[k]}, 0")
                else: a(f"v_dot2c_f32_bf16 v{48+2*k}, s{72+m}, v{lo[k]}\nv_dot2c_f32_bf16 v{49+2*k}, s{72+m}, v{hi[k]}")
        self.tag(range(48, 52))
        a("s_cmp_ge_u32 s8, 2\ns_cselect_b32 s60, 0, 0xffff\ns_and_b32 exec_hi, exec_hi, s60")
        a("buffer_store_dwordx4 v[48:51], v4, s[44:47], s70 offen sc1")
        self.stamp(13)
        a("s_cbranch_execz L_dry_ret")
        a("s_cmp_lg_u32 s8, 0\ns_cbranch_scc1 L_wend\ns_cmp_ge_u32 s11, 40\ns_cbranch_scc1 L_wend")
        a("s_mov_b64 exec, -1")
        a("L_final:")
        self.srd(52, 38, 1280)
        a("v_lshrrev_b32 v2, 2, v0\nv_mul_u32_u24 v2, 2560, v2\nv_add_u32 v2, v2, v10\nv_lshrrev_b32 v3, 1, v10\nv_lshl_add_u32 v3, v16, 1, v3")
        a(f"s_add_u32 s62, s69, {WS_OP}\ns_add_u32 s63, s62, 40960\ns_add_u32 s64, s62, 81920\ns_add_u32 s65, s62, 122880\ns_add_u32 s66, s69, {WS_X2}\ns_lshr_b32 s67, s69, 1")
        def ld():
            a("buffer_load_dwordx4 v[60:63], v10, s[44:47], s66 offen sc1")
            for u in range(3): a(f"buffer_load_dwordx4 v[{44+4*u}:{47+4*u}], v2, s[44:47], s{62+u} offen sc1")
            a("s_mov_b64 s[76:77], exec\ns_and_b32 exec_lo, exec_lo, 0xffffff\ns_mov_b32 exec_hi, 0")
            a("buffer_load_dwordx4 v[56:59], v2, s[44:47], s65 offen sc1\ns_mov_b64 exec, s[76:77]")
        for k in range(56, 60): a(f"v_and_b32 v{k}, s98, v18")
        self.poll(ld, lambda: self.chk_tag(range(44, 64), 64), o.tsleep, 36, pre=o.prec)
        self.stamp(14)
        self.sum4x4(44)
        for g in range(4): a(f"v_mov_b32_dpp v64, v{60+g} quad_perm:[0,1,2,3] row_mask:{hex(1<<g)} bank_mask:0xf")
        self.red4([44, 45, 46, 47]); self.ror(44, 4); self.ror(44, 8)
        a("v_fma_f32 v44, v44, v24, v64\nv_cvt_pk_bf16_f32 v44, v44, v44")
        a("s_and_b32 exec_lo, exec_lo, 0x000f000f\ns_and_b32 exec_hi, exec_hi, 0x000f000f")
        a("buffer_store_short v44, v3, s[52:55], s67 offen")
        a("s_cbranch_execz L_dry_ret")
        a("s_cmp_lg_u32 s11, 0\ns_cbranch_scc1 L_fin2")
        a("s_mov_b64 exec, 1\nv_mov_b32 v6, 0\nbuffer_store_dword v18, v6, s[44:47], 0 offen sc1")
        a("L_fin2:")
        self.stamp(15)
        self.dump_stamps()
        a("L_end:\ns_endpgm")
        a(footer(256, 100, 256))
        return a.text()

if __name__ == "__main__":
    ap = argparse.ArgumentParser()
    ap.add_argument("-o", default="k.s")
    for k, v in dict(depth=6, d0=2, stamps=0, dry=1, fdry=0, prio=3, sprio=3, masked=1, swait=0, fsleep=8, msleep=4, tsleep=0, usleep=2,
                     nopoll=0, b1early=1, nofront=0, nostore=0, norole=0, nohopld=0, t1=20, t2=40, t3=58, wtrig=0, dtrig=1, gpos=99, btrig=1, pre=4, prec=0, asleep=1, wx=0, prea=0, hx=0).items():
        ap.add_argument("--" + k, type=int, default=v)
    for k in ("nt", "wnt", "lnt"): ap.add_argument("--" + k, default="nt")
    o = ap.parse_args()
    for k in ("nt", "wnt", "lnt"):
        if getattr(o, k) == "pl": setattr(o, k, "")
    g = G(o); t = g.build()
    open(o.o, "w").write(t)
    print("nops inserted:", g.a.nops, "lines:", len(t.splitlines()))
```

```python
import sys, argparse
from asmlib import *

WS_EPOCH = 0x0
WS_CNT   = 0x1000
WS_MR    = 0x10000
WS_Q2    = 0x20000
WS_O     = 0x40000
WS_ML    = 0x60000
WS_X2    = 0x61000
WS_Y     = 0x62000
WS_OP    = 0x6C000
WS_Z     = 0x8E000
WS_U     = 0xB0000
WS_G1    = 0x100000
WS_STAMP = 0x200000
L_FLAG = 0x20000
C_F1, C_F2, C_Q, C_K, C_P, C_MAX, C_T1, C_T2, C_T3, C_O, C_W, C_U, C_Z, C_TKT, C_TD, C_YA, C_A, C_WL = [4*i for i in range(18)]
L_RED1 = 0x20100
L_RED2 = 0x20800
L_QBUF = 0x21000
L_MAXB = 0x21100
L_LSUM = 0x21110
L_PBUF = 0x21200
L_REDO = 0x21800
L_REDW = 0x22000
L_GU   = 0x22400
L_GZ   = 0x23400
L_GX2  = 0x23D00
LDS_BYTES = 0x24000
LOG2E = 0x3fb8aa3b
TAGADD = 0x61C88647

class G:
    def __init__(self, opt):
        self.o = opt
        self.a = Asm()
        self.n = 0
    def lab(self, p="L"):
        self.n += 1
        return f"{p}_{self.n}"
    def stamp(self, k):
        if not self.o.stamps: return
        a = self.a; sk = self.lab("st")
        a(f"s_cbranch_execz {sk}\ns_memrealtime s[96:97]\ns_waitcnt lgkmcnt(0)\nv_writelane_b32 v19, s96, {k}\n{sk}:")
    def note(self, k, sreg):
        if not self.o.stamps: return
        a = self.a; sk = self.lab("st")
        a(f"s_cbranch_execz {sk}\nv_writelane_b32 v19, {sreg}, {k}\n{sk}:")
    def stamp_init(self):
        if not self.o.stamps: return
        self.a("v_mov_b32 v19, 0\nv_writelane_b32 v19, s96, 0")
    def dump_stamps(self):
        if not self.o.stamps: return
        a = self.a
        a("s_mov_b64 exec, -1")
        a("s_lshl_b32 s60, s2, 3\ns_add_u32 s60, s60, s3\ns_lshl_b32 s60, s60, 8")
        a(f"s_add_u32 s60, s60, {WS_STAMP}\nv_lshlrev_b32 v1, 2, v0")
        if self.o.stamps == 2:
            self.srd(48, 40, 256)
            a("v_not_b32 v2, v19\nv_cmp_eq_u32 vcc, 0, v0\nv_cndmask_b32 v19, v19, v2, vcc")
            a("s_cmp_ge_u32 s3, 4\ns_cselect_b32 s60, 64, 0\ns_mov_b32 exec_lo, 0xffff\ns_mov_b32 exec_hi, 0")
            a("buffer_atomic_umax v19, v1, s[48:51], s60 offen")
        else:
            a(f"buffer_store_dword v19, v1, s[44:47], s60 offen")
    def waitvm(self, n):
        a = self.a; sk = self.lab("wv")
        a(f"s_cbranch_execz {sk}\ns_waitcnt vmcnt({n})\n{sk}:")
    def barrier(self):
        a = self.a; sk = self.lab("bar")
        a(f"s_cbranch_execz {sk}\ns_barrier\n{sk}:")
    def srd(self, q, ptr, size, off=0):
        a = self.a
        if off: a(f"s_add_u32 s{q}, s{ptr}, {off}\ns_addc_u32 s{q+1}, s{ptr+1}, 0")
        else: a(f"s_mov_b32 s{q}, s{ptr}\ns_mov_b32 s{q+1}, s{ptr+1}")
        a(f"s_mov_b32 s{q+2}, {size}\ns_mov_b32 s{q+3}, 0x20000")
    def lo(self, d, s): self.a(f"v_lshlrev_b32 v{d}, 16, v{s}")
    def hi(self, d, s): self.a(f"v_and_b32 v{d}, 0xffff0000, v{s}")
    def round2(self, x, y, t):
        self.a(f"v_cvt_pk_bf16_f32 v{t}, v{x}, v{y}"); self.lo(x, t); self.hi(y, t)
    def allred(self, v, t, op="add", bits=(0, 1, 2, 3, 4, 5)):
        a = self.a
        d = {0: "quad_perm:[1,0,3,2]", 1: "quad_perm:[2,3,0,1]", 2: "row_half_mirror", 3: "row_mirror"}
        for b in bits:
            if b < 4: a(f"v_{op}_f32_dpp v{v}, v{v}, v{v} {d[b]} row_mask:0xf bank_mask:0xf")
            else:
                a(f"v_mov_b32 v{t}, v{v}\nv_permlane{16 if b == 4 else 32}_swap_b32 v{t}, v{v}\nv_{op}_f32 v{v}, v{v}, v{t}")
    def ror(self, v, n): self.a(f"v_add_f32_dpp v{v}, v{v}, v{v} row_ror:{n} row_mask:0xf bank_mask:0xf")
    def red8(self, acc):
        a = self.a
        for k in range(4): a(f"v_permlane32_swap_b32 v{acc[k]}, v{acc[k+4]}")
        for k in range(4): a(f"v_add_f32 v{acc[k]}, v{acc[k]}, v{acc[k+4]}")
        for k in range(2): a(f"v_permlane16_swap_b32 v{acc[k]}, v{acc[k+2]}")
        for k in range(2): a(f"v_add_f32 v{acc[k]}, v{acc[k]}, v{acc[k+2]}")
    def red4(self, v):
        a = self.a
        a(f"v_permlane32_swap_b32 v{v[0]}, v{v[2]}\nv_permlane32_swap_b32 v{v[1]}, v{v[3]}")
        a(f"v_add_f32 v{v[0]}, v{v[0]}, v{v[2]}\nv_add_f32 v{v[1]}, v{v[1]}, v{v[3]}")
        a(f"v_permlane16_swap_b32 v{v[0]}, v{v[1]}\nv_add_f32 v{v[0]}, v{v[0]}, v{v[1]}")
    def permpair(self, A, B, T):
        a = self.a
        for k in range(len(A)):
            a(f"v_perm_b32 v{T[k]}, v{B[k]}, v{A[k]}, s12")
            a(f"v_perm_b32 v{B[k]}, v{B[k]}, v{A[k]}, s13")
        return list(T), list(B), list(A)
    def silu2(self, src, dst, t):
        a = self.a
        x0, x1, e0, e1 = t
        self.lo(x0, src); self.hi(x1, src)
        a(f"v_mul_f32 v{e0}, 0xbfb8aa3b, v{x0}\nv_mul_f32 v{e1}, 0xbfb8aa3b, v{x1}")
        a(f"v_exp_f32 v{e0}, v{e0}\nv_exp_f32 v{e1}, v{e1}")
        a(f"v_add_f32 v{e0}, 1.0, v{e0}\nv_add_f32 v{e1}, 1.0, v{e1}")
        a(f"v_rcp_f32 v{e0}, v{e0}\nv_rcp_f32 v{e1}, v{e1}")
        a(f"v_mul_f32 v{x0}, v{x0}, v{e0}\nv_mul_f32 v{x1}, v{x1}, v{e1}")
        a(f"v_cvt_pk_bf16_f32 v{dst}, v{x0}, v{x1}")
    def cnt_add(self, cnt, rtn=None):
        a = self.a
        a("s_mov_b64 s[14:15], exec\ns_and_b32 exec_lo, exec_lo, 1\ns_mov_b32 exec_hi, 0")
        if rtn is None: a(f"ds_add_u32 v14, v15 offset:{cnt}")
        else: a(f"ds_add_rtn_u32 v{rtn}, v14, v15 offset:{cnt}")
        a("s_mov_b64 exec, s[14:15]")
    def last_arriver(self, cnt, skip, t):
        a = self.a; go = self.lab("la")
        self.cnt_add(cnt, t)
        a(f"s_waitcnt lgkmcnt(0)\ns_cbranch_execz {go}\nv_readfirstlane_b32 s60, v{t}\ns_cmp_lg_u32 s60, 3\ns_cbranch_scc1 {skip}\n{go}:")
    def spin_lds(self, cnts, t, target=None):
        a = self.a; top = self.lab("sp"); out = self.lab("spo")
        a(f"s_mov_b32 s61, 0\n{top}:")
        for i, c in enumerate(cnts): a(f"ds_read_b32 v{t+i}, v14 offset:{c}")
        a(f"s_waitcnt lgkmcnt(0)\ns_cbranch_execz {out}")
        for i in range(1, len(cnts)): a(f"v_add_u32 v{t}, v{t}, v{t+i}")
        a(f"v_readfirstlane_b32 s60, v{t}\ns_cmp_ge_u32 s60, {target or 4*len(cnts)}\ns_cbranch_scc1 {out}")
        a(f"s_sleep 1\ns_add_u32 s61, s61, 1\ns_cmp_lt_u32 s61, 0x40000\ns_cbranch_scc1 {top}\n{out}:")
    def poll(self, loads, check, sleep=0, nk=None, pre=0, rk=None, rl=None, preloaded=False):
        a = self.a; top = self.lab("pl"); out = self.lab("plo"); full = self.lab("plf"); nx = self.lab("pln")
        a(f"s_mov_b32 s61, 0\ns_mov_b64 s[14:15], exec")
        if pre: a("s_and_b32 exec_lo, exec_lo, 1\ns_mov_b32 exec_hi, 0\ns_mov_b32 s99, 1")
        if preloaded: a(f"s_branch {top}_c")
        a(f"{top}:")
        if self.o.skipvm: a(f"s_cbranch_execz {top}_s")
        if not self.o.nohopld: loads()
        if preloaded: a(f"{top}_c:")
        if self.o.skipvm: a(f"s_cbranch_execz {top}_s\ns_waitcnt vmcnt(0)\n{top}_s:" if preloaded else f"s_waitcnt vmcnt(0)\n{top}_s:")
        else: self.waitvm(0)
        if rk is not None and self.o.stamps:
            sk = self.lab("rs")
            a(f"s_cbranch_execz {sk}\ns_memrealtime s[96:97]\ns_min_u32 s60, s61, 7\ns_add_u32 s60, s60, {rk}\ns_mov_b32 m0, s60\ns_waitcnt lgkmcnt(0)\nv_writelane_b32 v19, s96, m0\n{sk}:")
        if rl is not None and self.o.stamps:
            sk = self.lab("rs")
            a(f"s_cbranch_execz {sk}\ns_memrealtime s[96:97]\ns_add_u32 s95, s95, 1\ns_and_b32 s60, s95, 7\ns_add_u32 s60, s60, {rl}\ns_mov_b32 m0, s60\ns_waitcnt lgkmcnt(0)\nv_writelane_b32 v19, s96, m0\n{sk}:")
        check()
        a(f"s_cbranch_vccz {full if pre else out}")
        if self.o.nopoll: a(f"s_branch {out}")
        if self.o.masked: a("s_mov_b64 exec, vcc")
        if pre:
            a(f"s_cmp_eq_u32 s99, 0\ns_cbranch_scc1 {nx}\ns_sleep {pre}\n{nx}:")
        self.backoff(sleep)
        a(f"s_add_u32 s61, s61, 1\ns_cmp_lt_u32 s61, 0x8000\ns_cbranch_scc1 {top}")
        if pre:
            a(f"s_branch {out}\n{full}:\ns_cmp_eq_u32 s99, 0\ns_cbranch_scc1 {out}\ns_mov_b32 s99, 0\ns_andn2_b64 exec, s[14:15], exec\ns_cbranch_execnz {top}")
        a(f"{out}:\ns_mov_b64 exec, s[14:15]")
        if nk is not None: self.note(nk, "s61")
    def backoff(self, sleep):
        a = self.a
        if isinstance(sleep, tuple):
            th, sh, tl, sl = sleep; l1 = self.lab("bo"); l2 = self.lab("bo")
            a(f"s_bcnt1_i32_b64 s60, vcc\ns_cmp_le_u32 s60, {tl}\ns_cbranch_scc1 {l2}\ns_cmp_le_u32 s60, {th}\ns_cbranch_scc1 {l1}\ns_sleep {sh}\n{l1}:")
            if sl: a(f"s_sleep {sl}")
            a(f"{l2}:")
        elif sleep: a(f"s_sleep {sleep}")
    def ppoll(self, loads, check, nops, sleep=0, nk=None, rl=None, pipe=None):
        if not (self.o.pipe if pipe is None else pipe):
            return self.poll(loads, check, sleep, nk, rl=rl)
        a = self.a; top = self.lab("pp"); out = self.lab("ppo")
        a("s_mov_b32 s61, 0\ns_mov_b64 s[14:15], exec")
        loads()
        if self.o.pgap: a(f"s_sleep {self.o.pgap}")
        a(f"{top}:")
        loads()
        self.waitvm(nops)
        if rl is not None and self.o.stamps:
            sk = self.lab("rs")
            a(f"s_cbranch_execz {sk}\ns_memrealtime s[96:97]\ns_add_u32 s95, s95, 1\ns_and_b32 s60, s95, 7\ns_add_u32 s60, s60, {rl}\ns_mov_b32 m0, s60\ns_waitcnt lgkmcnt(0)\nv_writelane_b32 v19, s96, m0\n{sk}:")
        check()
        a(f"s_cbranch_vccz {out}\ns_mov_b64 exec, vcc")
        self.backoff(sleep)
        a(f"s_add_u32 s61, s61, 1\ns_cmp_lt_u32 s61, 0x8000\ns_cbranch_scc1 {top}")
        a(f"{out}:\ns_mov_b64 exec, s[14:15]")
        if nk is not None: self.note(nk, "s61")
    def prewait(self, loads, check, mlo, mhi, sleep):
        if not sleep: return
        a = self.a; top = self.lab("pw"); out = self.lab("pwo")
        a(f"s_mov_b32 s61, 0\ns_mov_b64 s[78:79], exec\ns_and_b32 exec_lo, exec_lo, {hex(mlo)}\ns_and_b32 exec_hi, exec_hi, {hex(mhi)}\n{top}:\ns_cbranch_execz {out}")
        loads()
        a(f"s_waitcnt vmcnt(0)")
        check()
        a(f"s_cmp_eq_u64 vcc, exec\ns_cbranch_scc0 {out}\ns_sleep {sleep}")
        a(f"s_add_u32 s61, s61, 1\ns_cmp_lt_u32 s61, 0x8000\ns_cbranch_scc1 {top}\n{out}:\ns_mov_b64 exec, s[78:79]")
    def tdetect(self):
        if not self.o.td: return
        a = self.a; top = self.lab("td"); out = self.lab("tdo"); w = self.lab("tdw"); f = self.lab("tdf")
        a(f"s_cbranch_execz {out}\ns_cmp_lg_u32 s3, 4\ns_cbranch_scc1 {w}")
        a(f"s_lshl_b32 s60, s4, 9\ns_add_u32 s60, s60, {WS_CNT}\ns_add_u32 s80, s42, s60\ns_addc_u32 s81, s43, 0\ns_mov_b32 s61, 0\n{top}:")
        for q in range(4): a(f"s_load_dword s{72+q}, s[80:81], {128*q} glc")
        a("s_waitcnt lgkmcnt(0)\ns_add_u32 s72, s72, s73\ns_add_u32 s74, s74, s75\ns_add_u32 s72, s72, s74")
        a(f"s_cmp_ge_u32 s72, 256\ns_cbranch_scc1 {f}\ns_cmp_ge_u32 s72, {self.o.tdnear}\ns_cbranch_scc1 {top}_n\ns_sleep {self.o.tdsleep}\n{top}_n:")
        a(f"s_add_u32 s61, s61, 1\ns_cmp_lt_u32 s61, 0x8000\ns_cbranch_scc1 {top}\n{f}:")
        self.cnt_add(C_TD)
        a(f"s_branch {out}\n{w}:")
        self.spin_lds([C_TD], 44, target=1)
        a(f"{out}:")
    def get_ticket(self):
        a = self.a; top = self.lab("tk"); out = self.lab("tko")
        if not self.o.tickets:
            a("s_mov_b32 s94, s2"); return
        a(f"s_mov_b32 s61, 0\n{top}:\nds_read_b32 v1, v14 offset:{C_TKT}\ns_waitcnt lgkmcnt(0)\nv_readfirstlane_b32 s94, v1\ns_cbranch_execz {out}")
        a(f"s_cmp_lg_u32 s94, 0\ns_cbranch_scc1 {out}\ns_sleep 1\ns_add_u32 s61, s61, 1\ns_cmp_lt_u32 s61, 0x40000\ns_cbranch_scc1 {top}\n{out}:")
        a("s_sub_u32 s94, s94, 1\ns_and_b32 s94, s94, 0xff")
    def swait(self, loads, regs, ref, eq):
        if not self.o.swait: return
        a = self.a; top = self.lab("sw"); out = self.lab("swo"); again = self.lab("swa")
        a(f"s_cbranch_execz {out}\ns_mov_b32 s61, 0\n{top}:")
        loads()
        a("s_waitcnt lgkmcnt(0)")
        for r in regs:
            a(f"s_cmp_{'lg' if eq else 'eq'}_u32 s{r}, {ref}\ns_cbranch_scc1 {again}")
        a(f"s_branch {out}\n{again}:")
        a(f"s_add_u32 s61, s61, 1\ns_cmp_lt_u32 s61, 0x8000\ns_cbranch_scc1 {top}\n{out}:")
    def chk_sent(self, regs, t):
        a = self.a
        regs = list(regs)
        if len(regs) == 1:
            a(f"v_cmp_eq_u32 vcc, -1, v{regs[0]}"); return
        if len(regs) % 2 == 0:
            a(f"v_max_u32 v{t}, v{regs[0]}, v{regs[1]}"); rest = regs[2:]
        else:
            a(f"v_max3_u32 v{t}, v{regs[0]}, v{regs[1]}, v{regs[2]}"); rest = regs[3:]
        for i in range(0, len(rest), 2): a(f"v_max3_u32 v{t}, v{t}, v{rest[i]}, v{rest[i+1]}")
        a(f"v_cmp_eq_u32 vcc, -1, v{t}")
    def tag(self, regs, rnd=False):
        for r in regs:
            if rnd: self.a(f"v_add_u32 v{r}, 0x80, v{r}")
            self.a(f"v_bfi_b32 v{r}, s98, v18, v{r}")
    def chk_tag(self, regs, t):
        a = self.a; regs = list(regs)
        a(f"v_xor_b32 v{t}, v{regs[0]}, v18")
        for r in regs[1:]: a(f"v_bitop3_b32 v{t}, v{r}, v18, v{t} bitop3:0xbe")
        a(f"v_and_b32 v{t}, s98, v{t}\nv_cmp_ne_u32 vcc, 0, v{t}")
    def sum4x4(self, base):
        a = self.a; b = base
        for h in (0, 2):
            a(f"v_pk_add_f32 v[{b+h}:{b+h+1}], v[{b+h}:{b+h+1}], v[{b+4+h}:{b+5+h}]")
            a(f"v_pk_add_f32 v[{b+8+h}:{b+9+h}], v[{b+8+h}:{b+9+h}], v[{b+12+h}:{b+13+h}]")
        for h in (0, 2):
            a(f"v_pk_add_f32 v[{b+h}:{b+h+1}], v[{b+h}:{b+h+1}], v[{b+8+h}:{b+9+h}]")
    def endwave(self):
        a = self.a
        a("s_cbranch_execz L_dry_ret")
        self.dump_stamps()
        a("s_endpgm")

    def build(self):
        a = self.a; o = self.o; D = o.depth; NT = o.nt; WNT = o.wnt; LNT = o.lnt
        a(header(256, 512, LDS_BYTES))
        a("s_cmp_ge_u32 s2, 256\ns_cbranch_scc1 L_end")
        a("s_load_dwordx16 s[16:31], s[0:1], 0\ns_load_dwordx8 s[32:39], s[0:1], 64\ns_load_dwordx4 s[40:43], s[0:1], 96")
        if o.stamps:
            a("s_memrealtime s[96:97]")
        a("v_lshrrev_b32 v1, 6, v0\nv_and_b32 v0, 63, v0\nv_readfirstlane_b32 s3, v1")
        a("s_and_b32 s4, s2, 7\ns_lshr_b32 s5, s2, 3\ns_lshr_b32 s6, s5, 3")
        if o.hx: a(f"s_add_u32 s60, s4, {o.hx}\ns_and_b32 s60, s60, 7\ns_lshl_b32 s60, s60, 2")
        else: a("s_lshl_b32 s60, s4, 2")
        a("s_add_u32 s6, s6, s60\ns_and_b32 s7, s5, 7")
        a("s_mov_b32 s12, 0x05040100\ns_mov_b32 s13, 0x07060302")
        a(f"v_mov_b32 v14, {L_FLAG}\nv_mov_b32 v15, 1")
        a("s_cmp_ge_u32 s3, 4\ns_cbranch_scc1 L_aux")
        a("v_lshrrev_b32 v4, 4, v0\nv_and_b32 v5, 15, v0\ns_lshl_b32 s60, s3, 2\nv_add_u32 v6, s60, v4")
        a("v_xor_b32 v2, v5, v6\nv_lshlrev_b32 v2, 4, v2\nv_lshl_add_u32 v2, v4, 8, v2\nv_lshlrev_b32 v3, 4, v0")
        a("s_lshl_b32 s62, s6, 20\ns_lshl_b32 s60, s7, 17\ns_add_u32 s62, s62, s60\ns_lshl_b32 s60, s3, 10\ns_add_u32 s62, s62, s60\ns_mov_b32 m0, s60\ns_mov_b32 s63, s62")
        a("s_waitcnt lgkmcnt(0)")
        self.stamp_init()
        self.srd(48, 18, 0x2000000)
        a("s_mov_b32 s61, 0")
        if o.d0 > 0:
            a("L_k1:")
            a(f"buffer_load_dwordx4 v2, s[48:51], s62 offen {NT} lds")
            a(f"s_addk_i32 s62, 0x1000\ns_addk_i32 m0, 0x1000\ns_add_u32 s61, s61, 1\ns_cmp_lt_u32 s61, {o.d0}\ns_cbranch_scc1 L_k1")
        a("s_barrier")
        N = 64
        VB = 128
        Vr = [[VB + 4 * t + k for k in range(4)] for t in range(32)]
        trig = sorted([(o.t1, C_T1), (o.t2, C_T2), (o.t3, C_T3)])
        Tfree = [32, 33, 34, 35]; pairs = {}
        cur = o.d0; j = 0
        first = True
        for n, c in [(n, c) for n, c in trig if n <= 32] + [(32, None)]:
            if n > cur:
                lb = f"L_k2_{j}"; j += 1
                a(f"{lb}:\ns_waitcnt vmcnt({D-1})")
                a(f"buffer_load_dwordx4 v2, s[48:51], s62 offen {NT} lds")
                a(f"s_addk_i32 s62, 0x1000\ns_addk_i32 m0, 0x1000\ns_add_u32 s61, s61, 1\ns_cmp_lt_u32 s61, {n}\ns_cbranch_scc1 {lb}")
                cur = n
            if first:
                first = False
                a("s_load_dword s9, s[42:43], 0")
                self.srd(52, 20, 0x2000000); self.srd(44, 42, 0x10000000)
                a("s_mov_b32 s8, s3\ns_mov_b32 s10, 0\ns_mov_b32 s11, 0\ns_mov_b32 s98, 0xff\ns_mov_b32 s95, 0")
                for r in list(range(7, 14)) + [157, 158, 159]: a(f"v_mov_b32 v{r}, 0")
            if c is not None: self.cnt_add(c)
        self.stamp(1)
        if o.stamps:
            a("s_getreg_b32 s60, hwreg(HW_REG_XCC_ID)\ns_add_u32 s60, s60, 1"); self.note(50, "s60")
        def doperm(u):
            nonlocal Tfree
            lo, hi, Tfree = self.permpair(Vr[2*u], Vr[2*u+1], Tfree)
            pairs[u] = (lo, hi)
        D2 = o.depth2 or D
        for t in range(32):
            n = 32 + t
            DD = D2 if t >= o.d2pos else D
            a(f"s_waitcnt vmcnt({DD-1})")
            if n - D == 31:
                self.cnt_add(C_K); self.stamp(2)
            for tn, c in trig:
                if tn == n and tn > 32: self.cnt_add(c)
            a(f"buffer_load_dwordx4 v[{Vr[t][0]}:{Vr[t][3]}], v3, s[52:55], s63 offen {NT}")
            if t < 31: a("s_addk_i32 s63, 0x1000")
            for u in range(16):
                if u not in pairs and 32 + 2*u + 1 <= n - DD: doperm(u)
        for tn, c in trig:
            if tn >= N: self.cnt_add(c)
        if o.sprio: a(f"s_setprio {o.sprio}")
        a(f"s_waitcnt lgkmcnt(0)\ns_add_u32 s9, s9, {TAGADD}\nv_mov_b32 v18, s9")
        self.stamp(3)
        a(f"v_lshlrev_b32 v7, 6, v6\nv_add_u32 v7, {L_PBUF}, v7")
        a(f"v_lshlrev_b32 v8, 5, v5\nv_lshl_add_u32 v8, v4, 3, v8\ns_lshl_b32 s60, s3, 9\ns_add_u32 s60, s60, {L_REDO}\nv_add_u32 v8, s60, v8")
        a(f"v_lshlrev_b32 v9, 4, v0\nv_add_u32 v10, {L_REDO}, v9\nv_mov_b32 v11, {L_LSUM}\nv_mov_b32 v12, 0\nv_lshlrev_b32 v13, 9, v0")
        a("L_pv:")
        a(f"s_lshl_b32 s60, s6, 3\ns_add_u32 s60, s60, s7\ns_lshl_b32 s63, s60, 4\ns_add_u32 s63, s63, {WS_ML}\ns_lshl_b32 s60, s60, 9\ns_add_u32 s62, s60, {WS_O}")
        ACC = list(range(36, 44)); P = list(range(48, 64))
        for k in ACC: a(f"v_mov_b32 v{k}, 0")
        self.spin_lds([C_P], 44)
        self.stamp(4)
        for q in range(4): a(f"ds_read_b128 v[{48+4*q}:{51+4*q}], v7 offset:{16*q}")
        a("s_waitcnt lgkmcnt(0)")
        for u in range(16):
            if u not in pairs:
                self.waitvm(30 - 2*u)
                doperm(u)
            lo, hi = pairs[u]
            for k in range(4):
                a(f"v_dot2c_f32_bf16 v{ACC[2*k]}, v{lo[k]}, v{P[u]}")
                a(f"v_dot2c_f32_bf16 v{ACC[2*k+1]}, v{hi[k]}, v{P[u]}")
        self.stamp(5)
        self.red8(ACC)
        a(f"ds_write_b64 v8, v[{ACC[0]}:{ACC[1]}]")
        self.last_arriver(C_O, "L_send", 44)
        a("s_mov_b64 s[76:77], exec\ns_mov_b32 exec_hi, 0")
        for q in range(4): a(f"ds_read_b128 v[{48+4*q}:{51+4*q}], v10 offset:{512*q}")
        a("ds_read_b128 v[64:67], v11\nds_read_b32 v68, v11 offset:16")
        a("s_waitcnt lgkmcnt(2)")
        self.sum4x4(48)
        self.tag(range(48, 52))
        a("buffer_store_dwordx4 v[48:51], v9, s[44:47], s62 offen sc1")
        a("s_and_b32 exec_lo, exec_lo, 1\ns_waitcnt lgkmcnt(0)")
        a("v_add_f32 v64, v64, v65\nv_add_f32 v66, v66, v67\nv_add_f32 v69, v64, v66")
        self.tag([68, 69])
        a("v_mov_b32 v70, v68\nv_mov_b32 v71, v69")
        a("buffer_store_dwordx4 v[68:71], v12, s[44:47], s63 offen sc1")
        if o.td:
            a(f"s_and_b32 exec_lo, s76, 0xff\ns_and_b32 s60, s5, 3\ns_lshl_b32 s60, s60, 7\ns_add_u32 s60, s60, {WS_CNT}")
            a("buffer_atomic_add v15, v13, s[44:47], s60 offen")
        a("s_mov_b64 exec, s[76:77]")
        self.stamp(6)
        if o.stamps and o.ackst:
            self.waitvm(0); self.stamp(31)
        a("L_send:")
        a("s_cbranch_execz L_dry_ret")
        self.get_ticket()
        self.note(51, "s94")
        a("s_cmp_ge_u32 s94, 216\ns_cbranch_scc1 L_wend")
        if o.cons == 1: a("s_mul_i32 s92, s94, 304\ns_lshr_b32 s92, s92, 13\ns_mul_i32 s93, s92, 27\ns_sub_u32 s93, s94, s93")
        elif o.cons == 3: a("s_mov_b32 s92, s4\ns_mov_b32 s93, s5")
        else: a("s_and_b32 s92, s94, 7\ns_lshr_b32 s93, s94, 3")
        WW = [[96 + 4*i + q for q in range(4)] for i in range(8)]
        GW = list(range(136, 146)); UW = list(range(146, 156)); XF = list(range(160, 165))
        GA = list(range(166, 171)); TT = list(range(172, 177)); SB = list(range(178, 183)); IN = list(range(184, 189))
        def ld5(b, so, vo):
            a(f"buffer_load_dwordx4 v[{b}:{b+3}], v{vo}, s[44:47], s{so} offen sc1\nbuffer_load_dword v{b+4}, v{vo}, s[44:47], s{so} offen offset:16 sc1")
        def ldmr():
            ld5(GA[0], 62, 8); ld5(SB[0], 63, 8); ld5(TT[0], 66, 8)
        def gpulls():
            self.srd(48, 28, 2211840); self.srd(52, 30, 2211840); self.srd(56, 16, 1280)
            a("s_mul_i32 s64, s92, 80\ns_mul_i32 s60, s8, 20\ns_add_u32 s64, s64, s60")
            a("s_mul_i32 s60, s64, 3456\ns_lshl_b32 s61, s93, 7\ns_add_u32 s60, s60, s61")
            a("v_lshrrev_b32 v158, 5, v0\nv_mul_u32_u24 v159, 34560, v158\nv_and_b32 v1, 31, v0\nv_lshl_add_u32 v159, v1, 2, v159")
            for k in range(10):
                a(f"buffer_load_dword v{GW[k]}, v159, s[48:51], s60 offen offset:{3456*(k%2)} {LNT}\nbuffer_load_dword v{UW[k]}, v159, s[52:55], s60 offen offset:{3456*(k%2)} {LNT}")
                if k % 2 == 1 and k < 9: a("s_addk_i32 s60, 6912")
            a("v_mul_u32_u24 v158, 20, v158\nv_and_b32 v1, 1, v0\nv_mul_u32_u24 v1, 10, v1\nv_add_u32 v158, v158, v1\ns_lshl_b32 s60, s64, 1")
            for k in range(5): a(f"v_mov_b32 v{XF[k]}, 0")
            for k in range(5): a(f"buffer_load_short_d16_hi v{XF[k]}, v158, s[56:59], s60 offen offset:{2*k}")
            a(f"v_lshlrev_b32 v8, 1, v158\ns_lshl_b32 s65, s64, 2\ns_add_u32 s62, s65, {WS_MR}\ns_add_u32 s63, s62, 2560\ns_add_u32 s66, s62, 5120")
            ldmr()
        def wids():
            if o.cons: a("s_mul_i32 s64, s94, 205\ns_lshr_b32 s64, s64, 11\ns_mul_i32 s65, s64, 10\ns_sub_u32 s65, s94, s65")
            else: a("s_and_b32 s64, s94, 15\ns_lshr_b32 s65, s94, 4")
            a("s_lshr_b32 s60, s8, 1\ns_lshl_b32 s66, s64, 1\ns_add_u32 s66, s66, s60\ns_and_b32 s67, s8, 1")
        a(f"s_cmp_ge_u32 s94, 160\ns_cbranch_scc1 L_G1\ns_cmp_lt_u32 s94, {o.gearly}\ns_cbranch_scc1 L_G1")
        self.spin_lds([C_A if o.gtrig == 2 else C_WL], 44, target=o.atgt)
        a("L_G1:")
        if o.gprio >= 0: a(f"s_setprio {o.gprio}")
        self.stamp(7)
        gpulls()
        a("L_Gprep:")
        a("s_mul_i32 s64, s92, 80\ns_mul_i32 s60, s8, 20\ns_add_u32 s64, s64, s60")
        a("v_lshrrev_b32 v158, 5, v0\nv_mul_u32_u24 v8, 40, v158\nv_and_b32 v159, 1, v0\nv_mul_u32_u24 v1, 20, v159\nv_add_u32 v8, v8, v1")
        a(f"s_lshl_b32 s65, s64, 2\ns_add_u32 s62, s65, {WS_MR}\ns_add_u32 s63, s62, 2560\ns_add_u32 s66, s62, 5120\ns_add_u32 s87, s65, {WS_Y}")
        a("v_mov_b32 v9, s12\nv_mov_b32 v10, 0x01000504\nv_cmp_eq_u32 vcc, 1, v159\nv_cndmask_b32 v9, v9, v10, vcc")
        a(f"s_lshl_b32 s60, s8, 9\ns_add_u32 s60, s60, {L_GU}\nv_lshlrev_b32 v11, 3, v0\nv_add_u32 v10, s60, v11")
        a(f"s_mul_i32 s60, s8, 528\ns_add_u32 s60, s60, {L_GZ}\nv_add_u32 v11, s60, v11")
        a(f"v_lshlrev_b32 v12, 2, v158\nv_lshl_add_u32 v12, v159, 3, v12\ns_add_u32 s60, s60, 512\nv_add_u32 v12, s60, v12")
        a(f"s_mul_i32 s60, s8, 80\ns_add_u32 s60, s60, {L_GX2}\nv_add_u32 v13, s60, v8")
        a(f"v_bfe_u32 v157, v0, 1, 4\nv_mul_u32_u24 v157, 2560, v157\nv_add_u32 v157, v157, v8")
        self.poll(ldmr, lambda: self.chk_tag(GA + SB + TT, 50), o.msleep, preloaded=True)
        self.stamp(27)
        Gp = []; Up = []; Tf = [156]
        for W, Lp in ((GW, Gp), (UW, Up)):
            for m in range(5):
                lo, hi, Tf = self.permpair([W[m]], [W[5+m]], Tf); Lp.append((lo[0], hi[0]))
        for k in range(5):
            self.hi(GA[k], GA[k]); self.hi(TT[k], TT[k])
            a(f"v_add_f32 v{TT[k]}, 1.0, v{TT[k]}")
        def pack5(src, keep=None):
            for k in range(5): a(f"v_cvt_pk_bf16_f32 v{52+k}, v{src[k]}, v{src[k]}")
            for k in range(5): a(f"v_mov_b32_dpp v{58+k}, v{52+k} quad_perm:[1,0,3,2] row_mask:0xf bank_mask:0xf")
            if keep:
                for k in range(5): self.lo(keep[k], 52 + k)
            for k in range(5): a(f"v_perm_b32 v{IN[k]}, v{58+k}, v{52+k}, v9")
        def gpass():
            for m in range(5):
                for i, (Lp, b) in enumerate(((Gp, 64), (Up, 66))):
                    for h in range(2):
                        if m == 0: a(f"v_dot2_f32_bf16 v{b+h}, v{Lp[m][h]}, v{IN[m]}, 0")
                        else: a(f"v_dot2c_f32_bf16 v{b+h}, v{Lp[m][h]}, v{IN[m]}")
        def gred():
            a("v_permlane32_swap_b32 v64, v66\nv_permlane32_swap_b32 v65, v67\nv_pk_add_f32 v[64:65], v[64:65], v[66:67]")
        pack5(TT, keep=TT); gpass(); gred()
        a("ds_write_b64 v10, v[64:65]")
        for k in range(5): self.hi(SB[k], SB[k])
        pack5(SB); gpass(); gred()
        a("ds_write_b64 v10, v[64:65] offset:2048")
        a(f"s_mul_i32 s67, s92, 27\ns_add_u32 s67, s67, s93\ns_mul_i32 s88, s67, 640\ns_add_u32 s88, s88, {WS_Z}")
        self.last_arriver(C_U, "L_Gprepd", 50)
        a(f"v_lshlrev_b32 v158, 11, v158\nv_and_b32 v159, 31, v0\nv_lshl_add_u32 v158, v159, 4, v158\nv_add_u32 v158, {L_GU}, v158\nv_lshlrev_b32 v159, 4, v0")
        for q in range(4): a(f"ds_read_b128 v[{68+4*q}:{71+4*q}], v158 offset:{512*q}")
        a(f"s_lshl_b32 s60, s67, 10\ns_add_u32 s60, s60, {WS_U}\ns_waitcnt lgkmcnt(0)")
        self.sum4x4(68); self.tag(range(68, 72))
        a("buffer_store_dwordx4 v[68:71], v159, s[44:47], s60 offen sc1")
        a("L_Gprepd:")
        self.stamp(28)
        a("L_Gtail:")
        if o.gprio >= 0: a(f"s_setprio 3")
        a(f"v_lshlrev_b32 v159, 4, v0\nv_add_u32 v158, {L_GZ}, v159")
        YY = list(range(44, 49)); YL = list(range(92, 97))
        a("s_cbranch_execz L_Gpw\ns_cmp_ge_u32 s94, 160\ns_cbranch_scc1 L_Gpw")
        self.spin_lds([C_YA if o.yack else C_W], 44, target=1 if o.yack else 4)
        a("s_branch L_Gb\nL_Gpw:")
        self.prewait(lambda: a(f"buffer_load_dwordx4 v[92:95], v157, s[44:47], s87 offen sc1"), lambda: self.chk_tag(range(92, 96), 50), 0x01010101, 0, o.preb)
        a("L_Gb:")
        self.stamp(39)
        self.ppoll(lambda: ld5(YL[0], 87, 157), lambda: self.chk_tag(YL, 50), 2, o.bo_b, 35, rl=52, pipe=o.pipeb)
        self.stamp(29)
        for k in range(5): a(f"v_add_f32_dpp v{YY[k]}, v{YL[k]}, v{YL[k]} quad_perm:[2,3,0,1] row_mask:0xf bank_mask:0xf")
        for n in (4, 8):
            for k in range(5): self.ror(YY[k], n)
        for k in range(5): a(f"v_mov_b32 v{52+k}, v{YY[k]}")
        for k in range(5): a(f"v_permlane16_swap_b32 v{52+k}, v{YY[k]}")
        for k in range(5): a(f"v_add_f32 v{YY[k]}, v{YY[k]}, v{52+k}")
        for k in range(5): a(f"v_fma_f32 v{YY[k]}, v{YY[k]}, v{GA[k]}, v{XF[k]}")
        ZZ = list(range(70, 75))
        for k in range(5): a(f"v_mul_f32 v{ZZ[k]}, v{YY[k]}, v{TT[k]}")
        pack5(ZZ); gpass()
        a("v_add_f32 v76, v44, v45\nv_mul_f32 v77, v44, v44\nv_add_f32 v78, v46, v47\nv_fmac_f32 v77, v45, v45\nv_add_f32 v76, v76, v48\nv_fmac_f32 v77, v46, v46\nv_add_f32 v76, v76, v78\nv_fmac_f32 v77, v47, v47\nv_fmac_f32 v77, v48, v48")
        gred()
        a("ds_write_b64 v11, v[64:65]")
        a("v_permlane32_swap_b32 v76, v77\nv_add_f32 v76, v76, v77")
        self.allred(76, 50, bits=(0,))
        a("ds_write_b32 v12, v76")
        for k in range(5): a(f"ds_write_b32 v13, v{YY[k]} offset:{4*k}")
        self.last_arriver(C_Z, "L_wend", 50)
        a("s_and_b32 exec_hi, exec_hi, 1")
        for q in range(4): a(f"ds_read_b128 v[{120+4*q}:{123+4*q}], v158 offset:{528*q}")
        a("s_waitcnt lgkmcnt(0)")
        self.sum4x4(120); self.tag(range(120, 124))
        a("buffer_store_dwordx4 v[120:123], v159, s[44:47], s88 offen sc1")
        self.stamp(30)
        a("s_cbranch_execz L_Gx2\ns_cmp_lg_u32 s93, 0\ns_cbranch_scc1 L_wend\nL_Gx2:")
        a(f"s_and_b32 exec_lo, exec_lo, 0xfffff\ns_mov_b32 exec_hi, 0\nv_add_u32 v158, {L_GX2}, v159\nds_read_b128 v[52:55], v158")
        a(f"s_mul_i32 s60, s92, 320\ns_add_u32 s60, s60, {WS_X2}\ns_waitcnt lgkmcnt(0)")
        self.tag(range(52, 56))
        a("buffer_store_dwordx4 v[52:55], v159, s[44:47], s60 offen sc1")
        a("s_branch L_wend")
        a("L_wend:")
        self.endwave()

        a("L_aux:")
        if o.prio: a(f"s_setprio {o.prio}")
        a("s_sub_u32 s8, s3, 4")
        a("v_lshlrev_b32 v6, 2, v0\ns_cmp_lg_u32 s8, 0\ns_cbranch_scc1 L_noinit")
        a(f"v_add_u32 v16, v14, v6\nv_mov_b32 v17, 0\nds_write_b32 v16, v17\nL_noinit:")
        CR = list(range(160, 165))
        WM = [[96 + 4*k + q for q in range(4)] for k in range(5)]
        XR = list(range(166, 171)); XP = 171
        WQ = list(range(136, 156))
        a("s_mul_i32 s67, s2, 205\ns_lshr_b32 s67, s67, 12\ns_mul_i32 s60, s67, 20\ns_sub_u32 s66, s2, s60")
        a("s_cmp_lt_u32 s2, 80\ns_cbranch_scc1 L_unit")
        a("s_sub_u32 s61, s2, 80\ns_mul_i32 s67, s61, 205\ns_lshr_b32 s67, s67, 13\ns_mul_i32 s60, s67, 40\ns_sub_u32 s66, s61, s60\ns_add_u32 s66, s66, 20")
        a("L_unit:")
        a("s_mul_i32 s68, s67, 160\ns_mul_i32 s60, s8, 40\ns_add_u32 s68, s68, s60")
        a("s_mul_i32 s69, s68, 7680\ns_lshl_b32 s60, s66, 7\ns_add_u32 s69, s69, s60\ns_lshl_b32 s68, s68, 1")
        a("v_lshrrev_b32 v3, 3, v0\nv_mul_u32_u24 v5, 7680, v3\nv_and_b32 v4, 7, v0\nv_lshl_add_u32 v5, v4, 4, v5\nv_lshlrev_b32 v3, 1, v3")
        a("s_mul_i32 s70, s7, 80\ns_mul_i32 s61, s8, 20\ns_add_u32 s70, s70, s61")
        a("s_lshl_b32 s71, s70, 13\ns_lshl_b32 s61, s6, 8\ns_add_u32 s71, s71, s61")
        a("s_waitcnt lgkmcnt(0)")
        self.stamp_init()
        a("s_load_dword s9, s[42:43], 0")
        self.srd(44, 42, 0x10000000)
        if o.td:
            a(f"s_add_u32 s60, s2, s8\ns_cmp_lg_u32 s60, 0\ns_cbranch_scc1 L_nocnt\nv_lshlrev_b32 v7, 7, v0\nv_mov_b32 v8, 0\ns_mov_b32 s60, {WS_CNT}")
            a("buffer_store_dword v8, v7, s[44:47], s60 offen sc1\nL_nocnt:")
        a("s_cmp_ge_u32 s2, 240\ns_cbranch_scc1 L_noprod")
        self.srd(52, 36, 4915200); self.srd(48, 34, 1280)
        for k in range(5):
            if not o.nofront: a(f"buffer_load_dwordx4 v[{WM[k][0]}:{WM[k][3]}], v5, s[52:55], s69 offen {WNT}")
            if k < 4: a("s_add_u32 s69, s69, 61440")
        for k in range(5): a(f"buffer_load_ushort v{CR[k]}, v3, s[48:51], s68 offen offset:{16*k}")
        a("L_noprod:")
        if o.codepf:
            a(f"s_cmp_lg_u32 s8, 1\ns_cbranch_scc1 L_ncp\ns_getpc_b64 s[78:79]\nL_cp:\ns_sub_u32 s78, s78, L_cp-{NAME}_kernel\ns_subb_u32 s79, s79, 0")
            a(f"s_mul_i32 s60, s5, {o.codepf}\nv_min_u32 v7, {o.codepf-1}, v0\nv_add_u32 v7, s60, v7\nv_lshlrev_b32 v7, 7, v7\nv_min_u32 v7, L_end-{NAME}_kernel, v7")
            a("global_load_dword v21, v7, s[78:79]\nL_ncp:")
        if o.b1early: a("s_barrier")
        self.srd(52, 22, 5242880); self.srd(48, 16, 1280)
        for k in range(20):
            if not o.nofront: a(f"buffer_load_dword v{WQ[k]}, v6, s[52:55], s71 offen {WNT}")
            if k < 19: a("s_addk_i32 s71, 0x2000")
        a("v_lshrrev_b32 v16, 4, v0\nv_and_b32 v17, 15, v0\nv_min_u32 v17, 9, v17")
        a("v_mul_u32_u24 v4, 20, v0\ns_lshl_b32 s61, s70, 1\nv_lshlrev_b32 v5, 2, v17")
        a(f"buffer_load_dwordx4 v[{XR[0]}:{XR[3]}], v4, s[48:51], 0 offen\nbuffer_load_dword v{XR[4]}, v4, s[48:51], 0 offen offset:16")
        a(f"buffer_load_dword v{XP}, v5, s[48:51], s61 offen")
        a("s_waitcnt lgkmcnt(0)")
        if not o.b1early: a("s_barrier")
        self.stamp(1)
        a(f"s_add_u32 s9, s9, {TAGADD}\ns_mov_b32 s98, 0xff\nv_mov_b32 v18, s9")
        for r in [2] + list(range(7, 14)) + [157, 158, 159]: a(f"v_mov_b32 v{r}, 0")
        a("s_mov_b32 s10, 0\ns_sub_u32 s11, s2, 160\ns_cmp_lt_u32 s11, 40\ns_cselect_b32 s10, 3, 0\ns_mov_b32 s95, 0\ns_mov_b32 s92, 0\ns_mov_b32 s93, 0\ns_mov_b32 s94, 0")
        a("L_roled:")
        if o.fdry:
            a("s_mov_b64 exec, 0\ns_branch L_front")
        a("L_fdry_ret:\ns_mov_b64 exec, -1")
        self.stamp(2)
        a("L_front:")
        a("s_cmp_ge_u32 s2, 240\ns_cbranch_scc1 L_ln1")
        self.waitvm(23)
        self.stamp(20)
        for k in range(5):
            x, e = CR[k], 44 + k
            a(f"v_lshlrev_b32 v{x}, 16, v{x}\nv_mul_f32 v{e}, 0xbfb8aa3b, v{x}\nv_exp_f32 v{e}, v{e}")
        for k in range(5): a(f"v_add_f32 v{44+k}, 1.0, v{44+k}\nv_rcp_f32 v{44+k}, v{44+k}")
        for k in range(5): a(f"v_mul_f32 v{44+k}, v{CR[k]}, v{44+k}")
        a("v_cvt_pk_bf16_f32 v36, v44, v45\nv_cvt_pk_bf16_f32 v37, v46, v47\nv_cvt_pk_bf16_f32 v38, v48, 0")
        ACC = list(range(48, 56))
        for k in ACC: a(f"v_mov_b32 v{k}, 0")
        Tf = [44, 45, 46, 47]
        for m in range(2):
            lo, hi, Tf = self.permpair(WM[2*m], WM[2*m+1], Tf)
            for k in range(4):
                a(f"v_dot2c_f32_bf16 v{ACC[2*k]}, v{lo[k]}, v{36+m}\nv_dot2c_f32_bf16 v{ACC[2*k+1]}, v{hi[k]}, v{36+m}")
        for k in range(4):
            a(f"v_and_b32 v{Tf[k]}, 0xffff, v{WM[4][k]}\nv_lshrrev_b32 v{WM[4][k]}, 16, v{WM[4][k]}")
            a(f"v_dot2c_f32_bf16 v{ACC[2*k]}, v{Tf[k]}, v38\nv_dot2c_f32_bf16 v{ACC[2*k+1]}, v{WM[4][k]}, v38")
        self.red8(ACC); self.ror(48, 8); self.ror(49, 8)
        a(f"s_lshl_b32 s60, s8, 8\ns_add_u32 s60, s60, {L_RED1}\nv_and_b32 v3, 7, v0\nv_lshlrev_b32 v2, 5, v3\nv_lshl_add_u32 v2, v16, 3, v2\nv_add_u32 v2, s60, v2")
        a("ds_write_b64 v2, v[48:49]")
        self.last_arriver(C_F1, "L_ln1", 44)
        a(f"v_lshlrev_b32 v3, 3, v0\nv_add_u32 v3, {L_RED1}, v3\nv_lshlrev_b32 v2, 4, v0\ns_mov_b64 s[14:15], exec\ns_mov_b32 exec_hi, 0")
        for q in range(4): a(f"ds_read_b64 v[{44+2*q}:{45+2*q}], v3 offset:{256*q}")
        a("s_mul_i32 s67, s2, 205\ns_lshr_b32 s67, s67, 12\ns_mul_i32 s60, s67, 20\ns_sub_u32 s66, s2, s60")
        a("s_cmp_lt_u32 s2, 80\ns_cbranch_scc1 L_unit2")
        a("s_sub_u32 s61, s2, 80\ns_mul_i32 s67, s61, 205\ns_lshr_b32 s67, s67, 13\ns_mul_i32 s60, s67, 40\ns_sub_u32 s66, s61, s60\ns_add_u32 s66, s66, 20")
        a("L_unit2:")
        a(f"s_mul_i32 s60, s67, 30720\ns_lshl_b32 s61, s66, 9\ns_add_u32 s60, s60, s61\ns_add_u32 s60, s60, {WS_G1}")
        a("s_waitcnt lgkmcnt(0)")
        a("v_pk_add_f32 v[44:45], v[44:45], v[46:47]\nv_pk_add_f32 v[48:49], v[48:49], v[50:51]\nv_pk_add_f32 v[44:45], v[44:45], v[48:49]")
        a("v_mov_b32 v46, v45\nv_mov_b32 v45, s9\nv_mov_b32 v47, s9\nv_mov_b32 v4, 0")
        if not o.nostore: a("buffer_store_dwordx4 v[44:47], v2, s[44:47], s60 offen sc1")
        a("s_mov_b64 exec, s[14:15]")
        self.stamp(3)
        a("L_ln1:")
        if o.fdry == 1: a("s_cbranch_execz L_fdry_ret")
        self.waitvm(2)
        self.stamp(21)
        a("s_nop 0")
        WQp = []; WQf = [64]
        for m in range(10):
            lo, hi, WQf = self.permpair([WQ[2*m]], [WQ[2*m+1]], WQf)
            WQp.append((lo[0], hi[0]))
        self.waitvm(0)
        X = list(range(48, 58))
        for m in range(5):
            self.lo(X[2*m], XR[m]); self.hi(X[2*m+1], XR[m])
        a(f"v_add_f32 v58, v{X[0]}, v{X[1]}")
        for k in range(2, 10): a(f"v_add_f32 v58, v58, v{X[k]}")
        self.allred(58, 59)
        a("v_mul_f32 v58, 0x3acccccd, v58")
        a("v_mov_b32 v60, 0")
        for k in range(10): a(f"v_sub_f32 v{X[k]}, v{X[k]}, v58\nv_fmac_f32 v60, v{X[k]}, v{X[k]}")
        self.allred(60, 59)
        a("v_mul_f32 v60, 0x3acccccd, v60")
        self.round2(58, 60, 59)
        a("v_add_f32 v60, 0x3727c5ac, v60")
        self.round2(60, 61, 59)
        a("v_sqrt_f32 v60, v60")
        self.round2(60, 61, 59)
        a("v_rcp_f32 v60, v60")
        self.lo(62, XP); self.hi(63, XP)
        a("v_sub_f32 v62, v62, v58\nv_sub_f32 v63, v63, v58")
        self.round2(62, 63, 59)
        a("v_mul_f32 v62, v62, v60\nv_mul_f32 v63, v63, v60")
        self.round2(62, 63, 59)
        a("s_mul_i32 s60, s7, 80\ns_mul_i32 s61, s8, 20\ns_add_u32 s60, s60, s61")
        a("v_mul_u32_u24 v2, 30720, v16\nv_lshl_add_u32 v2, v17, 4, v2")
        a(f"s_lshl_b32 s62, s60, 3\ns_add_u32 s62, s62, {WS_G1}\ns_add_u32 s63, s62, 5120")
        if o.pretouch:
            a(f"s_cmp_lg_u32 s8, 3\ns_cbranch_scc1 L_npt\ns_mul_i32 s60, s2, {21*128}\ns_add_u32 s60, s60, {WS_O}\nv_min_u32 v44, 20, v0\nv_lshlrev_b32 v44, 7, v44")
            a(f"buffer_load_dword v45, v44, s[44:47], s60 offen {o.ptf}\nL_npt:")
        if o.w1dry:
            a("s_mov_b64 exec, 0\ns_cmp_eq_u32 s8, 0\ns_cbranch_scc1 L_h1b\ns_cmp_eq_u32 s8, 1\ns_cbranch_scc1 L_h2b\ns_branch L_qk2")
            a("L_w1_ret:\ns_mov_b64 exec, -1")
            a("s_mul_i32 s60, s7, 80\ns_mul_i32 s61, s8, 20\ns_add_u32 s60, s60, s61")
            a(f"s_lshl_b32 s62, s60, 3\ns_add_u32 s62, s62, {WS_G1}\ns_add_u32 s63, s62, 5120")
            self.stamp(2)
        a("L_h1b:")
        self.spin_lds([C_T1], 46)
        self.stamp(22)
        def ld():
            a("buffer_load_dwordx4 v[44:47], v2, s[44:47], s62 offen sc1\nbuffer_load_dwordx4 v[48:51], v2, s[44:47], s63 offen sc1")
        def ck():
            a("v_xor_b32 v53, s9, v45\nv_xor_b32 v54, s9, v47\nv_xor_b32 v55, s9, v49\nv_xor_b32 v56, s9, v51")
            a("v_or3_b32 v53, v53, v54, v55\nv_or_b32 v53, v53, v56\nv_cmp_ne_u32 vcc, 0, v53")
        self.poll(ld, ck, o.fsleep, 32)
        self.stamp(4)
        for v in (44, 46, 48, 50): self.allred(v, 53, bits=(4, 5))
        self.round2(44, 46, 53); self.round2(48, 50, 53)
        a("v_add_f32 v48, 1.0, v48\nv_add_f32 v50, 1.0, v50")
        self.round2(48, 50, 53)
        a("v_mul_f32 v48, v62, v48\nv_mul_f32 v50, v63, v50")
        self.round2(48, 50, 53)
        a("v_add_f32 v48, v48, v44\nv_add_f32 v50, v50, v46\nv_cvt_pk_bf16_f32 v53, v48, v50")
        for m in range(10): a(f"v_readlane_b32 s{64+m}, v53, {m}")
        a("v_mov_b32 v44, 0\nv_mov_b32 v45, 0")
        for m in range(10):
            a(f"v_dot2c_f32_bf16 v44, s{64+m}, v{WQp[m][0]}\nv_dot2c_f32_bf16 v45, s{64+m}, v{WQp[m][1]}")
        a(f"s_lshl_b32 s60, s8, 9\ns_add_u32 s60, s60, {L_RED2}\nv_lshlrev_b32 v2, 3, v0\nv_add_u32 v2, s60, v2")
        a("ds_write_b64 v2, v[44:45]")
        self.last_arriver(C_F2, "L_h2", 46)
        a(f"v_lshlrev_b32 v2, 4, v0\nv_add_u32 v3, {L_RED2}, v2\ns_mov_b64 s[14:15], exec\ns_mov_b32 exec_hi, 0")
        for q in range(4): a(f"ds_read_b128 v[{44+4*q}:{47+4*q}], v3 offset:{512*q}")
        a(f"s_lshl_b32 s60, s6, 3\ns_add_u32 s60, s60, s7\ns_lshl_b32 s60, s60, 9\ns_add_u32 s60, s60, {WS_Q2}")
        a("s_waitcnt lgkmcnt(0)")
        self.sum4x4(44)
        self.tag(range(44, 48), rnd=True)
        if not o.nostore: a("buffer_store_dwordx4 v[44:47], v2, s[44:47], s60 offen sc1")
        a("s_mov_b64 exec, s[14:15]")
        self.stamp(5)
        a("L_h2:")
        if o.fdry == 2: a("s_cbranch_execz L_fdry_ret")
        if o.dry:
            if o.fdry == 3 or o.w1dry: a("s_cbranch_execz L_h2b")
            a("s_mov_b64 exec, 0")
            a("s_cmp_eq_u32 s8, 0\ns_cbranch_scc1 L_pv")
            a("s_cmp_eq_u32 s8, 1\ns_cbranch_scc1 L_D2")
            a("s_cmp_eq_u32 s8, 2\ns_cbranch_scc1 L_W2\ns_branch L_Gprep")
        a("L_dry_ret:\ns_mov_b64 exec, -1")
        self.stamp(24)
        a("L_h2b:")
        a("v_lshrrev_b32 v2, 3, v0\nv_lshlrev_b32 v2, 9, v2\nv_and_b32 v3, 7, v0\nv_lshl_add_u32 v2, v3, 4, v2")
        a(f"s_lshl_b32 s62, s6, 12\ns_lshl_b32 s60, s8, 7\ns_add_u32 s62, s62, s60\ns_add_u32 s62, s62, {WS_Q2}")
        a("s_cbranch_execz L_M\ns_cmp_lg_u32 s10, 3\ns_cbranch_scc1 L_Mend\ns_cmp_lg_u32 s8, 0\ns_cbranch_scc1 L_Mend\nL_M:")
        a("v_and_b32 v4, 15, v0\nv_mul_u32_u24 v5, 30720, v16\nv_lshl_add_u32 v5, v4, 5, v5\nv_lshlrev_b32 v4, 4, v4")
        a(f"s_lshl_b32 s63, s11, 9\ns_add_u32 s63, s63, {WS_G1 + 1280*8}\ns_lshl_b32 s64, s11, 8\ns_add_u32 s64, s64, {WS_MR}")
        def ld():
            a("buffer_load_dwordx4 v[44:47], v5, s[44:47], s63 offen sc1\nbuffer_load_dwordx4 v[48:51], v5, s[44:47], s63 offen offset:16 sc1")
        self.poll(ld, ck, o.fsleep)
        for v in (44, 46, 48, 50): self.allred(v, 53, bits=(4, 5))
        self.round2(44, 46, 53); self.round2(48, 50, 53)
        a("v_mov_b32 v45, v46\nv_mov_b32 v46, v48\nv_mov_b32 v47, v50")
        self.tag(range(44, 48))
        a("s_mov_b64 s[14:15], exec\ns_and_b32 exec_lo, exec_lo, 0xffff\ns_mov_b32 exec_hi, 0")
        if not o.nostore: a("buffer_store_dwordx4 v[44:47], v4, s[44:47], s64 offen sc1")
        a("s_mov_b64 exec, s[14:15]\nL_Mend:")
        self.spin_lds([C_T2], 44)
        self.stamp(23)
        if o.tickets:
            self.srd(48, 40, 256)
            a("s_cbranch_execz L_tk1\ns_cmp_lg_u32 s8, 0\ns_cbranch_scc1 L_tk1")
            a("s_and_b32 s63, s5, 3\ns_lshl_b32 s60, s63, 6\nv_mov_b32 v54, 1\nv_mov_b32 v55, 0\ns_mov_b64 s[14:15], exec\ns_and_b32 exec_lo, exec_lo, 1\ns_mov_b32 exec_hi, 0")
            a("buffer_atomic_add v54, v55, s[48:51], s60 offen sc0\ns_mov_b64 exec, s[14:15]\nL_tk1:")
        a("buffer_load_dwordx4 v[48:51], v2, s[44:47], s62 offen sc1")
        a("v_and_b32 v17, 15, v0")
        a(f"v_xor_b32 v4, v16, v17\nv_lshlrev_b32 v4, 4, v4\nv_lshl_add_u32 v4, v17, 8, v4\ns_lshl_b32 s60, s8, 15\nv_add_u32 v4, s60, v4")
        a("v_xor_b32 v5, 64, v4\nv_xor_b32 v6, 0x80, v4\nv_xor_b32 v7, 0xc0, v4")
        self.spin_lds([C_K], 44)
        for t in range(8):
            for s in range(4): a(f"ds_read_b128 v[{96+16*t+4*s}:{99+16*t+4*s}], v{4+s} offset:{4096*t}")
        self.poll(lambda: a("buffer_load_dwordx4 v[48:51], v2, s[44:47], s62 offen sc1"), lambda: self.chk_tag(range(48, 52), 52), o.fsleep, 33, preloaded=True)
        self.stamp(6)
        if o.tickets:
            a("s_cmp_lg_u32 s8, 0\ns_cbranch_scc1 L_tk2")
            a(f"s_mov_b64 s[14:15], exec\ns_and_b32 exec_lo, exec_lo, 1\ns_mov_b32 exec_hi, 0\nv_lshlrev_b32 v54, 2, v54\nv_add_u32 v54, s63, v54\nv_add_u32 v54, 1, v54\nds_write_b32 v14, v54 offset:{C_TKT}\ns_mov_b64 exec, s[14:15]\nL_tk2:")
        self.red4([48, 49, 50, 51]); self.ror(48, 8)
        a(f"s_lshl_b32 s60, s8, 6\ns_add_u32 s60, s60, {L_QBUF}\nv_lshlrev_b32 v3, 3, v3\nv_lshl_add_u32 v3, v16, 1, v3\nv_add_u32 v3, s60, v3")
        a("v_cvt_pk_bf16_f32 v48, v48, v48\nds_write_b16 v3, v48")
        self.cnt_add(C_Q)
        a("L_qk2:")
        a(f"v_lshlrev_b32 v6, 4, v16\nv_add_u32 v6, {L_QBUF}, v6")
        self.spin_lds([C_Q], 44)
        self.stamp(7)
        QF = 20
        for s in range(4): a(f"ds_read_b128 v[{QF+4*s}:{QF+4*s+3}], v6 offset:{64*s}")
        a("s_waitcnt lgkmcnt(0)")
        S = [36, 37]
        for s in range(4):
            for t in range(8):
                d = 224 + 4*t
                c = "0" if s == 0 else f"v[{d}:{d+3}]"
                a(f"v_mfma_f32_16x16x32_bf16 v[{d}:{d+3}], v[{QF+4*s}:{QF+4*s+3}], v[{96+16*t+4*s}:{99+16*t+4*s}], {c}")
        for t in range(8): a(f"v_mov_b32_dpp v{S[t//4]}, v{224+4*t} quad_perm:[0,1,2,3] row_mask:{hex(1<<(t%4))} bank_mask:0xf")
        self.round2(36, 37, 38)
        a("v_mul_f32 v36, 0x3db504f3, v36\nv_mul_f32 v37, 0x3db504f3, v37")
        self.round2(36, 37, 38)
        a("v_max_f32 v39, v36, v37")
        self.allred(39, 38, op="max")
        a(f"s_lshl_b32 s60, s8, 2\ns_add_u32 s60, s60, {L_MAXB}\nv_mov_b32 v2, s60\nv_mov_b32 v3, {L_MAXB}\nds_write_b32 v2, v39")
        self.cnt_add(C_MAX)
        self.spin_lds([C_MAX], 44)
        a("ds_read_b128 v[44:47], v3")
        a(f"s_lshl_b32 s60, s8, 4\ns_add_u32 s60, s60, {L_PBUF}\nv_lshlrev_b32 v2, 6, v17\nv_lshl_add_u32 v2, v16, 1, v2\nv_add_u32 v2, s60, v2")
        a("s_waitcnt lgkmcnt(0)")
        a("v_max3_f32 v44, v44, v45, v46\nv_max_f32 v40, v44, v47")
        a(f"v_sub_f32 v36, v36, v40\nv_sub_f32 v37, v37, v40\nv_mul_f32 v36, {hex(LOG2E)}, v36\nv_mul_f32 v37, {hex(LOG2E)}, v37\nv_exp_f32 v36, v36\nv_exp_f32 v37, v37")
        a("v_cvt_pk_bf16_f32 v38, v36, v37\nds_write_b16 v2, v38\nds_write_b16_d16_hi v2, v38 offset:8")
        self.lo(36, 38); self.hi(37, 38)
        a("v_add_f32 v41, v36, v37")
        self.allred(41, 38)
        a(f"s_lshl_b32 s60, s8, 2\ns_add_u32 s60, s60, {L_LSUM}\nv_mov_b32 v2, s60\nv_mov_b32 v3, {L_LSUM}\nds_write_b32 v2, v41\nds_write_b32 v3, v40 offset:16")
        self.cnt_add(C_P)
        self.stamp(8)
        if o.fdry == 3: a("s_cbranch_execz L_fdry_ret")
        if o.w1dry: a("s_cbranch_execz L_w1_ret")
        self.get_ticket()
        a("s_sub_u32 s11, s94, 202\ns_cmp_ge_u32 s94, 202\ns_cbranch_scc1 L_D0\ns_cmp_ge_u32 s94, 160\ns_cbranch_scc1 L_wend")
        self.spin_lds([C_T3], 44)
        a(f"s_cmp_ge_u32 s94, {o.wlate}\ns_cbranch_scc1 L_W1")
        self.spin_lds([C_O], 44)
        a("L_W1:")
        self.srd(48, 24, 5242880)
        wids()
        a("v_lshrrev_b32 v2, 3, v0\nv_mul_u32_u24 v2, 10240, v2\nv_and_b32 v3, 7, v0\nv_lshl_add_u32 v2, v3, 4, v2")
        a("s_lshl_b32 s60, s66, 1\ns_add_u32 s60, s60, s67\ns_mul_i32 s60, s60, 81920\ns_lshl_b32 s61, s65, 7\ns_add_u32 s60, s60, s61\ns_add_u32 s61, s60, 5120")
        for i in range(8): a(f"buffer_load_dwordx4 v[{WW[i][0]}:{WW[i][3]}], v2, s[48:51], s{60 + i//4} offen offset:{1280*(i%4)} {LNT}")
        a("L_W2:")
        wids()
        a("v_and_b32 v3, 7, v0\nv_lshlrev_b32 v2, 4, v3")
        a(f"v_lshrrev_b32 v4, 3, v0\nv_lshlrev_b32 v4, 5, v4\nv_lshl_add_u32 v4, v3, 9, v4")
        a(f"s_lshl_b32 s60, s8, 8\ns_add_u32 s60, s60, {L_REDW}\nv_lshlrev_b32 v5, 5, v3\nv_lshl_add_u32 v5, v16, 3, v5\nv_add_u32 v5, s60, v5")
        a(f"v_lshlrev_b32 v6, 4, v0\nv_add_u32 v7, {L_REDW}, v6")
        a(f"s_lshl_b32 s86, s66, 7\ns_add_u32 s86, s86, {WS_ML}\ns_lshl_b32 s84, s66, 12\ns_lshl_b32 s60, s67, 8\ns_add_u32 s84, s84, s60\ns_add_u32 s84, s84, {WS_O}")
        a(f"s_mul_i32 s85, s64, 2560\ns_lshl_b32 s60, s65, 8\ns_add_u32 s85, s85, s60\ns_add_u32 s85, s85, {WS_Y}")
        self.waitvm(0)
        Tf = [128, 129, 130, 131]; Wp = []
        for m in range(4):
            lo, hi, Tf = self.permpair(WW[2*m], WW[2*m+1], Tf); Wp.append((lo, hi))
        self.stamp(9)
        self.spin_lds([C_O], 44)
        if o.sml:
            a("s_cbranch_execz L_smo\ns_add_u32 s80, s42, s86\ns_addc_u32 s81, s43, 0\ns_mov_b32 s61, 0\nL_sm:")
            a("s_load_dwordx16 s[64:79], s[80:81], 0 glc\ns_load_dwordx8 s[48:55], s[80:81], 64 glc\ns_load_dword s56, s[80:81], 96 glc\ns_load_dword s57, s[80:81], 112 glc\ns_waitcnt lgkmcnt(0)")
            regs = [64, 68, 72, 76, 48, 52, 56, 57]
            a("s_xor_b32 s60, s64, s9")
            for r in regs[1:]: a(f"s_xor_b32 s{r}, s{r}, s9\ns_or_b32 s60, s60, s{r}")
            a(f"s_and_b32 s60, s60, 0xff\ns_cbranch_scc0 L_smo\ns_sleep {o.sml}\ns_add_u32 s61, s61, 1\ns_cmp_lt_u32 s61, 0x8000\ns_cbranch_scc1 L_sm\nL_smo:")
        self.stamp(38)
        a("L_Wtail:")
        def ld():
            a("buffer_load_dwordx4 v[52:55], v2, s[44:47], s86 offen sc1")
            a("buffer_load_dwordx4 v[44:47], v4, s[44:47], s84 offen sc1\nbuffer_load_dwordx4 v[48:51], v4, s[44:47], s84 offen offset:16 sc1")
        if o.gtrig == 1:
            a("s_cbranch_execz L_wl1")
            ld()
            a("L_wl1:")
            self.cnt_add(C_WL)
            self.poll(ld, lambda: self.chk_tag(list(range(44, 56)), 60), o.bo_a, 34, rl=40, preloaded=True)
        else:
            self.ppoll(ld, lambda: self.chk_tag(list(range(44, 56)), 60), 3, o.bo_a, 34, rl=40, pipe=o.pipea)
        self.cnt_add(C_A)
        self.stamp(11)
        a("v_and_b32 v62, 0xffff0000, v52\nv_mov_b32 v63, v62")
        self.allred(63, 60, op="max", bits=(0, 1, 2))
        a(f"v_sub_f32 v62, v62, v63\nv_mul_f32 v62, {hex(LOG2E)}, v62\nv_exp_f32 v56, v62\nv_mul_f32 v63, v53, v56")
        for k in range(0, 8, 2): a(f"v_pk_mul_f32 v[{64+k}:{65+k}], v[{44+k}:{45+k}], v[56:57] op_sel_hi:[1,0]")
        for bit in (0, 1, 2):
            self.allred(63, 60, bits=(bit,))
            for k in range(8): self.allred(64 + k, 60, bits=(bit,))
        a("v_rcp_f32 v56, v63")
        for k in range(0, 8, 2): a(f"v_pk_mul_f32 v[{64+k}:{65+k}], v[{64+k}:{65+k}], v[56:57] op_sel_hi:[1,0]")
        for m in range(4): a(f"v_cvt_pk_bf16_f32 v{72+m}, v{64+2*m}, v{65+2*m}")
        ACC = list(range(24, 32))
        for m in range(4):
            lo, hi = Wp[m]
            for k in range(4):
                if m == 0: a(f"v_dot2_f32_bf16 v{ACC[2*k]}, v{lo[k]}, v{72+m}, 0\nv_dot2_f32_bf16 v{ACC[2*k+1]}, v{hi[k]}, v{72+m}, 0")
                else: a(f"v_dot2c_f32_bf16 v{ACC[2*k]}, v{lo[k]}, v{72+m}\nv_dot2c_f32_bf16 v{ACC[2*k+1]}, v{hi[k]}, v{72+m}")
        self.red8(ACC)
        self.ror(24, 8); self.ror(25, 8)
        a("ds_write_b64 v5, v[24:25]")
        self.last_arriver(C_W, "L_Wfin", 60)
        a("s_mov_b64 s[76:77], exec\ns_and_b32 exec_lo, exec_lo, 0xffff\ns_mov_b32 exec_hi, 0")
        for q in range(4): a(f"ds_read_b128 v[{76+4*q}:{79+4*q}], v7 offset:{256*q}")
        a("s_waitcnt lgkmcnt(0)")
        self.sum4x4(76)
        self.tag(range(76, 80))
        a("buffer_store_dwordx4 v[76:79], v6, s[44:47], s85 offen sc1\ns_mov_b64 exec, s[76:77]")
        self.stamp(12)
        if o.yack:
            self.waitvm(0); self.cnt_add(C_YA); self.stamp(31)
        a("L_Wfin:")
        a("s_cbranch_execz L_final\ns_cmp_lg_u32 s8, 0\ns_cbranch_scc1 L_wend\ns_cmp_lt_u32 s94, 40\ns_cbranch_scc1 L_final\ns_branch L_wend")
        a("L_D0:")
        self.spin_lds([C_O], 44)
        DW = [[96 + 2*n + q for q in range(2)] for n in range(32)]
        a("L_D1:")
        self.srd(48, 32, 2211840)
        def dids():
            a("s_mul_i32 s64, s8, 192\ns_cmp_eq_u32 s8, 3\ns_cselect_b32 s64, 512, s64\ns_cmp_ge_u32 s8, 2\ns_cselect_b32 s65, 31, 47")
        dids()
        a("v_min_u32 v4, s65, v0\nv_lshlrev_b32 v2, 3, v4\ns_lshl_b32 s60, s64, 1\ns_mul_i32 s61, s11, 40960\ns_add_u32 s61, s61, s60")
        for n in range(32):
            a(f"buffer_load_dwordx2 v[{DW[n][0]}:{DW[n][1]}], v2, s[48:51], s61 offen offset:{1280*(n%4)} {LNT}")
            if n % 4 == 3 and n < 31: a("s_addk_i32 s61, 5120")
        a("L_D2:")
        dids()
        a("v_min_u32 v4, s65, v0\nv_lshlrev_b32 v4, 4, v4")
        a(f"s_mul_i32 s70, s11, 2560\ns_lshl_b32 s60, s64, 2\ns_add_u32 s70, s70, s60\ns_add_u32 s70, s70, {WS_OP}")
        a("v_lshrrev_b32 v5, 3, v0\nv_and_b32 v6, 7, v0\nv_lshlrev_b32 v6, 4, v6")
        a("v_mul_u32_u24 v7, 17280, v5\nv_add_u32 v8, v7, v6\nv_mul_u32_u24 v9, 27648, v5\nv_add_u32 v9, v9, v6")
        a("s_lshr_b32 s60, s11, 1\ns_and_b32 s61, s11, 1\ns_lshl_b32 s61, s61, 7")
        a(f"s_mul_i32 s66, s60, 640\ns_add_u32 s66, s66, {WS_Z}\ns_add_u32 s67, s66, s61\ns_lshl_b32 s68, s60, 10\ns_add_u32 s68, s68, s61\ns_add_u32 s68, s68, {WS_U}")
        self.waitvm(0)
        Tf = [160, 161]; Dp = []
        for m in range(16):
            lo, hi, Tf = self.permpair(DW[2*m], DW[2*m+1], Tf); Dp.append((lo, hi))
        self.stamp(9)
        def ld():
            for q in range(4): a(f"buffer_load_dwordx4 v[{44+4*q}:{47+4*q}], v9, s[44:47], s68 offen offset:{256*q} sc1")
        self.poll(ld, lambda: self.chk_tag(range(44, 60), 64), o.usleep, 37)
        def R(b):
            for k in range(4): a(f"v_permlane32_swap_b32 v{b+k}, v{b+4+k}")
            a(f"v_pk_add_f32 v[{b}:{b+1}], v[{b}:{b+1}], v[{b+4}:{b+5}]\nv_pk_add_f32 v[{b+2}:{b+3}], v[{b+2}:{b+3}], v[{b+6}:{b+7}]")
            a(f"v_permlane16_swap_b32 v{b}, v{b+2}\nv_permlane16_swap_b32 v{b+1}, v{b+3}\nv_pk_add_f32 v[{b}:{b+1}], v[{b}:{b+1}], v[{b+2}:{b+3}]")
            self.ror(b, 8); self.ror(b + 1, 8)
        R(44); R(52)
        a("v_mov_b32 v20, v44\nv_mov_b32 v21, v45\nv_mov_b32 v22, v52\nv_mov_b32 v23, v53")
        a("v_mov_b32 v26, 0x3d372713\ns_cmp_ge_u32 s8, 2\ns_cselect_b32 s71, 0, 0xffff")
        self.stamp(10)
        if o.td: self.spin_lds([C_TD], 60, target=1)
        def ld0(): a("buffer_load_dwordx4 v[72:75], v7, s[44:47], s66 offen offset:512 sc1")
        def ld():
            ld0()
            a("buffer_load_dwordx4 v[64:67], v8, s[44:47], s67 offen sc1\nbuffer_load_dwordx4 v[68:71], v8, s[44:47], s67 offen offset:256 sc1")
        self.prewait(ld0, lambda: self.chk_tag(range(72, 76), 60), 0x01010101, 0x01010101, o.prez)
        self.ppoll(ld, lambda: self.chk_tag(range(64, 76), 60), 3, o.bo_z, 38, rl=40, pipe=o.pipez)
        self.stamp(11)
        for k in range(0, 10, 2): a(f"v_pk_mov_b32 v[{44+k}:{45+k}], v[{64+k}:{65+k}], v[{64+k}:{65+k}] op_sel:[0,1]")
        a("v_permlane32_swap_b32 v52, v53")
        for k in range(4): a(f"v_permlane32_swap_b32 v{44+k}, v{48+k}")
        a("v_add_f32 v52, v52, v53\nv_pk_add_f32 v[44:45], v[44:45], v[48:49]\nv_pk_add_f32 v[46:47], v[46:47], v[50:51]\nv_mov_b32 v53, v52")
        a("v_permlane16_swap_b32 v44, v46\nv_permlane16_swap_b32 v45, v47\nv_permlane16_swap_b32 v52, v53")
        a("v_pk_add_f32 v[44:45], v[44:45], v[46:47]\nv_add_f32 v52, v52, v53")
        self.ror(52, 8); self.ror(44, 8); self.ror(45, 8)
        a("v_mul_f32 v52, 0x3acccccd, v52")
        a("v_readlane_b32 s60, v52, 0\nv_readlane_b32 s61, v52, 32")
        a("v_mov_b32 v54, s60\nv_mov_b32 v55, s61\nv_fma_f32 v55, -v54, v54, v55\nv_add_f32 v55, 0x3727c5ac, v55\nv_rsq_f32 v56, v55")
        a("v_fma_f32 v44, -v54, v20, v44\nv_fma_f32 v45, -v54, v21, v45\nv_fma_f32 v44, v56, v44, v22\nv_fma_f32 v45, v56, v45, v23")
        a("v_mov_b32 v46, v44\nv_mov_b32 v47, v45\nv_permlane32_swap_b32 v44, v46\nv_permlane32_swap_b32 v45, v47")
        a("v_mul_f32 v48, v44, v44\nv_mul_f32 v49, v45, v45\nv_fma_f32 v48, v48, v26, 1.0\nv_fma_f32 v49, v49, v26, 1.0\nv_mul_f32 v48, v48, v44\nv_mul_f32 v49, v49, v45")
        a("v_mul_f32 v48, 0xc0135761, v48\nv_mul_f32 v49, 0xc0135761, v49\nv_exp_f32 v48, v48\nv_exp_f32 v49, v49\nv_mul_f32 v44, v44, v46\nv_mul_f32 v45, v45, v47")
        a("v_add_f32 v48, 1.0, v48\nv_add_f32 v49, 1.0, v49\nv_rcp_f32 v48, v48\nv_rcp_f32 v49, v49\nv_mul_f32 v44, v44, v48\nv_mul_f32 v45, v45, v49\nv_cvt_pk_bf16_f32 v44, v44, v45")
        for m in range(16): a(f"v_readlane_b32 s{72+m}, v44, {16*(m&1) + (m>>1)}")
        for m in range(16):
            lo, hi = Dp[m]
            for k in range(2):
                if m == 0: a(f"v_dot2_f32_bf16 v{48+2*k}, s{72+m}, v{lo[k]}, 0\nv_dot2_f32_bf16 v{49+2*k}, s{72+m}, v{hi[k]}, 0")
                else: a(f"v_dot2c_f32_bf16 v{48+2*k}, s{72+m}, v{lo[k]}\nv_dot2c_f32_bf16 v{49+2*k}, s{72+m}, v{hi[k]}")
        a("s_and_b32 exec_hi, exec_hi, s71")
        self.tag(range(48, 52))
        a("buffer_store_dwordx4 v[48:51], v4, s[44:47], s70 offen sc1")
        self.stamp(13)
        a("s_branch L_wend")
        a("L_final:")
        self.srd(52, 38, 1280)
        a("v_and_b32 v10, 3, v0\nv_lshlrev_b32 v10, 4, v10\ns_min_u32 s60, s94, 39\ns_lshl_b32 s69, s60, 6")
        a("v_lshrrev_b32 v2, 2, v0\nv_mul_u32_u24 v2, 2560, v2\nv_add_u32 v2, v2, v10\nv_lshrrev_b32 v3, 1, v10\nv_lshl_add_u32 v3, v16, 1, v3")
        a(f"s_add_u32 s62, s69, {WS_OP}\ns_add_u32 s63, s62, 40960\ns_add_u32 s64, s62, 81920\ns_add_u32 s65, s62, 122880\ns_add_u32 s66, s69, {WS_X2}\ns_lshr_b32 s67, s69, 1\ns_add_u32 s68, s69, {WS_MR + 7680}")
        self.spin_lds([C_Z], 44)
        def ld():
            a("buffer_load_dwordx4 v[60:63], v10, s[44:47], s66 offen sc1\nbuffer_load_dwordx4 v[64:67], v10, s[44:47], s68 offen sc1")
        self.poll(ld, lambda: self.chk_tag(range(60, 68), 68), o.xsleep)
        for g in range(4): a(f"v_mov_b32_dpp v24, v{64+g} quad_perm:[0,1,2,3] row_mask:{hex(1<<g)} bank_mask:0xf\nv_mov_b32_dpp v25, v{60+g} quad_perm:[0,1,2,3] row_mask:{hex(1<<g)} bank_mask:0xf")
        self.hi(24, 24)
        self.stamp(26)
        def ld():
            for u in range(3): a(f"buffer_load_dwordx4 v[{44+4*u}:{47+4*u}], v2, s[44:47], s{62+u} offen sc1")
            a("s_mov_b64 s[76:77], exec\ns_and_b32 exec_lo, exec_lo, 0xffffff\ns_mov_b32 exec_hi, 0")
            a("buffer_load_dwordx4 v[56:59], v2, s[44:47], s65 offen sc1\ns_mov_b64 exec, s[76:77]")
        for k in range(56, 60): a(f"v_and_b32 v{k}, s98, v18")
        self.prewait(lambda: a("buffer_load_dwordx4 v[44:47], v2, s[44:47], s62 offen sc1"), lambda: self.chk_tag(range(44, 48), 68), 0x00010001, 0x00010001, o.prec)
        self.ppoll(ld, lambda: self.chk_tag(range(44, 60), 68), 4, o.bo_c, 36, rl=52, pipe=o.pipec)
        self.stamp(14)
        a("v_pk_add_f32 v[60:61], v[44:45], v[48:49]\nv_pk_add_f32 v[62:63], v[46:47], v[50:51]\nv_pk_add_f32 v[64:65], v[52:53], v[56:57]\nv_pk_add_f32 v[66:67], v[54:55], v[58:59]")
        a("v_pk_add_f32 v[60:61], v[60:61], v[64:65]\nv_pk_add_f32 v[62:63], v[62:63], v[66:67]")
        self.red4([60, 61, 62, 63]); self.ror(60, 4); self.ror(60, 8)
        a("v_fma_f32 v60, v60, v24, v25\nv_cvt_pk_bf16_f32 v60, v60, v60")
        a("s_and_b32 exec_lo, exec_lo, 0x000f000f\ns_and_b32 exec_hi, exec_hi, 0x000f000f")
        a("buffer_store_short v60, v3, s[52:55], s67 offen")
        a("s_cbranch_execz L_dry_ret")
        a("s_cmp_lg_u32 s94, 0\ns_cbranch_scc1 L_fin2")
        a("s_mov_b64 exec, 1\nv_mov_b32 v6, 0\nbuffer_store_dword v18, v6, s[44:47], 0 offen sc1")
        a("L_fin2:")
        self.stamp(15)
        a("s_branch L_wend")
        a("L_end:\ns_endpgm")
        a(footer(256, 100, 256))
        if o.skipvm:
            L = []
            for i, line in enumerate(a.L):
                if "buffer_store" in line and "v19" not in line and "v18" not in line:
                    L += [f"    s_cbranch_execz L_sks{i}", line, f"L_sks{i}:"]
                else: L.append(line)
            a.L = L
        return a.text()

if __name__ == "__main__":
    ap = argparse.ArgumentParser()
    ap.add_argument("-o", default="k.s")
    for k, v in dict(depth=6, depth2=0, d2pos=12, d0=2, stamps=0, dry=1, fdry=0, prio=3, sprio=3, masked=1, swait=0, fsleep=8, msleep=4, tsleep=0, usleep=6,
                     nopoll=0, b1early=1, nofront=0, nostore=0, norole=0, nohopld=0, t1=18, t2=36, t3=0, tickets=1, wlate=160, gearly=160,
                     pipe=0, pgap=1, xsleep=4, preb=4, prez=4, prec=4, asleep=1, hx=0, ackst=0, td=0, tdnear=240, tdsleep=8, yack=1, pretouch=0, dynord=0, w1dry=0, codepf=6, cons=0, skipvm=1, sml=0, atgt=4, gtrig=1, gprio=0).items():
        ap.add_argument("--" + k, type=int, default=v)
    for k in ("nt", "wnt", "lnt"): ap.add_argument("--" + k, default="nt")
    ap.add_argument("--ptf", default="")
    for k in ("pipea", "pipeb", "pipez", "pipec"): ap.add_argument("--" + k, type=int, default=None)
    for k in ("bo_a", "bo_b", "bo_z", "bo_c"): ap.add_argument("--" + k, default="0")
    o = ap.parse_args()
    for k in ("bo_a", "bo_b", "bo_z", "bo_c"):
        v = [int(x) for x in getattr(o, k).split(",")]; setattr(o, k, v[0] if len(v) == 1 else tuple(v))
    for k in ("nt", "wnt", "lnt"):
        if getattr(o, k) == "pl": setattr(o, k, "")
    g = G(o); t = g.build()
    open(o.o, "w").write(t)
    print("nops inserted:", g.a.nops, "lines:", len(t.splitlines()))
```

```python
import sys, argparse
from asmlib import *

WS_EPOCH = 0x0
WS_CNT   = 0x1000
WS_MR    = 0x10000
WS_Q2    = 0x20000
WS_O     = 0x40000
WS_ML    = 0x60000
WS_X2    = 0x61000
WS_Y     = 0x62000
WS_OP    = 0x6C000
WS_Z     = 0x8E000
WS_U     = 0xB0000
WS_G1    = 0x100000
WS_STAMP = 0x200000
L_FLAG = 0x20000
C_F1, C_F2, C_Q, C_K, C_P, C_MAX, C_T1, C_T2, C_T3, C_O, C_W, C_U, C_Z, C_TKT, C_TD, C_YA, C_A, C_WL = [4*i for i in range(18)]
L_RED1 = 0x20100
L_RED2 = 0x20800
L_QBUF = 0x21000
L_MAXB = 0x21100
L_LSUM = 0x21110
L_PBUF = 0x21200
L_REDO = 0x21800
L_REDW = 0x22000
L_GU   = 0x22400
L_GZ   = 0x23400
L_GX2  = 0x23D00
LDS_BYTES = 0x24000
LOG2E = 0x3fb8aa3b
TAGADD = 0x61C88647

class G:
    def __init__(self, opt):
        self.o = opt
        self.a = Asm()
        self.n = 0
    def lab(self, p="L"):
        self.n += 1
        return f"{p}_{self.n}"
    def stamp(self, k):
        if not self.o.stamps: return
        a = self.a; sk = self.lab("st")
        a(f"s_cbranch_execz {sk}\ns_memrealtime s[96:97]\ns_waitcnt lgkmcnt(0)\nv_writelane_b32 v19, s96, {k}\n{sk}:")
    def note(self, k, sreg):
        if not self.o.stamps: return
        a = self.a; sk = self.lab("st")
        a(f"s_cbranch_execz {sk}\nv_writelane_b32 v19, {sreg}, {k}\n{sk}:")
    def stamp_init(self):
        if not self.o.stamps: return
        self.a("v_mov_b32 v19, 0\nv_writelane_b32 v19, s96, 0")
    def dump_stamps(self):
        if not self.o.stamps: return
        a = self.a
        a("s_mov_b64 exec, -1")
        a("s_lshl_b32 s60, s2, 3\ns_add_u32 s60, s60, s3\ns_lshl_b32 s60, s60, 8")
        a(f"s_add_u32 s60, s60, {WS_STAMP}\nv_lshlrev_b32 v1, 2, v0")
        if self.o.stamps == 2:
            self.srd(48, 40, 256)
            a("v_not_b32 v2, v19\nv_cmp_eq_u32 vcc, 0, v0\nv_cndmask_b32 v19, v19, v2, vcc")
            a("s_cmp_ge_u32 s3, 4\ns_cselect_b32 s60, 64, 0\ns_mov_b32 exec_lo, 0xffff\ns_mov_b32 exec_hi, 0")
            a("buffer_atomic_umax v19, v1, s[48:51], s60 offen")
        else:
            a(f"buffer_store_dword v19, v1, s[44:47], s60 offen")
    def waitvm(self, n):
        a = self.a; sk = self.lab("wv")
        a(f"s_cbranch_execz {sk}\ns_waitcnt vmcnt({n})\n{sk}:")
    def barrier(self):
        a = self.a; sk = self.lab("bar")
        a(f"s_cbranch_execz {sk}\ns_barrier\n{sk}:")
    def srd(self, q, ptr, size, off=0):
        a = self.a
        if off: a(f"s_add_u32 s{q}, s{ptr}, {off}\ns_addc_u32 s{q+1}, s{ptr+1}, 0")
        else: a(f"s_mov_b32 s{q}, s{ptr}\ns_mov_b32 s{q+1}, s{ptr+1}")
        a(f"s_mov_b32 s{q+2}, {size}\ns_mov_b32 s{q+3}, 0x20000")
    def lo(self, d, s): self.a(f"v_lshlrev_b32 v{d}, 16, v{s}")
    def hi(self, d, s): self.a(f"v_and_b32 v{d}, 0xffff0000, v{s}")
    def round2(self, x, y, t):
        self.a(f"v_cvt_pk_bf16_f32 v{t}, v{x}, v{y}"); self.lo(x, t); self.hi(y, t)
    def allred(self, v, t, op="add", bits=(0, 1, 2, 3, 4, 5)):
        a = self.a
        d = {0: "quad_perm:[1,0,3,2]", 1: "quad_perm:[2,3,0,1]", 2: "row_half_mirror", 3: "row_mirror"}
        for b in bits:
            if b < 4: a(f"v_{op}_f32_dpp v{v}, v{v}, v{v} {d[b]} row_mask:0xf bank_mask:0xf")
            else:
                a(f"v_mov_b32 v{t}, v{v}\nv_permlane{16 if b == 4 else 32}_swap_b32 v{t}, v{v}\nv_{op}_f32 v{v}, v{v}, v{t}")
    def ror(self, v, n): self.a(f"v_add_f32_dpp v{v}, v{v}, v{v} row_ror:{n} row_mask:0xf bank_mask:0xf")
    def red8(self, acc):
        a = self.a
        for k in range(4): a(f"v_permlane32_swap_b32 v{acc[k]}, v{acc[k+4]}")
        for k in range(4): a(f"v_add_f32 v{acc[k]}, v{acc[k]}, v{acc[k+4]}")
        for k in range(2): a(f"v_permlane16_swap_b32 v{acc[k]}, v{acc[k+2]}")
        for k in range(2): a(f"v_add_f32 v{acc[k]}, v{acc[k]}, v{acc[k+2]}")
    def red4(self, v):
        a = self.a
        a(f"v_permlane32_swap_b32 v{v[0]}, v{v[2]}\nv_permlane32_swap_b32 v{v[1]}, v{v[3]}")
        a(f"v_add_f32 v{v[0]}, v{v[0]}, v{v[2]}\nv_add_f32 v{v[1]}, v{v[1]}, v{v[3]}")
        a(f"v_permlane16_swap_b32 v{v[0]}, v{v[1]}\nv_add_f32 v{v[0]}, v{v[0]}, v{v[1]}")
    def permpair(self, A, B, T):
        a = self.a
        for k in range(len(A)):
            a(f"v_perm_b32 v{T[k]}, v{B[k]}, v{A[k]}, s12")
            a(f"v_perm_b32 v{B[k]}, v{B[k]}, v{A[k]}, s13")
        return list(T), list(B), list(A)
    def silu2(self, src, dst, t):
        a = self.a
        x0, x1, e0, e1 = t
        self.lo(x0, src); self.hi(x1, src)
        a(f"v_mul_f32 v{e0}, 0xbfb8aa3b, v{x0}\nv_mul_f32 v{e1}, 0xbfb8aa3b, v{x1}")
        a(f"v_exp_f32 v{e0}, v{e0}\nv_exp_f32 v{e1}, v{e1}")
        a(f"v_add_f32 v{e0}, 1.0, v{e0}\nv_add_f32 v{e1}, 1.0, v{e1}")
        a(f"v_rcp_f32 v{e0}, v{e0}\nv_rcp_f32 v{e1}, v{e1}")
        a(f"v_mul_f32 v{x0}, v{x0}, v{e0}\nv_mul_f32 v{x1}, v{x1}, v{e1}")
        a(f"v_cvt_pk_bf16_f32 v{dst}, v{x0}, v{x1}")
    def cnt_add(self, cnt, rtn=None):
        a = self.a
        a("s_mov_b64 s[14:15], exec\ns_and_b32 exec_lo, exec_lo, 1\ns_mov_b32 exec_hi, 0")
        if rtn is None: a(f"ds_add_u32 v14, v15 offset:{cnt}")
        else: a(f"ds_add_rtn_u32 v{rtn}, v14, v15 offset:{cnt}")
        a("s_mov_b64 exec, s[14:15]")
    def last_arriver(self, cnt, skip, t):
        a = self.a; go = self.lab("la")
        self.cnt_add(cnt, t)
        a(f"s_waitcnt lgkmcnt(0)\ns_cbranch_execz {go}\nv_readfirstlane_b32 s60, v{t}\ns_cmp_lg_u32 s60, 3\ns_cbranch_scc1 {skip}\n{go}:")
    def spin_lds(self, cnts, t, target=None):
        a = self.a; top = self.lab("sp"); out = self.lab("spo")
        a(f"s_mov_b32 s61, 0\n{top}:")
        for i, c in enumerate(cnts): a(f"ds_read_b32 v{t+i}, v14 offset:{c}")
        a(f"s_waitcnt lgkmcnt(0)\ns_cbranch_execz {out}")
        for i in range(1, len(cnts)): a(f"v_add_u32 v{t}, v{t}, v{t+i}")
        a(f"v_readfirstlane_b32 s60, v{t}\ns_cmp_ge_u32 s60, {target or 4*len(cnts)}\ns_cbranch_scc1 {out}")
        a(f"s_sleep 1\ns_add_u32 s61, s61, 1\ns_cmp_lt_u32 s61, 0x40000\ns_cbranch_scc1 {top}\n{out}:")
    def poll(self, loads, check, sleep=0, nk=None, pre=0, rk=None, rl=None, preloaded=False):
        a = self.a; top = self.lab("pl"); out = self.lab("plo"); full = self.lab("plf"); nx = self.lab("pln")
        a(f"s_mov_b32 s61, 0\ns_mov_b64 s[14:15], exec")
        if pre: a("s_and_b32 exec_lo, exec_lo, 1\ns_mov_b32 exec_hi, 0\ns_mov_b32 s99, 1")
        if preloaded: a(f"s_branch {top}_c")
        a(f"{top}:")
        if self.o.skipvm: a(f"s_cbranch_execz {top}_s")
        if not self.o.nohopld: loads()
        if preloaded: a(f"{top}_c:")
        if self.o.skipvm: a(f"s_cbranch_execz {top}_s\ns_waitcnt vmcnt(0)\n{top}_s:" if preloaded else f"s_waitcnt vmcnt(0)\n{top}_s:")
        else: self.waitvm(0)
        if rk is not None and self.o.stamps:
            sk = self.lab("rs")
            a(f"s_cbranch_execz {sk}\ns_memrealtime s[96:97]\ns_min_u32 s60, s61, 7\ns_add_u32 s60, s60, {rk}\ns_mov_b32 m0, s60\ns_waitcnt lgkmcnt(0)\nv_writelane_b32 v19, s96, m0\n{sk}:")
        if rl is not None and self.o.stamps:
            sk = self.lab("rs")
            a(f"s_cbranch_execz {sk}\ns_memrealtime s[96:97]\ns_add_u32 s95, s95, 1\ns_and_b32 s60, s95, 7\ns_add_u32 s60, s60, {rl}\ns_mov_b32 m0, s60\ns_waitcnt lgkmcnt(0)\nv_writelane_b32 v19, s96, m0\n{sk}:")
        check()
        a(f"s_cbranch_vccz {full if pre else out}")
        if self.o.nopoll: a(f"s_branch {out}")
        if self.o.masked: a("s_mov_b64 exec, vcc")
        if pre:
            a(f"s_cmp_eq_u32 s99, 0\ns_cbranch_scc1 {nx}\ns_sleep {pre}\n{nx}:")
        self.backoff(sleep)
        a(f"s_add_u32 s61, s61, 1\ns_cmp_lt_u32 s61, 0x8000\ns_cbranch_scc1 {top}")
        if pre:
            a(f"s_branch {out}\n{full}:\ns_cmp_eq_u32 s99, 0\ns_cbranch_scc1 {out}\ns_mov_b32 s99, 0\ns_andn2_b64 exec, s[14:15], exec\ns_cbranch_execnz {top}")
        a(f"{out}:\ns_mov_b64 exec, s[14:15]")
        if nk is not None: self.note(nk, "s61")
    def backoff(self, sleep):
        a = self.a
        if isinstance(sleep, tuple):
            th, sh, tl, sl = sleep; l1 = self.lab("bo"); l2 = self.lab("bo")
            a(f"s_bcnt1_i32_b64 s60, vcc\ns_cmp_le_u32 s60, {tl}\ns_cbranch_scc1 {l2}\ns_cmp_le_u32 s60, {th}\ns_cbranch_scc1 {l1}\ns_sleep {sh}\n{l1}:")
            if sl: a(f"s_sleep {sl}")
            a(f"{l2}:")
        elif sleep: a(f"s_sleep {sleep}")
    def ppoll(self, loads, check, nops, sleep=0, nk=None, rl=None, pipe=None):
        if not (self.o.pipe if pipe is None else pipe):
            return self.poll(loads, check, sleep, nk, rl=rl)
        a = self.a; top = self.lab("pp"); out = self.lab("ppo")
        a("s_mov_b32 s61, 0\ns_mov_b64 s[14:15], exec")
        loads()
        if self.o.pgap: a(f"s_sleep {self.o.pgap}")
        a(f"{top}:")
        loads()
        self.waitvm(nops)
        if rl is not None and self.o.stamps:
            sk = self.lab("rs")
            a(f"s_cbranch_execz {sk}\ns_memrealtime s[96:97]\ns_add_u32 s95, s95, 1\ns_and_b32 s60, s95, 7\ns_add_u32 s60, s60, {rl}\ns_mov_b32 m0, s60\ns_waitcnt lgkmcnt(0)\nv_writelane_b32 v19, s96, m0\n{sk}:")
        check()
        a(f"s_cbranch_vccz {out}\ns_mov_b64 exec, vcc")
        self.backoff(sleep)
        a(f"s_add_u32 s61, s61, 1\ns_cmp_lt_u32 s61, 0x8000\ns_cbranch_scc1 {top}")
        a(f"{out}:\ns_mov_b64 exec, s[14:15]")
        if nk is not None: self.note(nk, "s61")
    def prewait(self, loads, check, mlo, mhi, sleep):
        if not sleep: return
        a = self.a; top = self.lab("pw"); out = self.lab("pwo")
        a(f"s_mov_b32 s61, 0\ns_mov_b64 s[78:79], exec\ns_and_b32 exec_lo, exec_lo, {hex(mlo)}\ns_and_b32 exec_hi, exec_hi, {hex(mhi)}\n{top}:\ns_cbranch_execz {out}")
        loads()
        a(f"s_waitcnt vmcnt(0)")
        check()
        a(f"s_cmp_eq_u64 vcc, exec\ns_cbranch_scc0 {out}\ns_sleep {sleep}")
        a(f"s_add_u32 s61, s61, 1\ns_cmp_lt_u32 s61, 0x8000\ns_cbranch_scc1 {top}\n{out}:\ns_mov_b64 exec, s[78:79]")
    def tdetect(self):
        if not self.o.td: return
        a = self.a; top = self.lab("td"); out = self.lab("tdo"); w = self.lab("tdw"); f = self.lab("tdf")
        a(f"s_cbranch_execz {out}\ns_cmp_lg_u32 s3, 4\ns_cbranch_scc1 {w}")
        a(f"s_lshl_b32 s60, s4, 9\ns_add_u32 s60, s60, {WS_CNT}\ns_add_u32 s80, s42, s60\ns_addc_u32 s81, s43, 0\ns_mov_b32 s61, 0\n{top}:")
        for q in range(4): a(f"s_load_dword s{72+q}, s[80:81], {128*q} glc")
        a("s_waitcnt lgkmcnt(0)\ns_add_u32 s72, s72, s73\ns_add_u32 s74, s74, s75\ns_add_u32 s72, s72, s74")
        a(f"s_cmp_ge_u32 s72, 256\ns_cbranch_scc1 {f}\ns_cmp_ge_u32 s72, {self.o.tdnear}\ns_cbranch_scc1 {top}_n\ns_sleep {self.o.tdsleep}\n{top}_n:")
        a(f"s_add_u32 s61, s61, 1\ns_cmp_lt_u32 s61, 0x8000\ns_cbranch_scc1 {top}\n{f}:")
        self.cnt_add(C_TD)
        a(f"s_branch {out}\n{w}:")
        self.spin_lds([C_TD], 44, target=1)
        a(f"{out}:")
    def get_ticket(self):
        a = self.a; top = self.lab("tk"); out = self.lab("tko")
        if not self.o.tickets:
            a("s_mov_b32 s94, s2"); return
        a(f"s_mov_b32 s61, 0\n{top}:\nds_read_b32 v1, v14 offset:{C_TKT}\ns_waitcnt lgkmcnt(0)\nv_readfirstlane_b32 s94, v1\ns_cbranch_execz {out}")
        a(f"s_cmp_lg_u32 s94, 0\ns_cbranch_scc1 {out}\ns_sleep 1\ns_add_u32 s61, s61, 1\ns_cmp_lt_u32 s61, 0x40000\ns_cbranch_scc1 {top}\n{out}:")
        a("s_sub_u32 s94, s94, 1\ns_and_b32 s94, s94, 0xff")
    def swait(self, loads, regs, ref, eq):
        if not self.o.swait: return
        a = self.a; top = self.lab("sw"); out = self.lab("swo"); again = self.lab("swa")
        a(f"s_cbranch_execz {out}\ns_mov_b32 s61, 0\n{top}:")
        loads()
        a("s_waitcnt lgkmcnt(0)")
        for r in regs:
            a(f"s_cmp_{'lg' if eq else 'eq'}_u32 s{r}, {ref}\ns_cbranch_scc1 {again}")
        a(f"s_branch {out}\n{again}:")
        a(f"s_add_u32 s61, s61, 1\ns_cmp_lt_u32 s61, 0x8000\ns_cbranch_scc1 {top}\n{out}:")
    def chk_sent(self, regs, t):
        a = self.a
        regs = list(regs)
        if len(regs) == 1:
            a(f"v_cmp_eq_u32 vcc, -1, v{regs[0]}"); return
        if len(regs) % 2 == 0:
            a(f"v_max_u32 v{t}, v{regs[0]}, v{regs[1]}"); rest = regs[2:]
        else:
            a(f"v_max3_u32 v{t}, v{regs[0]}, v{regs[1]}, v{regs[2]}"); rest = regs[3:]
        for i in range(0, len(rest), 2): a(f"v_max3_u32 v{t}, v{t}, v{rest[i]}, v{rest[i+1]}")
        a(f"v_cmp_eq_u32 vcc, -1, v{t}")
    def tag(self, regs, rnd=False):
        for r in regs:
            if rnd: self.a(f"v_add_u32 v{r}, 0x80, v{r}")
            self.a(f"v_bfi_b32 v{r}, s98, v18, v{r}")
    def chk_tag(self, regs, t):
        a = self.a; regs = list(regs)
        a(f"v_xor_b32 v{t}, v{regs[0]}, v18")
        for r in regs[1:]: a(f"v_bitop3_b32 v{t}, v{r}, v18, v{t} bitop3:0xbe")
        a(f"v_and_b32 v{t}, s98, v{t}\nv_cmp_ne_u32 vcc, 0, v{t}")
    def sum4x4(self, base):
        a = self.a; b = base
        for h in (0, 2):
            a(f"v_pk_add_f32 v[{b+h}:{b+h+1}], v[{b+h}:{b+h+1}], v[{b+4+h}:{b+5+h}]")
            a(f"v_pk_add_f32 v[{b+8+h}:{b+9+h}], v[{b+8+h}:{b+9+h}], v[{b+12+h}:{b+13+h}]")
        for h in (0, 2):
            a(f"v_pk_add_f32 v[{b+h}:{b+h+1}], v[{b+h}:{b+h+1}], v[{b+8+h}:{b+9+h}]")
    def endwave(self):
        a = self.a
        a("s_cbranch_execz L_dry_ret")
        self.dump_stamps()
        a("s_endpgm")

    def build(self):
        a = self.a; o = self.o; D = o.depth; NT = o.nt; WNT = o.wnt; LNT = o.lnt
        a(header(256, 512, LDS_BYTES))
        a("s_cmp_ge_u32 s2, 256\ns_cbranch_scc1 L_end")
        a("s_load_dwordx16 s[16:31], s[0:1], 0\ns_load_dwordx8 s[32:39], s[0:1], 64\ns_load_dwordx4 s[40:43], s[0:1], 96")
        if o.stamps:
            a("s_memrealtime s[96:97]")
        a("v_lshrrev_b32 v1, 6, v0\nv_and_b32 v0, 63, v0\nv_readfirstlane_b32 s3, v1")
        a("s_and_b32 s4, s2, 7\ns_lshr_b32 s5, s2, 3\ns_lshr_b32 s6, s5, 3")
        if o.hx: a(f"s_add_u32 s60, s4, {o.hx}\ns_and_b32 s60, s60, 7\ns_lshl_b32 s60, s60, 2")
        else: a("s_lshl_b32 s60, s4, 2")
        a("s_add_u32 s6, s6, s60\ns_and_b32 s7, s5, 7")
        a("s_mov_b32 s12, 0x05040100\ns_mov_b32 s13, 0x07060302")
        a(f"v_mov_b32 v14, {L_FLAG}\nv_mov_b32 v15, 1")
        a("s_cmp_ge_u32 s3, 4\ns_cbranch_scc1 L_aux")
        a("v_lshrrev_b32 v4, 4, v0\nv_and_b32 v5, 15, v0\ns_lshl_b32 s60, s3, 2\nv_add_u32 v6, s60, v4")
        a("v_xor_b32 v2, v5, v6\nv_lshlrev_b32 v2, 4, v2\nv_lshl_add_u32 v2, v4, 8, v2\nv_lshlrev_b32 v3, 4, v0")
        a("s_lshl_b32 s62, s6, 20\ns_lshl_b32 s60, s7, 17\ns_add_u32 s62, s62, s60\ns_lshl_b32 s60, s3, 10\ns_add_u32 s62, s62, s60\ns_mov_b32 m0, s60\ns_mov_b32 s63, s62")
        a("s_waitcnt lgkmcnt(0)")
        self.stamp_init()
        self.srd(48, 18, 0x2000000)
        a("s_mov_b32 s61, 0")
        if o.d0 > 0:
            a("L_k1:")
            a(f"buffer_load_dwordx4 v2, s[48:51], s62 offen {NT} lds")
            a(f"s_addk_i32 s62, 0x1000\ns_addk_i32 m0, 0x1000\ns_add_u32 s61, s61, 1\ns_cmp_lt_u32 s61, {o.d0}\ns_cbranch_scc1 L_k1")
        self.stamp(44)
        a("s_barrier")
        self.stamp(45)
        if o.stamps and o.early:
            a(f"s_waitcnt vmcnt({o.d0-1})"); self.stamp(46)
        N = 64
        VB = 128
        Vr = [[VB + 4 * t + k for k in range(4)] for t in range(32)]
        trig = sorted([(o.t1, C_T1), (o.t2, C_T2), (o.t3, C_T3)])
        Tfree = [32, 33, 34, 35]; pairs = {}
        cur = o.d0; j = 0
        first = True
        for n, c in [(n, c) for n, c in trig if n <= 32] + [(32, None)]:
            if n > cur:
                lb = f"L_k2_{j}"; j += 1
                a(f"{lb}:\ns_waitcnt vmcnt({D-1})")
                a(f"buffer_load_dwordx4 v2, s[48:51], s62 offen {NT} lds")
                a(f"s_addk_i32 s62, 0x1000\ns_addk_i32 m0, 0x1000\ns_add_u32 s61, s61, 1\ns_cmp_lt_u32 s61, {n}\ns_cbranch_scc1 {lb}")
                cur = n
            if first:
                first = False
                a("s_load_dword s9, s[42:43], 0")
                self.srd(52, 20, 0x2000000); self.srd(44, 42, 0x10000000)
                a("s_mov_b32 s8, s3\ns_mov_b32 s10, 0\ns_mov_b32 s11, 0\ns_mov_b32 s98, 0xff\ns_mov_b32 s95, 0")
                for r in list(range(7, 14)) + [157, 158, 159]: a(f"v_mov_b32 v{r}, 0")
            if c is not None: self.cnt_add(c)
        self.stamp(1)
        if o.stamps:
            a("s_getreg_b32 s60, hwreg(HW_REG_XCC_ID)\ns_add_u32 s60, s60, 1"); self.note(50, "s60")
        def doperm(u):
            nonlocal Tfree
            lo, hi, Tfree = self.permpair(Vr[2*u], Vr[2*u+1], Tfree)
            pairs[u] = (lo, hi)
        D2 = o.depth2 or D
        for t in range(32):
            n = 32 + t
            DD = D2 if t >= o.d2pos else D
            a(f"s_waitcnt vmcnt({DD-1})")
            if n - D == 31:
                self.cnt_add(C_K); self.stamp(2)
            for tn, c in trig:
                if tn == n and tn > 32: self.cnt_add(c)
            a(f"buffer_load_dwordx4 v[{Vr[t][0]}:{Vr[t][3]}], v3, s[52:55], s63 offen {NT}")
            if t < 31: a("s_addk_i32 s63, 0x1000")
            for u in range(16):
                if u not in pairs and 32 + 2*u + 1 <= n - DD: doperm(u)
        for tn, c in trig:
            if tn >= N: self.cnt_add(c)
        if o.sprio: a(f"s_setprio {o.sprio}")
        a(f"s_waitcnt lgkmcnt(0)\ns_add_u32 s9, s9, {TAGADD}\nv_mov_b32 v18, s9")
        self.stamp(3)
        a(f"v_lshlrev_b32 v7, 6, v6\nv_add_u32 v7, {L_PBUF}, v7")
        a(f"v_lshlrev_b32 v8, 5, v5\nv_lshl_add_u32 v8, v4, 3, v8\ns_lshl_b32 s60, s3, 9\ns_add_u32 s60, s60, {L_REDO}\nv_add_u32 v8, s60, v8")
        a(f"v_lshlrev_b32 v9, 4, v0\nv_add_u32 v10, {L_REDO}, v9\nv_mov_b32 v11, {L_LSUM}\nv_mov_b32 v12, 0\nv_lshlrev_b32 v13, 9, v0")
        a("L_pv:")
        a(f"s_lshl_b32 s60, s6, 3\ns_add_u32 s60, s60, s7\ns_lshl_b32 s63, s60, 4\ns_add_u32 s63, s63, {WS_ML}\ns_lshl_b32 s60, s60, 9\ns_add_u32 s62, s60, {WS_O}")
        ACC = list(range(36, 44)); P = list(range(48, 64))
        for k in ACC: a(f"v_mov_b32 v{k}, 0")
        self.spin_lds([C_P], 44)
        self.stamp(4)
        for q in range(4): a(f"ds_read_b128 v[{48+4*q}:{51+4*q}], v7 offset:{16*q}")
        a("s_waitcnt lgkmcnt(0)")
        for u in range(16):
            if u not in pairs:
                self.waitvm(30 - 2*u)
                doperm(u)
            lo, hi = pairs[u]
            for k in range(4):
                a(f"v_dot2c_f32_bf16 v{ACC[2*k]}, v{lo[k]}, v{P[u]}")
                a(f"v_dot2c_f32_bf16 v{ACC[2*k+1]}, v{hi[k]}, v{P[u]}")
        self.stamp(5)
        self.red8(ACC)
        a(f"ds_write_b64 v8, v[{ACC[0]}:{ACC[1]}]")
        self.last_arriver(C_O, "L_send", 44)
        a("s_mov_b64 s[76:77], exec\ns_mov_b32 exec_hi, 0")
        for q in range(4): a(f"ds_read_b128 v[{48+4*q}:{51+4*q}], v10 offset:{512*q}")
        a("ds_read_b128 v[64:67], v11\nds_read_b32 v68, v11 offset:16")
        a("s_waitcnt lgkmcnt(2)")
        self.sum4x4(48)
        self.tag(range(48, 52))
        a("buffer_store_dwordx4 v[48:51], v9, s[44:47], s62 offen sc1")
        a("s_and_b32 exec_lo, exec_lo, 1\ns_waitcnt lgkmcnt(0)")
        a("v_add_f32 v64, v64, v65\nv_add_f32 v66, v66, v67\nv_add_f32 v69, v64, v66")
        self.tag([68, 69])
        a("v_mov_b32 v70, v68\nv_mov_b32 v71, v69")
        a("buffer_store_dwordx4 v[68:71], v12, s[44:47], s63 offen sc1")
        if o.td:
            a(f"s_and_b32 exec_lo, s76, 0xff\ns_and_b32 s60, s5, 3\ns_lshl_b32 s60, s60, 7\ns_add_u32 s60, s60, {WS_CNT}")
            a("buffer_atomic_add v15, v13, s[44:47], s60 offen")
        a("s_mov_b64 exec, s[76:77]")
        self.stamp(6)
        if o.stamps and o.ackst:
            self.waitvm(0); self.stamp(31)
        a("L_send:")
        a("s_cbranch_execz L_dry_ret")
        self.get_ticket()
        self.note(51, "s94")
        a("s_cmp_ge_u32 s94, 216\ns_cbranch_scc1 L_wend")
        if o.cons == 1: a("s_mul_i32 s92, s94, 304\ns_lshr_b32 s92, s92, 13\ns_mul_i32 s93, s92, 27\ns_sub_u32 s93, s94, s93")
        elif o.cons == 3: a("s_mov_b32 s92, s4\ns_mov_b32 s93, s5")
        else: a("s_and_b32 s92, s94, 7\ns_lshr_b32 s93, s94, 3")
        WW = [[96 + 4*i + q for q in range(4)] for i in range(8)]
        GW = list(range(136, 146)); UW = list(range(146, 156)); XF = list(range(160, 165))
        GA = list(range(166, 171)); TT = list(range(172, 177)); SB = list(range(178, 183)); IN = list(range(184, 189))
        def ld5(b, so, vo):
            a(f"buffer_load_dwordx4 v[{b}:{b+3}], v{vo}, s[44:47], s{so} offen sc1\nbuffer_load_dword v{b+4}, v{vo}, s[44:47], s{so} offen offset:16 sc1")
        def ldmr():
            ld5(GA[0], 62, 8); ld5(SB[0], 63, 8); ld5(TT[0], 66, 8)
        def gpulls():
            self.srd(48, 28, 2211840); self.srd(52, 30, 2211840); self.srd(56, 16, 1280)
            a("s_mul_i32 s64, s92, 80\ns_mul_i32 s60, s8, 20\ns_add_u32 s64, s64, s60")
            a("s_mul_i32 s60, s64, 3456\ns_lshl_b32 s61, s93, 7\ns_add_u32 s60, s60, s61")
            a("v_lshrrev_b32 v158, 5, v0\nv_mul_u32_u24 v159, 34560, v158\nv_and_b32 v1, 31, v0\nv_lshl_add_u32 v159, v1, 2, v159")
            for k in range(10):
                a(f"buffer_load_dword v{GW[k]}, v159, s[48:51], s60 offen offset:{3456*(k%2)} {LNT}\nbuffer_load_dword v{UW[k]}, v159, s[52:55], s60 offen offset:{3456*(k%2)} {LNT}")
                if k % 2 == 1 and k < 9: a("s_addk_i32 s60, 6912")
            a("v_mul_u32_u24 v158, 20, v158\nv_and_b32 v1, 1, v0\nv_mul_u32_u24 v1, 10, v1\nv_add_u32 v158, v158, v1\ns_lshl_b32 s60, s64, 1")
            for k in range(5): a(f"v_mov_b32 v{XF[k]}, 0")
            for k in range(5): a(f"buffer_load_short_d16_hi v{XF[k]}, v158, s[56:59], s60 offen offset:{2*k}")
            a(f"v_lshlrev_b32 v8, 1, v158\ns_lshl_b32 s65, s64, 2\ns_add_u32 s62, s65, {WS_MR}\ns_add_u32 s63, s62, 2560\ns_add_u32 s66, s62, 5120")
            ldmr()
        def wids():
            if o.cons: a("s_mul_i32 s64, s94, 205\ns_lshr_b32 s64, s64, 11\ns_mul_i32 s65, s64, 10\ns_sub_u32 s65, s94, s65")
            else: a("s_and_b32 s64, s94, 15\ns_lshr_b32 s65, s94, 4")
            a("s_lshr_b32 s60, s8, 1\ns_lshl_b32 s66, s64, 1\ns_add_u32 s66, s66, s60\ns_and_b32 s67, s8, 1")
        a(f"s_cmp_ge_u32 s94, 160\ns_cbranch_scc1 L_G1\ns_cmp_lt_u32 s94, {o.gearly}\ns_cbranch_scc1 L_G1")
        self.spin_lds([C_A if o.gtrig == 2 else C_WL], 44, target=o.atgt)
        a("L_G1:")
        if o.gprio >= 0: a(f"s_setprio {o.gprio}")
        self.stamp(7)
        gpulls()
        a("L_Gprep:")
        a("s_mul_i32 s64, s92, 80\ns_mul_i32 s60, s8, 20\ns_add_u32 s64, s64, s60")
        a("v_lshrrev_b32 v158, 5, v0\nv_mul_u32_u24 v8, 40, v158\nv_and_b32 v159, 1, v0\nv_mul_u32_u24 v1, 20, v159\nv_add_u32 v8, v8, v1")
        a(f"s_lshl_b32 s65, s64, 2\ns_add_u32 s62, s65, {WS_MR}\ns_add_u32 s63, s62, 2560\ns_add_u32 s66, s62, 5120\ns_add_u32 s87, s65, {WS_Y}")
        a("v_mov_b32 v9, s12\nv_mov_b32 v10, 0x01000504\nv_cmp_eq_u32 vcc, 1, v159\nv_cndmask_b32 v9, v9, v10, vcc")
        a(f"s_lshl_b32 s60, s8, 9\ns_add_u32 s60, s60, {L_GU}\nv_lshlrev_b32 v11, 3, v0\nv_add_u32 v10, s60, v11")
        a(f"s_mul_i32 s60, s8, 528\ns_add_u32 s60, s60, {L_GZ}\nv_add_u32 v11, s60, v11")
        a(f"v_lshlrev_b32 v12, 2, v158\nv_lshl_add_u32 v12, v159, 3, v12\ns_add_u32 s60, s60, 512\nv_add_u32 v12, s60, v12")
        a(f"s_mul_i32 s60, s8, 80\ns_add_u32 s60, s60, {L_GX2}\nv_add_u32 v13, s60, v8")
        a(f"v_bfe_u32 v157, v0, 1, 4\nv_mul_u32_u24 v157, 2560, v157\nv_add_u32 v157, v157, v8")
        self.poll(ldmr, lambda: self.chk_tag(GA + SB + TT, 50), o.msleep, preloaded=True)
        self.stamp(27)
        Gp = []; Up = []; Tf = [156]
        for W, Lp in ((GW, Gp), (UW, Up)):
            for m in range(5):
                lo, hi, Tf = self.permpair([W[m]], [W[5+m]], Tf); Lp.append((lo[0], hi[0]))
        for k in range(5):
            self.hi(GA[k], GA[k]); self.hi(TT[k], TT[k])
            a(f"v_add_f32 v{TT[k]}, 1.0, v{TT[k]}")
        def pack5(src, keep=None):
            for k in range(5): a(f"v_cvt_pk_bf16_f32 v{52+k}, v{src[k]}, v{src[k]}")
            for k in range(5): a(f"v_mov_b32_dpp v{58+k}, v{52+k} quad_perm:[1,0,3,2] row_mask:0xf bank_mask:0xf")
            if keep:
                for k in range(5): self.lo(keep[k], 52 + k)
            for k in range(5): a(f"v_perm_b32 v{IN[k]}, v{58+k}, v{52+k}, v9")
        def gpass():
            for m in range(5):
                for i, (Lp, b) in enumerate(((Gp, 64), (Up, 66))):
                    for h in range(2):
                        if m == 0: a(f"v_dot2_f32_bf16 v{b+h}, v{Lp[m][h]}, v{IN[m]}, 0")
                        else: a(f"v_dot2c_f32_bf16 v{b+h}, v{Lp[m][h]}, v{IN[m]}")
        def gred():
            a("v_permlane32_swap_b32 v64, v66\nv_permlane32_swap_b32 v65, v67\nv_pk_add_f32 v[64:65], v[64:65], v[66:67]")
        pack5(TT, keep=TT); gpass(); gred()
        a("ds_write_b64 v10, v[64:65]")
        for k in range(5): self.hi(SB[k], SB[k])
        pack5(SB); gpass(); gred()
        a("ds_write_b64 v10, v[64:65] offset:2048")
        a(f"s_mul_i32 s67, s92, 27\ns_add_u32 s67, s67, s93\ns_mul_i32 s88, s67, 640\ns_add_u32 s88, s88, {WS_Z}")
        self.last_arriver(C_U, "L_Gprepd", 50)
        a(f"v_lshlrev_b32 v158, 11, v158\nv_and_b32 v159, 31, v0\nv_lshl_add_u32 v158, v159, 4, v158\nv_add_u32 v158, {L_GU}, v158\nv_lshlrev_b32 v159, 4, v0")
        for q in range(4): a(f"ds_read_b128 v[{68+4*q}:{71+4*q}], v158 offset:{512*q}")
        a(f"s_lshl_b32 s60, s67, 10\ns_add_u32 s60, s60, {WS_U}\ns_waitcnt lgkmcnt(0)")
        self.sum4x4(68); self.tag(range(68, 72))
        a("buffer_store_dwordx4 v[68:71], v159, s[44:47], s60 offen sc1")
        a("L_Gprepd:")
        self.stamp(28)
        a("L_Gtail:")
        if o.gprio >= 0: a(f"s_setprio 3")
        a(f"v_lshlrev_b32 v159, 4, v0\nv_add_u32 v158, {L_GZ}, v159")
        YY = list(range(44, 49)); YL = list(range(92, 97))
        a("s_cbranch_execz L_Gpw\ns_cmp_ge_u32 s94, 160\ns_cbranch_scc1 L_Gpw")
        self.spin_lds([C_YA if o.yack else C_W], 44, target=1 if o.yack else 4)
        a("s_branch L_Gb\nL_Gpw:")
        self.prewait(lambda: a(f"buffer_load_dwordx4 v[92:95], v157, s[44:47], s87 offen sc1"), lambda: self.chk_tag(range(92, 96), 50), 0x01010101, 0, o.preb)
        a("L_Gb:")
        self.stamp(39)
        self.ppoll(lambda: ld5(YL[0], 87, 157), lambda: self.chk_tag(YL, 50), 2, o.bo_b, 35, rl=52, pipe=o.pipeb)
        self.stamp(29)
        for k in range(5): a(f"v_add_f32_dpp v{YY[k]}, v{YL[k]}, v{YL[k]} quad_perm:[2,3,0,1] row_mask:0xf bank_mask:0xf")
        for n in (4, 8):
            for k in range(5): self.ror(YY[k], n)
        for k in range(5): a(f"v_mov_b32 v{52+k}, v{YY[k]}")
        for k in range(5): a(f"v_permlane16_swap_b32 v{52+k}, v{YY[k]}")
        for k in range(5): a(f"v_add_f32 v{YY[k]}, v{YY[k]}, v{52+k}")
        for k in range(5): a(f"v_fma_f32 v{YY[k]}, v{YY[k]}, v{GA[k]}, v{XF[k]}")
        ZZ = list(range(70, 75))
        for k in range(5): a(f"v_mul_f32 v{ZZ[k]}, v{YY[k]}, v{TT[k]}")
        pack5(ZZ); gpass()
        a("v_add_f32 v76, v44, v45\nv_mul_f32 v77, v44, v44\nv_add_f32 v78, v46, v47\nv_fmac_f32 v77, v45, v45\nv_add_f32 v76, v76, v48\nv_fmac_f32 v77, v46, v46\nv_add_f32 v76, v76, v78\nv_fmac_f32 v77, v47, v47\nv_fmac_f32 v77, v48, v48")
        gred()
        a("ds_write_b64 v11, v[64:65]")
        a("v_permlane32_swap_b32 v76, v77\nv_add_f32 v76, v76, v77")
        self.allred(76, 50, bits=(0,))
        a("ds_write_b32 v12, v76")
        for k in range(5): a(f"ds_write_b32 v13, v{YY[k]} offset:{4*k}")
        self.last_arriver(C_Z, "L_wend", 50)
        a("s_and_b32 exec_hi, exec_hi, 1")
        for q in range(4): a(f"ds_read_b128 v[{120+4*q}:{123+4*q}], v158 offset:{528*q}")
        a("s_waitcnt lgkmcnt(0)")
        self.sum4x4(120); self.tag(range(120, 124))
        a("buffer_store_dwordx4 v[120:123], v159, s[44:47], s88 offen sc1")
        self.stamp(30)
        a("s_cbranch_execz L_Gx2\ns_cmp_lg_u32 s93, 0\ns_cbranch_scc1 L_wend\nL_Gx2:")
        a(f"s_and_b32 exec_lo, exec_lo, 0xfffff\ns_mov_b32 exec_hi, 0\nv_add_u32 v158, {L_GX2}, v159\nds_read_b128 v[52:55], v158")
        a(f"s_mul_i32 s60, s92, 320\ns_add_u32 s60, s60, {WS_X2}\ns_waitcnt lgkmcnt(0)")
        self.tag(range(52, 56))
        a("buffer_store_dwordx4 v[52:55], v159, s[44:47], s60 offen sc1")
        a("s_branch L_wend")
        a("L_wend:")
        self.endwave()

        a("L_aux:")
        if o.prio: a(f"s_setprio {o.prio}")
        a("s_sub_u32 s8, s3, 4")
        a("v_lshlrev_b32 v6, 2, v0\ns_cmp_lg_u32 s8, 0\ns_cbranch_scc1 L_noinit")
        a(f"v_add_u32 v16, v14, v6\nv_mov_b32 v17, 0\nds_write_b32 v16, v17\nL_noinit:")
        CR = list(range(160, 165))
        WM = [[96 + 4*k + q for q in range(4)] for k in range(5)]
        XR = list(range(166, 171)); XP = 171
        WQ = list(range(136, 156))
        a("s_mul_i32 s67, s2, 205\ns_lshr_b32 s67, s67, 12\ns_mul_i32 s60, s67, 20\ns_sub_u32 s66, s2, s60")
        a("s_cmp_lt_u32 s2, 80\ns_cbranch_scc1 L_unit")
        a("s_sub_u32 s61, s2, 80\ns_mul_i32 s67, s61, 205\ns_lshr_b32 s67, s67, 13\ns_mul_i32 s60, s67, 40\ns_sub_u32 s66, s61, s60\ns_add_u32 s66, s66, 20")
        a("L_unit:")
        a("s_mul_i32 s68, s67, 160\ns_mul_i32 s60, s8, 40\ns_add_u32 s68, s68, s60")
        a("s_mul_i32 s69, s68, 7680\ns_lshl_b32 s60, s66, 7\ns_add_u32 s69, s69, s60\ns_lshl_b32 s68, s68, 1")
        a("v_lshrrev_b32 v3, 3, v0\nv_mul_u32_u24 v5, 7680, v3\nv_and_b32 v4, 7, v0\nv_lshl_add_u32 v5, v4, 4, v5\nv_lshlrev_b32 v3, 1, v3")
        a("s_mul_i32 s70, s7, 80\ns_mul_i32 s61, s8, 20\ns_add_u32 s70, s70, s61")
        a("s_lshl_b32 s71, s70, 13\ns_lshl_b32 s61, s6, 8\ns_add_u32 s71, s71, s61")
        a("s_waitcnt lgkmcnt(0)")
        self.stamp_init()
        self.stamp(44)
        a("s_load_dword s9, s[42:43], 0")
        self.srd(44, 42, 0x10000000)
        if o.td:
            a(f"s_add_u32 s60, s2, s8\ns_cmp_lg_u32 s60, 0\ns_cbranch_scc1 L_nocnt\nv_lshlrev_b32 v7, 7, v0\nv_mov_b32 v8, 0\ns_mov_b32 s60, {WS_CNT}")
            a("buffer_store_dword v8, v7, s[44:47], s60 offen sc1\nL_nocnt:")
        a("s_cmp_ge_u32 s2, 240\ns_cbranch_scc1 L_noprod")
        self.srd(52, 36, 4915200); self.srd(48, 34, 1280)
        for k in range(5):
            if not o.nofront: a(f"buffer_load_dwordx4 v[{WM[k][0]}:{WM[k][3]}], v5, s[52:55], s69 offen {WNT}")
            if k < 4: a("s_add_u32 s69, s69, 61440")
        for k in range(5): a(f"buffer_load_ushort v{CR[k]}, v3, s[48:51], s68 offen offset:{16*k}")
        a("L_noprod:")
        if o.codepf:
            a(f"s_cmp_lg_u32 s8, 1\ns_cbranch_scc1 L_ncp\ns_getpc_b64 s[78:79]\nL_cp:\ns_sub_u32 s78, s78, L_cp-{NAME}_kernel\ns_subb_u32 s79, s79, 0")
            a(f"s_mul_i32 s60, s5, {o.codepf}\nv_min_u32 v7, {o.codepf-1}, v0\nv_add_u32 v7, s60, v7\nv_lshlrev_b32 v7, 7, v7\nv_min_u32 v7, L_end-{NAME}_kernel, v7")
            a("global_load_dword v21, v7, s[78:79]\nL_ncp:")
        if o.b1early: a("s_barrier")
        self.srd(52, 22, 5242880); self.srd(48, 16, 1280)
        for k in range(20):
            if not o.nofront: a(f"buffer_load_dword v{WQ[k]}, v6, s[52:55], s71 offen {WNT}")
            if k < 19: a("s_addk_i32 s71, 0x2000")
        a("v_lshrrev_b32 v16, 4, v0\nv_and_b32 v17, 15, v0\nv_min_u32 v17, 9, v17")
        a("v_mul_u32_u24 v4, 20, v0\ns_lshl_b32 s61, s70, 1\nv_lshlrev_b32 v5, 2, v17")
        a(f"buffer_load_dwordx4 v[{XR[0]}:{XR[3]}], v4, s[48:51], 0 offen\nbuffer_load_dword v{XR[4]}, v4, s[48:51], 0 offen offset:16")
        a(f"buffer_load_dword v{XP}, v5, s[48:51], s61 offen")
        a("s_waitcnt lgkmcnt(0)")
        if not o.b1early: a("s_barrier")
        self.stamp(1)
        a(f"s_add_u32 s9, s9, {TAGADD}\ns_mov_b32 s98, 0xff\nv_mov_b32 v18, s9")
        for r in [2] + list(range(7, 14)) + [157, 158, 159]: a(f"v_mov_b32 v{r}, 0")
        a("s_mov_b32 s10, 0\ns_sub_u32 s11, s2, 160\ns_cmp_lt_u32 s11, 40\ns_cselect_b32 s10, 3, 0\ns_mov_b32 s95, 0\ns_mov_b32 s92, 0\ns_mov_b32 s93, 0\ns_mov_b32 s94, 0")
        a("L_roled:")
        if o.fdry:
            a("s_mov_b64 exec, 0\ns_branch L_front")
        a("L_fdry_ret:\ns_mov_b64 exec, -1")
        self.stamp(2)
        a("L_front:")
        a("s_cmp_ge_u32 s2, 240\ns_cbranch_scc1 L_ln1")
        self.waitvm(23)
        self.stamp(20)
        for k in range(5):
            x, e = CR[k], 44 + k
            a(f"v_lshlrev_b32 v{x}, 16, v{x}\nv_mul_f32 v{e}, 0xbfb8aa3b, v{x}\nv_exp_f32 v{e}, v{e}")
        for k in range(5): a(f"v_add_f32 v{44+k}, 1.0, v{44+k}\nv_rcp_f32 v{44+k}, v{44+k}")
        for k in range(5): a(f"v_mul_f32 v{44+k}, v{CR[k]}, v{44+k}")
        a("v_cvt_pk_bf16_f32 v36, v44, v45\nv_cvt_pk_bf16_f32 v37, v46, v47\nv_cvt_pk_bf16_f32 v38, v48, 0")
        ACC = list(range(48, 56))
        for k in ACC: a(f"v_mov_b32 v{k}, 0")
        Tf = [44, 45, 46, 47]
        for m in range(2):
            lo, hi, Tf = self.permpair(WM[2*m], WM[2*m+1], Tf)
            for k in range(4):
                a(f"v_dot2c_f32_bf16 v{ACC[2*k]}, v{lo[k]}, v{36+m}\nv_dot2c_f32_bf16 v{ACC[2*k+1]}, v{hi[k]}, v{36+m}")
        for k in range(4):
            a(f"v_and_b32 v{Tf[k]}, 0xffff, v{WM[4][k]}\nv_lshrrev_b32 v{WM[4][k]}, 16, v{WM[4][k]}")
            a(f"v_dot2c_f32_bf16 v{ACC[2*k]}, v{Tf[k]}, v38\nv_dot2c_f32_bf16 v{ACC[2*k+1]}, v{WM[4][k]}, v38")
        self.red8(ACC); self.ror(48, 8); self.ror(49, 8)
        a(f"s_lshl_b32 s60, s8, 8\ns_add_u32 s60, s60, {L_RED1}\nv_and_b32 v3, 7, v0\nv_lshlrev_b32 v2, 5, v3\nv_lshl_add_u32 v2, v16, 3, v2\nv_add_u32 v2, s60, v2")
        a("ds_write_b64 v2, v[48:49]")
        self.last_arriver(C_F1, "L_ln1", 44)
        a(f"v_lshlrev_b32 v3, 3, v0\nv_add_u32 v3, {L_RED1}, v3\nv_lshlrev_b32 v2, 4, v0\ns_mov_b64 s[14:15], exec\ns_mov_b32 exec_hi, 0")
        for q in range(4): a(f"ds_read_b64 v[{44+2*q}:{45+2*q}], v3 offset:{256*q}")
        a("s_mul_i32 s67, s2, 205\ns_lshr_b32 s67, s67, 12\ns_mul_i32 s60, s67, 20\ns_sub_u32 s66, s2, s60")
        a("s_cmp_lt_u32 s2, 80\ns_cbranch_scc1 L_unit2")
        a("s_sub_u32 s61, s2, 80\ns_mul_i32 s67, s61, 205\ns_lshr_b32 s67, s67, 13\ns_mul_i32 s60, s67, 40\ns_sub_u32 s66, s61, s60\ns_add_u32 s66, s66, 20")
        a("L_unit2:")
        a(f"s_mul_i32 s60, s67, 30720\ns_lshl_b32 s61, s66, 9\ns_add_u32 s60, s60, s61\ns_add_u32 s60, s60, {WS_G1}")
        a("s_waitcnt lgkmcnt(0)")
        a("v_pk_add_f32 v[44:45], v[44:45], v[46:47]\nv_pk_add_f32 v[48:49], v[48:49], v[50:51]\nv_pk_add_f32 v[44:45], v[44:45], v[48:49]")
        a("v_mov_b32 v46, v45\nv_mov_b32 v45, s9\nv_mov_b32 v47, s9\nv_mov_b32 v4, 0")
        if not o.nostore: a("buffer_store_dwordx4 v[44:47], v2, s[44:47], s60 offen sc1")
        a("s_mov_b64 exec, s[14:15]")
        self.stamp(3)
        a("L_ln1:")
        if o.fdry == 1: a("s_cbranch_execz L_fdry_ret")
        self.waitvm(2)
        self.stamp(21)
        a("s_nop 0")
        WQp = []; WQf = [64]
        for m in range(10):
            lo, hi, WQf = self.permpair([WQ[2*m]], [WQ[2*m+1]], WQf)
            WQp.append((lo[0], hi[0]))
        self.waitvm(0)
        X = list(range(48, 58))
        for m in range(5):
            self.lo(X[2*m], XR[m]); self.hi(X[2*m+1], XR[m])
        a(f"v_add_f32 v58, v{X[0]}, v{X[1]}")
        for k in range(2, 10): a(f"v_add_f32 v58, v58, v{X[k]}")
        self.allred(58, 59)
        a("v_mul_f32 v58, 0x3acccccd, v58")
        a("v_mov_b32 v60, 0")
        for k in range(10): a(f"v_sub_f32 v{X[k]}, v{X[k]}, v58\nv_fmac_f32 v60, v{X[k]}, v{X[k]}")
        self.allred(60, 59)
        a("v_mul_f32 v60, 0x3acccccd, v60")
        self.round2(58, 60, 59)
        a("v_add_f32 v60, 0x3727c5ac, v60")
        self.round2(60, 61, 59)
        a("v_sqrt_f32 v60, v60")
        self.round2(60, 61, 59)
        a("v_rcp_f32 v60, v60")
        self.lo(62, XP); self.hi(63, XP)
        a("v_sub_f32 v62, v62, v58\nv_sub_f32 v63, v63, v58")
        self.round2(62, 63, 59)
        a("v_mul_f32 v62, v62, v60\nv_mul_f32 v63, v63, v60")
        self.round2(62, 63, 59)
        a("s_mul_i32 s60, s7, 80\ns_mul_i32 s61, s8, 20\ns_add_u32 s60, s60, s61")
        a("v_mul_u32_u24 v2, 30720, v16\nv_lshl_add_u32 v2, v17, 4, v2")
        a(f"s_lshl_b32 s62, s60, 3\ns_add_u32 s62, s62, {WS_G1}\ns_add_u32 s63, s62, 5120")
        if o.pretouch:
            a(f"s_cmp_lg_u32 s8, 3\ns_cbranch_scc1 L_npt\ns_mul_i32 s60, s2, {21*128}\ns_add_u32 s60, s60, {WS_O}\nv_min_u32 v44, 20, v0\nv_lshlrev_b32 v44, 7, v44")
            a(f"buffer_load_dword v45, v44, s[44:47], s60 offen {o.ptf}\nL_npt:")
        if o.w1dry:
            a("s_mov_b64 exec, 0\ns_cmp_eq_u32 s8, 0\ns_cbranch_scc1 L_h1b\ns_cmp_eq_u32 s8, 1\ns_cbranch_scc1 L_h2b\ns_branch L_qk2")
            a("L_w1_ret:\ns_mov_b64 exec, -1")
            a("s_mul_i32 s60, s7, 80\ns_mul_i32 s61, s8, 20\ns_add_u32 s60, s60, s61")
            a(f"s_lshl_b32 s62, s60, 3\ns_add_u32 s62, s62, {WS_G1}\ns_add_u32 s63, s62, 5120")
            self.stamp(2)
        a("L_h1b:")
        self.spin_lds([C_T1], 46)
        self.stamp(22)
        def ld():
            a("buffer_load_dwordx4 v[44:47], v2, s[44:47], s62 offen sc1\nbuffer_load_dwordx4 v[48:51], v2, s[44:47], s63 offen sc1")
        def ck():
            a("v_xor_b32 v53, s9, v45\nv_xor_b32 v54, s9, v47\nv_xor_b32 v55, s9, v49\nv_xor_b32 v56, s9, v51")
            a("v_or3_b32 v53, v53, v54, v55\nv_or_b32 v53, v53, v56\nv_cmp_ne_u32 vcc, 0, v53")
        self.poll(ld, ck, o.fsleep, 32)
        self.stamp(4)
        for v in (44, 46, 48, 50): self.allred(v, 53, bits=(4, 5))
        self.round2(44, 46, 53); self.round2(48, 50, 53)
        a("v_add_f32 v48, 1.0, v48\nv_add_f32 v50, 1.0, v50")
        self.round2(48, 50, 53)
        a("v_mul_f32 v48, v62, v48\nv_mul_f32 v50, v63, v50")
        self.round2(48, 50, 53)
        a("v_add_f32 v48, v48, v44\nv_add_f32 v50, v50, v46\nv_cvt_pk_bf16_f32 v53, v48, v50")
        for m in range(10): a(f"v_readlane_b32 s{64+m}, v53, {m}")
        a("v_mov_b32 v44, 0\nv_mov_b32 v45, 0")
        for m in range(10):
            a(f"v_dot2c_f32_bf16 v44, s{64+m}, v{WQp[m][0]}\nv_dot2c_f32_bf16 v45, s{64+m}, v{WQp[m][1]}")
        a(f"s_lshl_b32 s60, s8, 9\ns_add_u32 s60, s60, {L_RED2}\nv_lshlrev_b32 v2, 3, v0\nv_add_u32 v2, s60, v2")
        a("ds_write_b64 v2, v[44:45]")
        self.last_arriver(C_F2, "L_h2", 46)
        a(f"v_lshlrev_b32 v2, 4, v0\nv_add_u32 v3, {L_RED2}, v2\ns_mov_b64 s[14:15], exec\ns_mov_b32 exec_hi, 0")
        for q in range(4): a(f"ds_read_b128 v[{44+4*q}:{47+4*q}], v3 offset:{512*q}")
        a(f"s_lshl_b32 s60, s6, 3\ns_add_u32 s60, s60, s7\ns_lshl_b32 s60, s60, 9\ns_add_u32 s60, s60, {WS_Q2}")
        a("s_waitcnt lgkmcnt(0)")
        self.sum4x4(44)
        self.tag(range(44, 48), rnd=True)
        if not o.nostore: a("buffer_store_dwordx4 v[44:47], v2, s[44:47], s60 offen sc1")
        a("s_mov_b64 exec, s[14:15]")
        self.stamp(5)
        a("L_h2:")
        if o.fdry == 2: a("s_cbranch_execz L_fdry_ret")
        if o.dry:
            if o.fdry == 3 or o.w1dry: a("s_cbranch_execz L_h2b")
            a("s_mov_b64 exec, 0")
            a("s_cmp_eq_u32 s8, 0\ns_cbranch_scc1 L_pv")
            a("s_cmp_eq_u32 s8, 1\ns_cbranch_scc1 L_D2")
            a("s_cmp_eq_u32 s8, 2\ns_cbranch_scc1 L_W2\ns_branch L_Gprep")
        a("L_dry_ret:\ns_mov_b64 exec, -1")
        self.stamp(24)
        a("L_h2b:")
        a("v_lshrrev_b32 v2, 3, v0\nv_lshlrev_b32 v2, 9, v2\nv_and_b32 v3, 7, v0\nv_lshl_add_u32 v2, v3, 4, v2")
        a(f"s_lshl_b32 s62, s6, 12\ns_lshl_b32 s60, s8, 7\ns_add_u32 s62, s62, s60\ns_add_u32 s62, s62, {WS_Q2}")
        a("s_cbranch_execz L_M\ns_cmp_lg_u32 s10, 3\ns_cbranch_scc1 L_Mend\ns_cmp_lg_u32 s8, 0\ns_cbranch_scc1 L_Mend\nL_M:")
        a("v_and_b32 v4, 15, v0\nv_mul_u32_u24 v5, 30720, v16\nv_lshl_add_u32 v5, v4, 5, v5\nv_lshlrev_b32 v4, 4, v4")
        a(f"s_lshl_b32 s63, s11, 9\ns_add_u32 s63, s63, {WS_G1 + 1280*8}\ns_lshl_b32 s64, s11, 8\ns_add_u32 s64, s64, {WS_MR}")
        def ld():
            a("buffer_load_dwordx4 v[44:47], v5, s[44:47], s63 offen sc1\nbuffer_load_dwordx4 v[48:51], v5, s[44:47], s63 offen offset:16 sc1")
        self.poll(ld, ck, o.fsleep)
        for v in (44, 46, 48, 50): self.allred(v, 53, bits=(4, 5))
        self.round2(44, 46, 53); self.round2(48, 50, 53)
        a("v_mov_b32 v45, v46\nv_mov_b32 v46, v48\nv_mov_b32 v47, v50")
        self.tag(range(44, 48))
        a("s_mov_b64 s[14:15], exec\ns_and_b32 exec_lo, exec_lo, 0xffff\ns_mov_b32 exec_hi, 0")
        if not o.nostore: a("buffer_store_dwordx4 v[44:47], v4, s[44:47], s64 offen sc1")
        a("s_mov_b64 exec, s[14:15]\nL_Mend:")
        self.spin_lds([C_T2], 44)
        self.stamp(23)
        if o.tickets:
            self.srd(48, 40, 256)
            a("s_cbranch_execz L_tk1\ns_cmp_lg_u32 s8, 0\ns_cbranch_scc1 L_tk1")
            a("s_and_b32 s63, s5, 3\ns_lshl_b32 s60, s63, 6\nv_mov_b32 v54, 1\nv_mov_b32 v55, 0\ns_mov_b64 s[14:15], exec\ns_and_b32 exec_lo, exec_lo, 1\ns_mov_b32 exec_hi, 0")
            a("buffer_atomic_add v54, v55, s[48:51], s60 offen sc0\ns_mov_b64 exec, s[14:15]\nL_tk1:")
        a("buffer_load_dwordx4 v[48:51], v2, s[44:47], s62 offen sc1")
        a("v_and_b32 v17, 15, v0")
        a(f"v_xor_b32 v4, v16, v17\nv_lshlrev_b32 v4, 4, v4\nv_lshl_add_u32 v4, v17, 8, v4\ns_lshl_b32 s60, s8, 15\nv_add_u32 v4, s60, v4")
        a("v_xor_b32 v5, 64, v4\nv_xor_b32 v6, 0x80, v4\nv_xor_b32 v7, 0xc0, v4")
        self.spin_lds([C_K], 44)
        for t in range(8):
            for s in range(4): a(f"ds_read_b128 v[{96+16*t+4*s}:{99+16*t+4*s}], v{4+s} offset:{4096*t}")
        self.poll(lambda: a("buffer_load_dwordx4 v[48:51], v2, s[44:47], s62 offen sc1"), lambda: self.chk_tag(range(48, 52), 52), o.fsleep, 33, preloaded=True)
        self.stamp(6)
        if o.tickets:
            a("s_cmp_lg_u32 s8, 0\ns_cbranch_scc1 L_tk2")
            a(f"s_mov_b64 s[14:15], exec\ns_and_b32 exec_lo, exec_lo, 1\ns_mov_b32 exec_hi, 0\nv_lshlrev_b32 v54, 2, v54\nv_add_u32 v54, s63, v54\nv_add_u32 v54, 1, v54\nds_write_b32 v14, v54 offset:{C_TKT}\ns_mov_b64 exec, s[14:15]\nL_tk2:")
        self.red4([48, 49, 50, 51]); self.ror(48, 8)
        a(f"s_lshl_b32 s60, s8, 6\ns_add_u32 s60, s60, {L_QBUF}\nv_lshlrev_b32 v3, 3, v3\nv_lshl_add_u32 v3, v16, 1, v3\nv_add_u32 v3, s60, v3")
        a("v_cvt_pk_bf16_f32 v48, v48, v48\nds_write_b16 v3, v48")
        self.cnt_add(C_Q)
        a("L_qk2:")
        a(f"v_lshlrev_b32 v6, 4, v16\nv_add_u32 v6, {L_QBUF}, v6")
        self.spin_lds([C_Q], 44)
        self.stamp(7)
        QF = 20
        for s in range(4): a(f"ds_read_b128 v[{QF+4*s}:{QF+4*s+3}], v6 offset:{64*s}")
        a("s_waitcnt lgkmcnt(0)")
        S = [36, 37]
        for s in range(4):
            for t in range(8):
                d = 224 + 4*t
                c = "0" if s == 0 else f"v[{d}:{d+3}]"
                a(f"v_mfma_f32_16x16x32_bf16 v[{d}:{d+3}], v[{QF+4*s}:{QF+4*s+3}], v[{96+16*t+4*s}:{99+16*t+4*s}], {c}")
        for t in range(8): a(f"v_mov_b32_dpp v{S[t//4]}, v{224+4*t} quad_perm:[0,1,2,3] row_mask:{hex(1<<(t%4))} bank_mask:0xf")
        self.round2(36, 37, 38)
        a("v_mul_f32 v36, 0x3db504f3, v36\nv_mul_f32 v37, 0x3db504f3, v37")
        self.round2(36, 37, 38)
        a("v_max_f32 v39, v36, v37")
        self.allred(39, 38, op="max")
        a(f"s_lshl_b32 s60, s8, 2\ns_add_u32 s60, s60, {L_MAXB}\nv_mov_b32 v2, s60\nv_mov_b32 v3, {L_MAXB}\nds_write_b32 v2, v39")
        self.cnt_add(C_MAX)
        self.spin_lds([C_MAX], 44)
        a("ds_read_b128 v[44:47], v3")
        a(f"s_lshl_b32 s60, s8, 4\ns_add_u32 s60, s60, {L_PBUF}\nv_lshlrev_b32 v2, 6, v17\nv_lshl_add_u32 v2, v16, 1, v2\nv_add_u32 v2, s60, v2")
        a("s_waitcnt lgkmcnt(0)")
        a("v_max3_f32 v44, v44, v45, v46\nv_max_f32 v40, v44, v47")
        a(f"v_sub_f32 v36, v36, v40\nv_sub_f32 v37, v37, v40\nv_mul_f32 v36, {hex(LOG2E)}, v36\nv_mul_f32 v37, {hex(LOG2E)}, v37\nv_exp_f32 v36, v36\nv_exp_f32 v37, v37")
        a("v_cvt_pk_bf16_f32 v38, v36, v37\nds_write_b16 v2, v38\nds_write_b16_d16_hi v2, v38 offset:8")
        self.lo(36, 38); self.hi(37, 38)
        a("v_add_f32 v41, v36, v37")
        self.allred(41, 38)
        a(f"s_lshl_b32 s60, s8, 2\ns_add_u32 s60, s60, {L_LSUM}\nv_mov_b32 v2, s60\nv_mov_b32 v3, {L_LSUM}\nds_write_b32 v2, v41\nds_write_b32 v3, v40 offset:16")
        self.cnt_add(C_P)
        self.stamp(8)
        if o.fdry == 3: a("s_cbranch_execz L_fdry_ret")
        if o.w1dry: a("s_cbranch_execz L_w1_ret")
        self.get_ticket()
        a("s_sub_u32 s11, s94, 202\ns_cmp_ge_u32 s94, 202\ns_cbranch_scc1 L_D0\ns_cmp_ge_u32 s94, 160\ns_cbranch_scc1 L_wend")
        self.spin_lds([C_T3], 44)
        a(f"s_cmp_ge_u32 s94, {o.wlate}\ns_cbranch_scc1 L_W1")
        self.spin_lds([C_O], 44)
        a("L_W1:")
        self.srd(48, 24, 5242880)
        wids()
        a("v_lshrrev_b32 v2, 3, v0\nv_mul_u32_u24 v2, 10240, v2\nv_and_b32 v3, 7, v0\nv_lshl_add_u32 v2, v3, 4, v2")
        a("s_lshl_b32 s60, s66, 1\ns_add_u32 s60, s60, s67\ns_mul_i32 s60, s60, 81920\ns_lshl_b32 s61, s65, 7\ns_add_u32 s60, s60, s61\ns_add_u32 s61, s60, 5120")
        for i in range(8): a(f"buffer_load_dwordx4 v[{WW[i][0]}:{WW[i][3]}], v2, s[48:51], s{60 + i//4} offen offset:{1280*(i%4)} {LNT}")
        a("L_W2:")
        wids()
        a("v_and_b32 v3, 7, v0\nv_lshlrev_b32 v2, 4, v3")
        a(f"v_lshrrev_b32 v4, 3, v0\nv_lshlrev_b32 v4, 5, v4\nv_lshl_add_u32 v4, v3, 9, v4")
        a(f"s_lshl_b32 s60, s8, 8\ns_add_u32 s60, s60, {L_REDW}\nv_lshlrev_b32 v5, 5, v3\nv_lshl_add_u32 v5, v16, 3, v5\nv_add_u32 v5, s60, v5")
        a(f"v_lshlrev_b32 v6, 4, v0\nv_add_u32 v7, {L_REDW}, v6")
        a(f"s_lshl_b32 s86, s66, 7\ns_add_u32 s86, s86, {WS_ML}\ns_lshl_b32 s84, s66, 12\ns_lshl_b32 s60, s67, 8\ns_add_u32 s84, s84, s60\ns_add_u32 s84, s84, {WS_O}")
        a(f"s_mul_i32 s85, s64, 2560\ns_lshl_b32 s60, s65, 8\ns_add_u32 s85, s85, s60\ns_add_u32 s85, s85, {WS_Y}")
        self.waitvm(0)
        Tf = [128, 129, 130, 131]; Wp = []
        for m in range(4):
            lo, hi, Tf = self.permpair(WW[2*m], WW[2*m+1], Tf); Wp.append((lo, hi))
        self.stamp(9)
        self.spin_lds([C_O], 44)
        if o.sml:
            a("s_cbranch_execz L_smo\ns_add_u32 s80, s42, s86\ns_addc_u32 s81, s43, 0\ns_mov_b32 s61, 0\nL_sm:")
            a("s_load_dwordx16 s[64:79], s[80:81], 0 glc\ns_load_dwordx8 s[48:55], s[80:81], 64 glc\ns_load_dword s56, s[80:81], 96 glc\ns_load_dword s57, s[80:81], 112 glc\ns_waitcnt lgkmcnt(0)")
            regs = [64, 68, 72, 76, 48, 52, 56, 57]
            a("s_xor_b32 s60, s64, s9")
            for r in regs[1:]: a(f"s_xor_b32 s{r}, s{r}, s9\ns_or_b32 s60, s60, s{r}")
            a(f"s_and_b32 s60, s60, 0xff\ns_cbranch_scc0 L_smo\ns_sleep {o.sml}\ns_add_u32 s61, s61, 1\ns_cmp_lt_u32 s61, 0x8000\ns_cbranch_scc1 L_sm\nL_smo:")
        self.stamp(38)
        a("L_Wtail:")
        def ld():
            a("buffer_load_dwordx4 v[52:55], v2, s[44:47], s86 offen sc1")
            a("buffer_load_dwordx4 v[44:47], v4, s[44:47], s84 offen sc1\nbuffer_load_dwordx4 v[48:51], v4, s[44:47], s84 offen offset:16 sc1")
        if o.gtrig == 1:
            a("s_cbranch_execz L_wl1")
            ld()
            a("L_wl1:")
            self.cnt_add(C_WL)
            self.poll(ld, lambda: self.chk_tag(list(range(44, 56)), 60), o.bo_a, 34, rl=40, preloaded=True)
        else:
            self.ppoll(ld, lambda: self.chk_tag(list(range(44, 56)), 60), 3, o.bo_a, 34, rl=40, pipe=o.pipea)
        self.cnt_add(C_A)
        self.stamp(11)
        a("v_and_b32 v62, 0xffff0000, v52\nv_mov_b32 v63, v62")
        self.allred(63, 60, op="max", bits=(0, 1, 2))
        a(f"v_sub_f32 v62, v62, v63\nv_mul_f32 v62, {hex(LOG2E)}, v62\nv_exp_f32 v56, v62\nv_mul_f32 v63, v53, v56")
        for k in range(0, 8, 2): a(f"v_pk_mul_f32 v[{64+k}:{65+k}], v[{44+k}:{45+k}], v[56:57] op_sel_hi:[1,0]")
        for bit in (0, 1, 2):
            self.allred(63, 60, bits=(bit,))
            for k in range(8): self.allred(64 + k, 60, bits=(bit,))
        a("v_rcp_f32 v56, v63")
        for k in range(0, 8, 2): a(f"v_pk_mul_f32 v[{64+k}:{65+k}], v[{64+k}:{65+k}], v[56:57] op_sel_hi:[1,0]")
        for m in range(4): a(f"v_cvt_pk_bf16_f32 v{72+m}, v{64+2*m}, v{65+2*m}")
        ACC = list(range(24, 32))
        for m in range(4):
            lo, hi = Wp[m]
            for k in range(4):
                if m == 0: a(f"v_dot2_f32_bf16 v{ACC[2*k]}, v{lo[k]}, v{72+m}, 0\nv_dot2_f32_bf16 v{ACC[2*k+1]}, v{hi[k]}, v{72+m}, 0")
                else: a(f"v_dot2c_f32_bf16 v{ACC[2*k]}, v{lo[k]}, v{72+m}\nv_dot2c_f32_bf16 v{ACC[2*k+1]}, v{hi[k]}, v{72+m}")
        self.red8(ACC)
        self.ror(24, 8); self.ror(25, 8)
        a("ds_write_b64 v5, v[24:25]")
        self.last_arriver(C_W, "L_Wfin", 60)
        a("s_mov_b64 s[76:77], exec\ns_and_b32 exec_lo, exec_lo, 0xffff\ns_mov_b32 exec_hi, 0")
        for q in range(4): a(f"ds_read_b128 v[{76+4*q}:{79+4*q}], v7 offset:{256*q}")
        a("s_waitcnt lgkmcnt(0)")
        self.sum4x4(76)
        self.tag(range(76, 80))
        a("buffer_store_dwordx4 v[76:79], v6, s[44:47], s85 offen sc1\ns_mov_b64 exec, s[76:77]")
        self.stamp(12)
        if o.yack:
            self.waitvm(0); self.cnt_add(C_YA); self.stamp(31)
        a("L_Wfin:")
        a("s_cbranch_execz L_final\ns_cmp_lg_u32 s8, 0\ns_cbranch_scc1 L_wend\ns_cmp_lt_u32 s94, 40\ns_cbranch_scc1 L_final\ns_branch L_wend")
        a("L_D0:")
        self.spin_lds([C_O], 44)
        DW = [[96 + 2*n + q for q in range(2)] for n in range(32)]
        a("L_D1:")
        self.srd(48, 32, 2211840)
        def dids():
            a("s_mul_i32 s64, s8, 192\ns_cmp_eq_u32 s8, 3\ns_cselect_b32 s64, 512, s64\ns_cmp_ge_u32 s8, 2\ns_cselect_b32 s65, 31, 47")
        dids()
        a("v_min_u32 v4, s65, v0\nv_lshlrev_b32 v2, 3, v4\ns_lshl_b32 s60, s64, 1\ns_mul_i32 s61, s11, 40960\ns_add_u32 s61, s61, s60")
        for n in range(32):
            a(f"buffer_load_dwordx2 v[{DW[n][0]}:{DW[n][1]}], v2, s[48:51], s61 offen offset:{1280*(n%4)} {LNT}")
            if n % 4 == 3 and n < 31: a("s_addk_i32 s61, 5120")
        a("L_D2:")
        dids()
        a("v_min_u32 v4, s65, v0\nv_lshlrev_b32 v4, 4, v4")
        a(f"s_mul_i32 s70, s11, 2560\ns_lshl_b32 s60, s64, 2\ns_add_u32 s70, s70, s60\ns_add_u32 s70, s70, {WS_OP}")
        a("v_lshrrev_b32 v5, 3, v0\nv_and_b32 v6, 7, v0\nv_lshlrev_b32 v6, 4, v6")
        a("v_mul_u32_u24 v7, 17280, v5\nv_add_u32 v8, v7, v6\nv_mul_u32_u24 v9, 27648, v5\nv_add_u32 v9, v9, v6")
        a("s_lshr_b32 s60, s11, 1\ns_and_b32 s61, s11, 1\ns_lshl_b32 s61, s61, 7")
        a(f"s_mul_i32 s66, s60, 640\ns_add_u32 s66, s66, {WS_Z}\ns_add_u32 s67, s66, s61\ns_lshl_b32 s68, s60, 10\ns_add_u32 s68, s68, s61\ns_add_u32 s68, s68, {WS_U}")
        self.waitvm(0)
        Tf = [160, 161]; Dp = []
        for m in range(16):
            lo, hi, Tf = self.permpair(DW[2*m], DW[2*m+1], Tf); Dp.append((lo, hi))
        self.stamp(9)
        def ld():
            for q in range(4): a(f"buffer_load_dwordx4 v[{44+4*q}:{47+4*q}], v9, s[44:47], s68 offen offset:{256*q} sc1")
        self.poll(ld, lambda: self.chk_tag(range(44, 60), 64), o.usleep, 37)
        def R(b):
            for k in range(4): a(f"v_permlane32_swap_b32 v{b+k}, v{b+4+k}")
            a(f"v_pk_add_f32 v[{b}:{b+1}], v[{b}:{b+1}], v[{b+4}:{b+5}]\nv_pk_add_f32 v[{b+2}:{b+3}], v[{b+2}:{b+3}], v[{b+6}:{b+7}]")
            a(f"v_permlane16_swap_b32 v{b}, v{b+2}\nv_permlane16_swap_b32 v{b+1}, v{b+3}\nv_pk_add_f32 v[{b}:{b+1}], v[{b}:{b+1}], v[{b+2}:{b+3}]")
            self.ror(b, 8); self.ror(b + 1, 8)
        R(44); R(52)
        a("v_mov_b32 v20, v44\nv_mov_b32 v21, v45\nv_mov_b32 v22, v52\nv_mov_b32 v23, v53")
        a("v_mov_b32 v26, 0x3d372713\ns_cmp_ge_u32 s8, 2\ns_cselect_b32 s71, 0, 0xffff")
        self.stamp(10)
        if o.td: self.spin_lds([C_TD], 60, target=1)
        def ld0(): a("buffer_load_dwordx4 v[72:75], v7, s[44:47], s66 offen offset:512 sc1")
        def ld():
            ld0()
            a("buffer_load_dwordx4 v[64:67], v8, s[44:47], s67 offen sc1\nbuffer_load_dwordx4 v[68:71], v8, s[44:47], s67 offen offset:256 sc1")
        self.prewait(ld0, lambda: self.chk_tag(range(72, 76), 60), 0x01010101, 0x01010101, o.prez)
        self.ppoll(ld, lambda: self.chk_tag(range(64, 76), 60), 3, o.bo_z, 38, rl=40, pipe=o.pipez)
        self.stamp(11)
        for k in range(0, 10, 2): a(f"v_pk_mov_b32 v[{44+k}:{45+k}], v[{64+k}:{65+k}], v[{64+k}:{65+k}] op_sel:[0,1]")
        a("v_permlane32_swap_b32 v52, v53")
        for k in range(4): a(f"v_permlane32_swap_b32 v{44+k}, v{48+k}")
        a("v_add_f32 v52, v52, v53\nv_pk_add_f32 v[44:45], v[44:45], v[48:49]\nv_pk_add_f32 v[46:47], v[46:47], v[50:51]\nv_mov_b32 v53, v52")
        a("v_permlane16_swap_b32 v44, v46\nv_permlane16_swap_b32 v45, v47\nv_permlane16_swap_b32 v52, v53")
        a("v_pk_add_f32 v[44:45], v[44:45], v[46:47]\nv_add_f32 v52, v52, v53")
        self.ror(52, 8); self.ror(44, 8); self.ror(45, 8)
        a("v_mul_f32 v52, 0x3acccccd, v52")
        a("v_readlane_b32 s60, v52, 0\nv_readlane_b32 s61, v52, 32")
        a("v_mov_b32 v54, s60\nv_mov_b32 v55, s61\nv_fma_f32 v55, -v54, v54, v55\nv_add_f32 v55, 0x3727c5ac, v55\nv_rsq_f32 v56, v55")
        a("v_fma_f32 v44, -v54, v20, v44\nv_fma_f32 v45, -v54, v21, v45\nv_fma_f32 v44, v56, v44, v22\nv_fma_f32 v45, v56, v45, v23")
        a("v_mov_b32 v46, v44\nv_mov_b32 v47, v45\nv_permlane32_swap_b32 v44, v46\nv_permlane32_swap_b32 v45, v47")
        a("v_mul_f32 v48, v44, v44\nv_mul_f32 v49, v45, v45\nv_fma_f32 v48, v48, v26, 1.0\nv_fma_f32 v49, v49, v26, 1.0\nv_mul_f32 v48, v48, v44\nv_mul_f32 v49, v49, v45")
        a("v_mul_f32 v48, 0xc0135761, v48\nv_mul_f32 v49, 0xc0135761, v49\nv_exp_f32 v48, v48\nv_exp_f32 v49, v49\nv_mul_f32 v44, v44, v46\nv_mul_f32 v45, v45, v47")
        a("v_add_f32 v48, 1.0, v48\nv_add_f32 v49, 1.0, v49\nv_rcp_f32 v48, v48\nv_rcp_f32 v49, v49\nv_mul_f32 v44, v44, v48\nv_mul_f32 v45, v45, v49\nv_cvt_pk_bf16_f32 v44, v44, v45")
        for m in range(16): a(f"v_readlane_b32 s{72+m}, v44, {16*(m&1) + (m>>1)}")
        for m in range(16):
            lo, hi = Dp[m]
            for k in range(2):
                if m == 0: a(f"v_dot2_f32_bf16 v{48+2*k}, s{72+m}, v{lo[k]}, 0\nv_dot2_f32_bf16 v{49+2*k}, s{72+m}, v{hi[k]}, 0")
                else: a(f"v_dot2c_f32_bf16 v{48+2*k}, s{72+m}, v{lo[k]}\nv_dot2c_f32_bf16 v{49+2*k}, s{72+m}, v{hi[k]}")
        a("s_and_b32 exec_hi, exec_hi, s71")
        self.tag(range(48, 52))
        a("buffer_store_dwordx4 v[48:51], v4, s[44:47], s70 offen sc1")
        self.stamp(13)
        a("s_branch L_wend")
        a("L_final:")
        self.srd(52, 38, 1280)
        a("v_and_b32 v10, 3, v0\nv_lshlrev_b32 v10, 4, v10\ns_min_u32 s60, s94, 39\ns_lshl_b32 s69, s60, 6")
        a("v_lshrrev_b32 v2, 2, v0\nv_mul_u32_u24 v2, 2560, v2\nv_add_u32 v2, v2, v10\nv_lshrrev_b32 v3, 1, v10\nv_lshl_add_u32 v3, v16, 1, v3")
        a(f"s_add_u32 s62, s69, {WS_OP}\ns_add_u32 s63, s62, 40960\ns_add_u32 s64, s62, 81920\ns_add_u32 s65, s62, 122880\ns_add_u32 s66, s69, {WS_X2}\ns_lshr_b32 s67, s69, 1\ns_add_u32 s68, s69, {WS_MR + 7680}")
        self.spin_lds([C_Z], 44)
        def ld():
            a("buffer_load_dwordx4 v[60:63], v10, s[44:47], s66 offen sc1\nbuffer_load_dwordx4 v[64:67], v10, s[44:47], s68 offen sc1")
        self.poll(ld, lambda: self.chk_tag(range(60, 68), 68), o.xsleep)
        for g in range(4): a(f"v_mov_b32_dpp v24, v{64+g} quad_perm:[0,1,2,3] row_mask:{hex(1<<g)} bank_mask:0xf\nv_mov_b32_dpp v25, v{60+g} quad_perm:[0,1,2,3] row_mask:{hex(1<<g)} bank_mask:0xf")
        self.hi(24, 24)
        self.stamp(26)
        def ld():
            for u in range(3): a(f"buffer_load_dwordx4 v[{44+4*u}:{47+4*u}], v2, s[44:47], s{62+u} offen sc1")
            a("s_mov_b64 s[76:77], exec\ns_and_b32 exec_lo, exec_lo, 0xffffff\ns_mov_b32 exec_hi, 0")
            a("buffer_load_dwordx4 v[56:59], v2, s[44:47], s65 offen sc1\ns_mov_b64 exec, s[76:77]")
        for k in range(56, 60): a(f"v_and_b32 v{k}, s98, v18")
        self.prewait(lambda: a("buffer_load_dwordx4 v[44:47], v2, s[44:47], s62 offen sc1"), lambda: self.chk_tag(range(44, 48), 68), 0x00010001, 0x00010001, o.prec)
        self.ppoll(ld, lambda: self.chk_tag(range(44, 60), 68), 4, o.bo_c, 36, rl=52, pipe=o.pipec)
        self.stamp(14)
        a("v_pk_add_f32 v[60:61], v[44:45], v[48:49]\nv_pk_add_f32 v[62:63], v[46:47], v[50:51]\nv_pk_add_f32 v[64:65], v[52:53], v[56:57]\nv_pk_add_f32 v[66:67], v[54:55], v[58:59]")
        a("v_pk_add_f32 v[60:61], v[60:61], v[64:65]\nv_pk_add_f32 v[62:63], v[62:63], v[66:67]")
        self.red4([60, 61, 62, 63]); self.ror(60, 4); self.ror(60, 8)
        a("v_fma_f32 v60, v60, v24, v25\nv_cvt_pk_bf16_f32 v60, v60, v60")
        a("s_and_b32 exec_lo, exec_lo, 0x000f000f\ns_and_b32 exec_hi, exec_hi, 0x000f000f")
        a("buffer_store_short v60, v3, s[52:55], s67 offen")
        a("s_cbranch_execz L_dry_ret")
        a("s_cmp_lg_u32 s94, 0\ns_cbranch_scc1 L_fin2")
        a("s_mov_b64 exec, 1\nv_mov_b32 v6, 0\nbuffer_store_dword v18, v6, s[44:47], 0 offen sc1")
        a("L_fin2:")
        self.stamp(15)
        a("s_branch L_wend")
        a("L_end:\ns_endpgm")
        a(footer(256, 100, 256))
        if o.skipvm:
            L = []
            for i, line in enumerate(a.L):
                if "buffer_store" in line and "v19" not in line and "v18" not in line:
                    L += [f"    s_cbranch_execz L_sks{i}", line, f"L_sks{i}:"]
                else: L.append(line)
            a.L = L
        return a.text()

if __name__ == "__main__":
    ap = argparse.ArgumentParser()
    ap.add_argument("-o", default="k.s")
    for k, v in dict(depth=6, depth2=0, d2pos=12, d0=2, stamps=0, dry=1, fdry=0, prio=3, sprio=3, masked=1, swait=0, fsleep=8, msleep=4, tsleep=0, usleep=6,
                     nopoll=0, b1early=1, nofront=0, nostore=0, norole=0, nohopld=0, t1=18, t2=36, t3=0, tickets=1, wlate=160, gearly=160,
                     pipe=0, pgap=1, xsleep=4, preb=4, prez=4, prec=4, asleep=1, hx=0, ackst=0, td=0, tdnear=240, tdsleep=8, yack=1, pretouch=0, dynord=0, w1dry=0, codepf=0, cons=0, skipvm=1, sml=0, atgt=4, gtrig=1, gprio=-1, early=0).items():
        ap.add_argument("--" + k, type=int, default=v)
    for k in ("nt", "wnt", "lnt"): ap.add_argument("--" + k, default="nt")
    ap.add_argument("--ptf", default="")
    for k in ("pipea", "pipeb", "pipez", "pipec"): ap.add_argument("--" + k, type=int, default=None)
    for k in ("bo_a", "bo_b", "bo_z", "bo_c"): ap.add_argument("--" + k, default="0")
    o = ap.parse_args()
    for k in ("bo_a", "bo_b", "bo_z", "bo_c"):
        v = [int(x) for x in getattr(o, k).split(",")]; setattr(o, k, v[0] if len(v) == 1 else tuple(v))
    for k in ("nt", "wnt", "lnt"):
        if getattr(o, k) == "pl": setattr(o, k, "")
    g = G(o); t = g.build()
    open(o.o, "w").write(t)
    print("nops inserted:", g.a.nops, "lines:", len(t.splitlines()))
```

```python
import sys, argparse
from asmlib import *

WS_EPOCH = 0x0
WS_CNT   = 0x1000
WS_MR    = 0x10000
WS_Q2    = 0x20000
WS_O     = 0x40000
WS_ML    = 0x60000
WS_X2    = 0x61000
WS_Y     = 0x62000
WS_OP    = 0x6C000
WS_Z     = 0x8E000
WS_U     = 0xB0000
WS_G1    = 0x100000
WS_STAMP = 0x200000
L_FLAG = 0x20000
C_F1, C_F2, C_Q, C_K, C_P, C_MAX, C_T1, C_T2, C_T3, C_O, C_W, C_U, C_Z, C_TKT, C_TD, C_YA, C_A, C_WL, C_GL = [4*i for i in range(19)]
L_RED1 = 0x20100
L_RED2 = 0x20800
L_QBUF = 0x21000
L_MAXB = 0x21100
L_LSUM = 0x21110
L_PBUF = 0x21200
L_REDO = 0x21800
L_REDW = 0x22000
L_GU   = 0x22400
L_GZ   = 0x23400
L_GX2  = 0x23D00
LDS_BYTES = 0x24000
LOG2E = 0x3fb8aa3b
TAGADD = 0x61C88647

class G:
    def __init__(self, opt):
        self.o = opt
        self.a = Asm()
        self.n = 0
    def lab(self, p="L"):
        self.n += 1
        return f"{p}_{self.n}"
    def stamp(self, k):
        if not self.o.stamps: return
        a = self.a; sk = self.lab("st")
        a(f"s_cbranch_execz {sk}\ns_memrealtime s[96:97]\ns_waitcnt lgkmcnt(0)\nv_writelane_b32 v19, s96, {k}\n{sk}:")
    def note(self, k, sreg):
        if not self.o.stamps: return
        a = self.a; sk = self.lab("st")
        a(f"s_cbranch_execz {sk}\nv_writelane_b32 v19, {sreg}, {k}\n{sk}:")
    def stamp_init(self):
        if not self.o.stamps: return
        self.a("v_mov_b32 v19, 0\nv_writelane_b32 v19, s96, 0")
    def dump_stamps(self):
        if not self.o.stamps: return
        a = self.a
        a("s_mov_b64 exec, -1")
        a("s_lshl_b32 s60, s2, 3\ns_add_u32 s60, s60, s3\ns_lshl_b32 s60, s60, 8")
        a(f"s_add_u32 s60, s60, {WS_STAMP}\nv_lshlrev_b32 v1, 2, v0")
        if self.o.stamps == 2:
            self.srd(48, 40, 256)
            a("v_not_b32 v2, v19\nv_cmp_eq_u32 vcc, 0, v0\nv_cndmask_b32 v19, v19, v2, vcc")
            a("s_cmp_ge_u32 s3, 4\ns_cselect_b32 s60, 64, 0\ns_mov_b32 exec_lo, 0xffff\ns_mov_b32 exec_hi, 0")
            a("buffer_atomic_umax v19, v1, s[48:51], s60 offen")
        else:
            a(f"buffer_store_dword v19, v1, s[44:47], s60 offen")
    def waitvm(self, n):
        a = self.a; sk = self.lab("wv")
        a(f"s_cbranch_execz {sk}\ns_waitcnt vmcnt({n})\n{sk}:")
    def barrier(self):
        a = self.a; sk = self.lab("bar")
        a(f"s_cbranch_execz {sk}\ns_barrier\n{sk}:")
    def srd(self, q, ptr, size, off=0):
        a = self.a
        if off: a(f"s_add_u32 s{q}, s{ptr}, {off}\ns_addc_u32 s{q+1}, s{ptr+1}, 0")
        else: a(f"s_mov_b32 s{q}, s{ptr}\ns_mov_b32 s{q+1}, s{ptr+1}")
        a(f"s_mov_b32 s{q+2}, {size}\ns_mov_b32 s{q+3}, 0x20000")
    def lo(self, d, s): self.a(f"v_lshlrev_b32 v{d}, 16, v{s}")
    def hi(self, d, s): self.a(f"v_and_b32 v{d}, 0xffff0000, v{s}")
    def round2(self, x, y, t):
        self.a(f"v_cvt_pk_bf16_f32 v{t}, v{x}, v{y}"); self.lo(x, t); self.hi(y, t)
    def allred(self, v, t, op="add", bits=(0, 1, 2, 3, 4, 5)):
        a = self.a
        d = {0: "quad_perm:[1,0,3,2]", 1: "quad_perm:[2,3,0,1]", 2: "row_half_mirror", 3: "row_mirror"}
        for b in bits:
            if b < 4: a(f"v_{op}_f32_dpp v{v}, v{v}, v{v} {d[b]} row_mask:0xf bank_mask:0xf")
            else:
                a(f"v_mov_b32 v{t}, v{v}\nv_permlane{16 if b == 4 else 32}_swap_b32 v{t}, v{v}\nv_{op}_f32 v{v}, v{v}, v{t}")
    def ror(self, v, n): self.a(f"v_add_f32_dpp v{v}, v{v}, v{v} row_ror:{n} row_mask:0xf bank_mask:0xf")
    def red8(self, acc):
        a = self.a
        for k in range(4): a(f"v_permlane32_swap_b32 v{acc[k]}, v{acc[k+4]}")
        for k in range(4): a(f"v_add_f32 v{acc[k]}, v{acc[k]}, v{acc[k+4]}")
        for k in range(2): a(f"v_permlane16_swap_b32 v{acc[k]}, v{acc[k+2]}")
        for k in range(2): a(f"v_add_f32 v{acc[k]}, v{acc[k]}, v{acc[k+2]}")
    def red4(self, v):
        a = self.a
        a(f"v_permlane32_swap_b32 v{v[0]}, v{v[2]}\nv_permlane32_swap_b32 v{v[1]}, v{v[3]}")
        a(f"v_add_f32 v{v[0]}, v{v[0]}, v{v[2]}\nv_add_f32 v{v[1]}, v{v[1]}, v{v[3]}")
        a(f"v_permlane16_swap_b32 v{v[0]}, v{v[1]}\nv_add_f32 v{v[0]}, v{v[0]}, v{v[1]}")
    def permpair(self, A, B, T):
        a = self.a
        for k in range(len(A)):
            a(f"v_perm_b32 v{T[k]}, v{B[k]}, v{A[k]}, s12")
            a(f"v_perm_b32 v{B[k]}, v{B[k]}, v{A[k]}, s13")
        return list(T), list(B), list(A)
    def silu2(self, src, dst, t):
        a = self.a
        x0, x1, e0, e1 = t
        self.lo(x0, src); self.hi(x1, src)
        a(f"v_mul_f32 v{e0}, 0xbfb8aa3b, v{x0}\nv_mul_f32 v{e1}, 0xbfb8aa3b, v{x1}")
        a(f"v_exp_f32 v{e0}, v{e0}\nv_exp_f32 v{e1}, v{e1}")
        a(f"v_add_f32 v{e0}, 1.0, v{e0}\nv_add_f32 v{e1}, 1.0, v{e1}")
        a(f"v_rcp_f32 v{e0}, v{e0}\nv_rcp_f32 v{e1}, v{e1}")
        a(f"v_mul_f32 v{x0}, v{x0}, v{e0}\nv_mul_f32 v{x1}, v{x1}, v{e1}")
        a(f"v_cvt_pk_bf16_f32 v{dst}, v{x0}, v{x1}")
    def cnt_add(self, cnt, rtn=None):
        a = self.a
        a("s_mov_b64 s[14:15], exec\ns_and_b32 exec_lo, exec_lo, 1\ns_mov_b32 exec_hi, 0")
        if rtn is None: a(f"ds_add_u32 v14, v15 offset:{cnt}")
        else: a(f"ds_add_rtn_u32 v{rtn}, v14, v15 offset:{cnt}")
        a("s_mov_b64 exec, s[14:15]")
    def last_arriver(self, cnt, skip, t):
        a = self.a; go = self.lab("la")
        self.cnt_add(cnt, t)
        a(f"s_waitcnt lgkmcnt(0)\ns_cbranch_execz {go}\nv_readfirstlane_b32 s60, v{t}\ns_cmp_lg_u32 s60, 3\ns_cbranch_scc1 {skip}\n{go}:")
    def spin_lds(self, cnts, t, target=None):
        a = self.a; top = self.lab("sp"); out = self.lab("spo")
        a(f"s_mov_b32 s61, 0\n{top}:")
        for i, c in enumerate(cnts): a(f"ds_read_b32 v{t+i}, v14 offset:{c}")
        a(f"s_waitcnt lgkmcnt(0)\ns_cbranch_execz {out}")
        for i in range(1, len(cnts)): a(f"v_add_u32 v{t}, v{t}, v{t+i}")
        a(f"v_readfirstlane_b32 s60, v{t}\ns_cmp_ge_u32 s60, {target or 4*len(cnts)}\ns_cbranch_scc1 {out}")
        a(f"s_sleep 1\ns_add_u32 s61, s61, 1\ns_cmp_lt_u32 s61, 0x40000\ns_cbranch_scc1 {top}\n{out}:")
    def poll(self, loads, check, sleep=0, nk=None, pre=0, rk=None, rl=None, preloaded=False):
        a = self.a; top = self.lab("pl"); out = self.lab("plo"); full = self.lab("plf"); nx = self.lab("pln")
        a(f"s_mov_b32 s61, 0\ns_mov_b64 s[14:15], exec")
        if pre: a("s_and_b32 exec_lo, exec_lo, 1\ns_mov_b32 exec_hi, 0\ns_mov_b32 s99, 1")
        if preloaded: a(f"s_branch {top}_c")
        a(f"{top}:")
        if self.o.skipvm: a(f"s_cbranch_execz {top}_s")
        if not self.o.nohopld: loads()
        if preloaded: a(f"{top}_c:")
        if self.o.skipvm: a(f"s_cbranch_execz {top}_s\ns_waitcnt vmcnt(0)\n{top}_s:" if preloaded else f"s_waitcnt vmcnt(0)\n{top}_s:")
        else: self.waitvm(0)
        if rk is not None and self.o.stamps:
            sk = self.lab("rs")
            a(f"s_cbranch_execz {sk}\ns_memrealtime s[96:97]\ns_min_u32 s60, s61, 7\ns_add_u32 s60, s60, {rk}\ns_mov_b32 m0, s60\ns_waitcnt lgkmcnt(0)\nv_writelane_b32 v19, s96, m0\n{sk}:")
        if rl is not None and self.o.stamps:
            sk = self.lab("rs")
            a(f"s_cbranch_execz {sk}\ns_memrealtime s[96:97]\ns_add_u32 s95, s95, 1\ns_and_b32 s60, s95, 7\ns_add_u32 s60, s60, {rl}\ns_mov_b32 m0, s60\ns_waitcnt lgkmcnt(0)\nv_writelane_b32 v19, s96, m0\n{sk}:")
        check()
        a(f"s_cbranch_vccz {full if pre else out}")
        if self.o.nopoll: a(f"s_branch {out}")
        if self.o.masked: a("s_mov_b64 exec, vcc")
        if pre:
            a(f"s_cmp_eq_u32 s99, 0\ns_cbranch_scc1 {nx}\ns_sleep {pre}\n{nx}:")
        self.backoff(sleep)
        a(f"s_add_u32 s61, s61, 1\ns_cmp_lt_u32 s61, 0x8000\ns_cbranch_scc1 {top}")
        if pre:
            a(f"s_branch {out}\n{full}:\ns_cmp_eq_u32 s99, 0\ns_cbranch_scc1 {out}\ns_mov_b32 s99, 0\ns_andn2_b64 exec, s[14:15], exec\ns_cbranch_execnz {top}")
        a(f"{out}:\ns_mov_b64 exec, s[14:15]")
        if nk is not None: self.note(nk, "s61")
    def backoff(self, sleep):
        a = self.a
        if isinstance(sleep, tuple):
            th, sh, tl, sl = sleep; l1 = self.lab("bo"); l2 = self.lab("bo")
            a(f"s_bcnt1_i32_b64 s60, vcc\ns_cmp_le_u32 s60, {tl}\ns_cbranch_scc1 {l2}\ns_cmp_le_u32 s60, {th}\ns_cbranch_scc1 {l1}\ns_sleep {sh}\n{l1}:")
            if sl: a(f"s_sleep {sl}")
            a(f"{l2}:")
        elif sleep: a(f"s_sleep {sleep}")
    def ppoll(self, loads, check, nops, sleep=0, nk=None, rl=None, pipe=None):
        if not (self.o.pipe if pipe is None else pipe):
            return self.poll(loads, check, sleep, nk, rl=rl)
        a = self.a; top = self.lab("pp"); out = self.lab("ppo")
        a("s_mov_b32 s61, 0\ns_mov_b64 s[14:15], exec")
        loads()
        if self.o.pgap: a(f"s_sleep {self.o.pgap}")
        a(f"{top}:")
        loads()
        self.waitvm(nops)
        if rl is not None and self.o.stamps:
            sk = self.lab("rs")
            a(f"s_cbranch_execz {sk}\ns_memrealtime s[96:97]\ns_add_u32 s95, s95, 1\ns_and_b32 s60, s95, 7\ns_add_u32 s60, s60, {rl}\ns_mov_b32 m0, s60\ns_waitcnt lgkmcnt(0)\nv_writelane_b32 v19, s96, m0\n{sk}:")
        check()
        a(f"s_cbranch_vccz {out}\ns_mov_b64 exec, vcc")
        self.backoff(sleep)
        a(f"s_add_u32 s61, s61, 1\ns_cmp_lt_u32 s61, 0x8000\ns_cbranch_scc1 {top}")
        a(f"{out}:\ns_mov_b64 exec, s[14:15]")
        if nk is not None: self.note(nk, "s61")
    def prewait(self, loads, check, mlo, mhi, sleep):
        if not sleep: return
        a = self.a; top = self.lab("pw"); out = self.lab("pwo")
        a(f"s_mov_b32 s61, 0\ns_mov_b64 s[78:79], exec\ns_and_b32 exec_lo, exec_lo, {hex(mlo)}\ns_and_b32 exec_hi, exec_hi, {hex(mhi)}\n{top}:\ns_cbranch_execz {out}")
        loads()
        a(f"s_waitcnt vmcnt(0)")
        check()
        a(f"s_cmp_eq_u64 vcc, exec\ns_cbranch_scc0 {out}\ns_sleep {sleep}")
        a(f"s_add_u32 s61, s61, 1\ns_cmp_lt_u32 s61, 0x8000\ns_cbranch_scc1 {top}\n{out}:\ns_mov_b64 exec, s[78:79]")
    def tdetect(self):
        if not self.o.td: return
        a = self.a; top = self.lab("td"); out = self.lab("tdo"); w = self.lab("tdw"); f = self.lab("tdf")
        a(f"s_cbranch_execz {out}\ns_cmp_lg_u32 s3, 4\ns_cbranch_scc1 {w}")
        a(f"s_lshl_b32 s60, s4, 9\ns_add_u32 s60, s60, {WS_CNT}\ns_add_u32 s80, s42, s60\ns_addc_u32 s81, s43, 0\ns_mov_b32 s61, 0\n{top}:")
        for q in range(4): a(f"s_load_dword s{72+q}, s[80:81], {128*q} glc")
        a("s_waitcnt lgkmcnt(0)\ns_add_u32 s72, s72, s73\ns_add_u32 s74, s74, s75\ns_add_u32 s72, s72, s74")
        a(f"s_cmp_ge_u32 s72, 256\ns_cbranch_scc1 {f}\ns_cmp_ge_u32 s72, {self.o.tdnear}\ns_cbranch_scc1 {top}_n\ns_sleep {self.o.tdsleep}\n{top}_n:")
        a(f"s_add_u32 s61, s61, 1\ns_cmp_lt_u32 s61, 0x8000\ns_cbranch_scc1 {top}\n{f}:")
        self.cnt_add(C_TD)
        a(f"s_branch {out}\n{w}:")
        self.spin_lds([C_TD], 44, target=1)
        a(f"{out}:")
    def get_ticket(self):
        a = self.a; top = self.lab("tk"); out = self.lab("tko")
        if not self.o.tickets:
            a("s_mov_b32 s94, s2"); return
        a(f"s_mov_b32 s61, 0\n{top}:\nds_read_b32 v1, v14 offset:{C_TKT}\ns_waitcnt lgkmcnt(0)\nv_readfirstlane_b32 s94, v1\ns_cbranch_execz {out}")
        a(f"s_cmp_lg_u32 s94, 0\ns_cbranch_scc1 {out}\ns_sleep 1\ns_add_u32 s61, s61, 1\ns_cmp_lt_u32 s61, 0x40000\ns_cbranch_scc1 {top}\n{out}:")
        a("s_sub_u32 s94, s94, 1\ns_and_b32 s94, s94, 0xff")
    def swait(self, loads, regs, ref, eq):
        if not self.o.swait: return
        a = self.a; top = self.lab("sw"); out = self.lab("swo"); again = self.lab("swa")
        a(f"s_cbranch_execz {out}\ns_mov_b32 s61, 0\n{top}:")
        loads()
        a("s_waitcnt lgkmcnt(0)")
        for r in regs:
            a(f"s_cmp_{'lg' if eq else 'eq'}_u32 s{r}, {ref}\ns_cbranch_scc1 {again}")
        a(f"s_branch {out}\n{again}:")
        a(f"s_add_u32 s61, s61, 1\ns_cmp_lt_u32 s61, 0x8000\ns_cbranch_scc1 {top}\n{out}:")
    def chk_sent(self, regs, t):
        a = self.a
        regs = list(regs)
        if len(regs) == 1:
            a(f"v_cmp_eq_u32 vcc, -1, v{regs[0]}"); return
        if len(regs) % 2 == 0:
            a(f"v_max_u32 v{t}, v{regs[0]}, v{regs[1]}"); rest = regs[2:]
        else:
            a(f"v_max3_u32 v{t}, v{regs[0]}, v{regs[1]}, v{regs[2]}"); rest = regs[3:]
        for i in range(0, len(rest), 2): a(f"v_max3_u32 v{t}, v{t}, v{rest[i]}, v{rest[i+1]}")
        a(f"v_cmp_eq_u32 vcc, -1, v{t}")
    def tag(self, regs, rnd=False):
        for r in regs:
            if rnd: self.a(f"v_add_u32 v{r}, 0x80, v{r}")
            self.a(f"v_bfi_b32 v{r}, s98, v18, v{r}")
    def chk_tag(self, regs, t):
        a = self.a; regs = list(regs)
        a(f"v_xor_b32 v{t}, v{regs[0]}, v18")
        for r in regs[1:]: a(f"v_bitop3_b32 v{t}, v{r}, v18, v{t} bitop3:0xbe")
        a(f"v_and_b32 v{t}, s98, v{t}\nv_cmp_ne_u32 vcc, 0, v{t}")
    def sum4x4(self, base):
        a = self.a; b = base
        for h in (0, 2):
            a(f"v_pk_add_f32 v[{b+h}:{b+h+1}], v[{b+h}:{b+h+1}], v[{b+4+h}:{b+5+h}]")
            a(f"v_pk_add_f32 v[{b+8+h}:{b+9+h}], v[{b+8+h}:{b+9+h}], v[{b+12+h}:{b+13+h}]")
        for h in (0, 2):
            a(f"v_pk_add_f32 v[{b+h}:{b+h+1}], v[{b+h}:{b+h+1}], v[{b+8+h}:{b+9+h}]")
    def endwave(self):
        a = self.a
        a("s_cbranch_execz L_dry_ret")
        self.dump_stamps()
        a("s_endpgm")

    def build(self):
        a = self.a; o = self.o; D = o.depth; NT = o.nt; WNT = o.wnt; LNT = o.lnt
        a(header(256, 512, LDS_BYTES))
        a("s_cmp_ge_u32 s2, 256\ns_cbranch_scc1 L_end")
        a("s_load_dwordx16 s[16:31], s[0:1], 0\ns_load_dwordx8 s[32:39], s[0:1], 64\ns_load_dwordx4 s[40:43], s[0:1], 96")
        if o.stamps:
            a("s_memrealtime s[96:97]")
        a("v_lshrrev_b32 v1, 6, v0\nv_and_b32 v0, 63, v0\nv_readfirstlane_b32 s3, v1")
        a("s_and_b32 s4, s2, 7\ns_lshr_b32 s5, s2, 3\ns_lshr_b32 s6, s5, 3")
        if o.hx: a(f"s_add_u32 s60, s4, {o.hx}\ns_and_b32 s60, s60, 7\ns_lshl_b32 s60, s60, 2")
        else: a("s_lshl_b32 s60, s4, 2")
        a("s_add_u32 s6, s6, s60\ns_and_b32 s7, s5, 7")
        a("s_mov_b32 s12, 0x05040100\ns_mov_b32 s13, 0x07060302")
        a(f"v_mov_b32 v14, {L_FLAG}\nv_mov_b32 v15, 1")
        a("s_cmp_ge_u32 s3, 4\ns_cbranch_scc1 L_aux")
        a("v_lshrrev_b32 v4, 4, v0\nv_and_b32 v5, 15, v0\ns_lshl_b32 s60, s3, 2\nv_add_u32 v6, s60, v4")
        a("v_xor_b32 v2, v5, v6\nv_lshlrev_b32 v2, 4, v2\nv_lshl_add_u32 v2, v4, 8, v2\nv_lshlrev_b32 v3, 4, v0")
        a("s_lshl_b32 s62, s6, 20\ns_lshl_b32 s60, s7, 17\ns_add_u32 s62, s62, s60\ns_lshl_b32 s60, s3, 10\ns_add_u32 s62, s62, s60\ns_mov_b32 m0, s60\ns_mov_b32 s63, s62")
        a("s_waitcnt lgkmcnt(0)")
        self.stamp_init()
        self.srd(48, 18, 0x2000000)
        a("s_mov_b32 s61, 0")
        if o.d0 > 0:
            a("L_k1:")
            a(f"buffer_load_dwordx4 v2, s[48:51], s62 offen {NT} lds")
            a(f"s_addk_i32 s62, 0x1000\ns_addk_i32 m0, 0x1000\ns_add_u32 s61, s61, 1\ns_cmp_lt_u32 s61, {o.d0}\ns_cbranch_scc1 L_k1")
        self.stamp(44)
        a("s_barrier")
        self.stamp(45)
        if o.stamps and o.early:
            a(f"s_waitcnt vmcnt({o.d0-1})"); self.stamp(46)
        N = 64
        VB = 128
        Vr = [[VB + 4 * t + k for k in range(4)] for t in range(32)]
        trig = sorted([(o.t1, C_T1), (o.t2, C_T2), (o.t3, C_T3)])
        Tfree = [32, 33, 34, 35]; pairs = {}
        cur = o.d0; j = 0
        first = True
        for n, c in [(n, c) for n, c in trig if n <= 32] + [(32, None)]:
            if n > cur:
                lb = f"L_k2_{j}"; j += 1
                a(f"{lb}:\ns_waitcnt vmcnt({D-1})")
                a(f"buffer_load_dwordx4 v2, s[48:51], s62 offen {NT} lds")
                a(f"s_addk_i32 s62, 0x1000\ns_addk_i32 m0, 0x1000\ns_add_u32 s61, s61, 1\ns_cmp_lt_u32 s61, {n}\ns_cbranch_scc1 {lb}")
                cur = n
            if first:
                first = False
                a("s_load_dword s9, s[42:43], 0")
                self.srd(52, 20, 0x2000000); self.srd(44, 42, 0x10000000)
                a("s_mov_b32 s8, s3\ns_mov_b32 s10, 0\ns_mov_b32 s11, 0\ns_mov_b32 s98, 0xff\ns_mov_b32 s95, 0")
                for r in list(range(7, 14)) + [157, 158, 159]: a(f"v_mov_b32 v{r}, 0")
            if c is not None: self.cnt_add(c)
        self.stamp(1)
        if o.stamps:
            a("s_getreg_b32 s60, hwreg(HW_REG_XCC_ID)\ns_add_u32 s60, s60, 1"); self.note(50, "s60")
        def doperm(u):
            nonlocal Tfree
            lo, hi, Tfree = self.permpair(Vr[2*u], Vr[2*u+1], Tfree)
            pairs[u] = (lo, hi)
        D2 = o.depth2 or D
        for t in range(32):
            n = 32 + t
            DD = D2 if t >= o.d2pos else D
            a(f"s_waitcnt vmcnt({DD-1})")
            if n - D == 31:
                self.cnt_add(C_K); self.stamp(2)
            for tn, c in trig:
                if tn == n and tn > 32: self.cnt_add(c)
            a(f"buffer_load_dwordx4 v[{Vr[t][0]}:{Vr[t][3]}], v3, s[52:55], s63 offen {NT}")
            if t < 31: a("s_addk_i32 s63, 0x1000")
            for u in range(16):
                if u not in pairs and 32 + 2*u + 1 <= n - DD: doperm(u)
        for tn, c in trig:
            if tn >= N: self.cnt_add(c)
        if o.sprio: a(f"s_setprio {o.sprio}")
        a(f"s_waitcnt lgkmcnt(0)\ns_add_u32 s9, s9, {TAGADD}\nv_mov_b32 v18, s9")
        self.stamp(3)
        a(f"v_lshlrev_b32 v7, 6, v6\nv_add_u32 v7, {L_PBUF}, v7")
        a(f"v_lshlrev_b32 v8, 5, v5\nv_lshl_add_u32 v8, v4, 3, v8\ns_lshl_b32 s60, s3, 9\ns_add_u32 s60, s60, {L_REDO}\nv_add_u32 v8, s60, v8")
        a(f"v_lshlrev_b32 v9, 4, v0\nv_add_u32 v10, {L_REDO}, v9\nv_mov_b32 v11, {L_LSUM}\nv_mov_b32 v12, 0\nv_lshlrev_b32 v13, 9, v0")
        a("L_pv:")
        a(f"s_lshl_b32 s60, s6, 3\ns_add_u32 s60, s60, s7\ns_lshl_b32 s63, s60, 4\ns_add_u32 s63, s63, {WS_ML}\ns_lshl_b32 s60, s60, 9\ns_add_u32 s62, s60, {WS_O}")
        ACC = list(range(36, 44)); P = list(range(48, 64))
        for k in ACC: a(f"v_mov_b32 v{k}, 0")
        self.spin_lds([C_P], 44)
        self.stamp(4)
        for q in range(4): a(f"ds_read_b128 v[{48+4*q}:{51+4*q}], v7 offset:{16*q}")
        a("s_waitcnt lgkmcnt(0)")
        for u in range(16):
            if u not in pairs:
                self.waitvm(30 - 2*u)
                doperm(u)
            lo, hi = pairs[u]
            for k in range(4):
                a(f"v_dot2c_f32_bf16 v{ACC[2*k]}, v{lo[k]}, v{P[u]}")
                a(f"v_dot2c_f32_bf16 v{ACC[2*k+1]}, v{hi[k]}, v{P[u]}")
        self.stamp(5)
        self.red8(ACC)
        a(f"ds_write_b64 v8, v[{ACC[0]}:{ACC[1]}]")
        self.last_arriver(C_O, "L_send", 44)
        a("s_mov_b64 s[76:77], exec\ns_mov_b32 exec_hi, 0")
        for q in range(4): a(f"ds_read_b128 v[{48+4*q}:{51+4*q}], v10 offset:{512*q}")
        a("ds_read_b128 v[64:67], v11\nds_read_b32 v68, v11 offset:16")
        a("s_waitcnt lgkmcnt(2)")
        self.sum4x4(48)
        self.tag(range(48, 52))
        a("buffer_store_dwordx4 v[48:51], v9, s[44:47], s62 offen sc1")
        a("s_and_b32 exec_lo, exec_lo, 1\ns_waitcnt lgkmcnt(0)")
        a("v_add_f32 v64, v64, v65\nv_add_f32 v66, v66, v67\nv_add_f32 v69, v64, v66")
        self.tag([68, 69])
        a("v_mov_b32 v70, v68\nv_mov_b32 v71, v69")
        a("buffer_store_dwordx4 v[68:71], v12, s[44:47], s63 offen sc1")
        if o.td:
            a(f"s_and_b32 exec_lo, s76, 0xff\ns_and_b32 s60, s5, 3\ns_lshl_b32 s60, s60, 7\ns_add_u32 s60, s60, {WS_CNT}")
            a("buffer_atomic_add v15, v13, s[44:47], s60 offen")
        a("s_mov_b64 exec, s[76:77]")
        self.stamp(6)
        if o.stamps and o.ackst:
            self.waitvm(0); self.stamp(31)
        a("L_send:")
        a("s_cbranch_execz L_dry_ret")
        self.get_ticket()
        self.note(51, "s94")
        if o.cons == 3:
            a("s_cmp_lt_u32 s5, 27\ns_cbranch_scc1 L_hasG")
            self.cnt_add(C_GL); self.cnt_add(C_Z)
            a("s_branch L_wend\nL_hasG:")
        else: a("s_cmp_ge_u32 s94, 216\ns_cbranch_scc1 L_wend")
        if o.cons == 1: a("s_mul_i32 s92, s94, 304\ns_lshr_b32 s92, s92, 13\ns_mul_i32 s93, s92, 27\ns_sub_u32 s93, s94, s93")
        elif o.cons == 3: a("s_mov_b32 s92, s4\ns_mov_b32 s93, s5")
        else: a("s_and_b32 s92, s94, 7\ns_lshr_b32 s93, s94, 3")
        WW = [[96 + 4*i + q for q in range(4)] for i in range(8)]
        GW = list(range(136, 146)); UW = list(range(146, 156)); XF = list(range(160, 165))
        GA = list(range(166, 171)); TT = list(range(174, 179)); SB = list(range(182, 187)); IN = list(range(190, 195))
        def ld8(b0, so, vo, v5):
            a(f"buffer_load_dwordx4 v[{b0}:{b0+3}], v{vo}, s[44:47], s{so} offen sc1\nbuffer_load_dwordx4 v[{b0+4}:{b0+7}], v{v5}, s[44:47], s{so} offen offset:64 sc1")
        def sel5(b0, d):
            a(f"v_cndmask_b32 v{d}, v{b0+4}, v{b0+5}, s[68:69]\nv_cndmask_b32 v51, v{b0+6}, v{b0+7}, s[68:69]\nv_cndmask_b32 v{d}, v{d}, v51, s[70:71]")
        def ldmr():
            ld8(GA[0], 62, 8, 7); ld8(SB[0], 63, 8, 7); ld8(TT[0], 66, 8, 7)
        def gpulls():
            self.srd(48, 28, 2211840); self.srd(52, 30, 2211840); self.srd(56, 16, 1280)
            a("s_mul_i32 s64, s92, 80\ns_mul_i32 s60, s8, 20\ns_add_u32 s64, s64, s60")
            a("s_mul_i32 s60, s64, 3456\ns_lshl_b32 s61, s93, 7\ns_add_u32 s60, s60, s61\ns_add_u32 s61, s60, 55296")
            a("v_lshrrev_b32 v158, 5, v0\nv_and_b32 v1, 31, v0\nv_lshlrev_b32 v1, 2, v1\nv_mul_u32_u24 v159, 27648, v158\nv_add_u32 v159, v159, v1\nv_mul_u32_u24 v157, 6912, v158\nv_add_u32 v157, v157, v1")
            for k in range(8):
                a(f"buffer_load_dword v{GW[k]}, v159, s[48:51], s60 offen offset:{3456*(k%2)} {LNT}\nbuffer_load_dword v{UW[k]}, v159, s[52:55], s60 offen offset:{3456*(k%2)} {LNT}")
                if k % 2 == 1 and k < 7: a("s_addk_i32 s60, 6912")
            for k in range(8, 10):
                a(f"buffer_load_dword v{GW[k]}, v157, s[48:51], s61 offen offset:{3456*(k%2)} {LNT}\nbuffer_load_dword v{UW[k]}, v157, s[52:55], s61 offen offset:{3456*(k%2)} {LNT}")
            a("v_and_b32 v1, 1, v0\nv_lshl_add_u32 v1, v158, 1, v1\nv_lshlrev_b32 v158, 3, v1\nv_lshlrev_b32 v157, 1, v1\nv_lshlrev_b32 v8, 4, v1\nv_mov_b32 v7, 0\ns_lshl_b32 s60, s64, 1")
            a(f"v_mov_b32 v{XF[4]}, 0\nbuffer_load_dwordx2 v[196:197], v158, s[56:59], s60 offen\nbuffer_load_short_d16_hi v{XF[4]}, v157, s[56:59], s60 offen offset:32")
            a(f"s_lshl_b32 s65, s64, 2\ns_add_u32 s62, s65, {WS_MR}\ns_add_u32 s63, s62, 2560\ns_add_u32 s66, s62, 5120")
            ldmr()
        def wids():
            if o.cons in (1, 2): a("s_mul_i32 s64, s94, 205\ns_lshr_b32 s64, s64, 11\ns_mul_i32 s65, s64, 10\ns_sub_u32 s65, s94, s65")
            else: a("s_and_b32 s64, s94, 15\ns_lshr_b32 s65, s94, 4")
            a("s_lshr_b32 s60, s8, 1\ns_lshl_b32 s66, s64, 1\ns_add_u32 s66, s66, s60\ns_and_b32 s67, s8, 1")
        a(f"s_cmp_ge_u32 s94, 160\ns_cbranch_scc1 L_G1\ns_cmp_lt_u32 s94, {o.gearly}\ns_cbranch_scc1 L_G1")
        self.spin_lds([C_A if o.gtrig == 2 else C_WL], 44, target=o.atgt)
        a("L_G1:")
        if o.gprio >= 0: a(f"s_setprio {o.gprio}")
        self.stamp(7)
        gpulls()
        a("L_Gprep:")
        a(f"s_add_u32 s87, s65, {WS_Y}\ns_mov_b32 s68, 0xaaaaaaaa\ns_mov_b32 s69, 0xaaaaaaaa\ns_mov_b32 s70, 0\ns_mov_b32 s71, -1")
        a("v_lshrrev_b32 v158, 5, v0\nv_and_b32 v159, 1, v0")
        a("v_mov_b32 v9, s12\nv_mov_b32 v10, 0x01000504\nv_cndmask_b32 v9, v9, v10, s[68:69]")
        a(f"s_lshl_b32 s60, s8, 9\ns_add_u32 s60, s60, {L_GU}\nv_lshlrev_b32 v11, 3, v0\nv_add_u32 v10, s60, v11")
        a(f"s_mul_i32 s60, s8, 528\ns_add_u32 s60, s60, {L_GZ}\nv_add_u32 v11, s60, v11")
        a(f"v_lshlrev_b32 v12, 2, v158\nv_lshl_add_u32 v12, v159, 3, v12\ns_add_u32 s60, s60, 512\nv_add_u32 v12, s60, v12")
        a(f"s_mul_i32 s60, s8, 80\ns_add_u32 s60, s60, {L_GX2}\nv_add_u32 v13, s60, v8\nv_lshrrev_b32 v6, 2, v8\nv_add_u32 v6, s60, v6")
        a(f"v_bfe_u32 v5, v0, 1, 4\nv_mul_u32_u24 v5, 2560, v5\nv_add_u32 v157, v5, v8")
        self.poll(ldmr, lambda: self.chk_tag(list(range(166, 190)), 50), o.msleep, preloaded=True)
        if o.atrig: self.cnt_add(C_GL)
        self.stamp(27)
        for b0 in (GA[0], TT[0], SB[0]): sel5(b0, b0 + 4)
        self.lo(XF[0], 196); self.hi(XF[1], 196); self.lo(XF[2], 197); self.hi(XF[3], 197)
        Gp = []; Up = []; Tf = [156]
        for W, Lp in ((GW, Gp), (UW, Up)):
            for m in range(5):
                r0, r1 = (W[m], W[4+m]) if m < 4 else (W[8], W[9])
                lo, hi, Tf = self.permpair([r0], [r1], Tf); Lp.append((lo[0], hi[0]))
        for k in range(5):
            self.hi(GA[k], GA[k]); self.hi(TT[k], TT[k])
            a(f"v_add_f32 v{TT[k]}, 1.0, v{TT[k]}")
        def pack5(src, keep=None):
            for k in range(5): a(f"v_cvt_pk_bf16_f32 v{52+k}, v{src[k]}, v{src[k]}")
            for k in range(5): a(f"v_mov_b32_dpp v{58+k}, v{52+k} quad_perm:[1,0,3,2] row_mask:0xf bank_mask:0xf")
            if keep:
                for k in range(5): self.lo(keep[k], 52 + k)
            for k in range(5): a(f"v_perm_b32 v{IN[k]}, v{58+k}, v{52+k}, v9")
        def gpass():
            for m in range(5):
                for i, (Lp, b) in enumerate(((Gp, 64), (Up, 66))):
                    for h in range(2):
                        if m == 0: a(f"v_dot2_f32_bf16 v{b+h}, v{Lp[m][h]}, v{IN[m]}, 0")
                        else: a(f"v_dot2c_f32_bf16 v{b+h}, v{Lp[m][h]}, v{IN[m]}")
        def gred():
            a("v_permlane32_swap_b32 v64, v66\nv_permlane32_swap_b32 v65, v67\nv_pk_add_f32 v[64:65], v[64:65], v[66:67]")
        pack5(TT, keep=TT); gpass(); gred()
        a("ds_write_b64 v10, v[64:65]")
        for k in range(5): self.hi(SB[k], SB[k])
        pack5(SB); gpass(); gred()
        a("ds_write_b64 v10, v[64:65] offset:2048")
        a(f"s_mul_i32 s67, s92, 27\ns_add_u32 s67, s67, s93\ns_mul_i32 s88, s67, 640\ns_add_u32 s88, s88, {WS_Z}")
        self.last_arriver(C_U, "L_Gprepd", 50)
        a(f"v_lshlrev_b32 v158, 11, v158\nv_and_b32 v159, 31, v0\nv_lshl_add_u32 v158, v159, 4, v158\nv_add_u32 v158, {L_GU}, v158\nv_lshlrev_b32 v159, 4, v0")
        for q in range(4): a(f"ds_read_b128 v[{68+4*q}:{71+4*q}], v158 offset:{512*q}")
        a(f"s_lshl_b32 s60, s67, 10\ns_add_u32 s60, s60, {WS_U}\ns_waitcnt lgkmcnt(0)")
        self.sum4x4(68); self.tag(range(68, 72))
        a("buffer_store_dwordx4 v[68:71], v159, s[44:47], s60 offen sc1")
        a("L_Gprepd:")
        self.stamp(28)
        a("L_Gtail:")
        if o.gprio >= 0: a(f"s_setprio 3")
        a(f"v_lshlrev_b32 v159, 4, v0\nv_add_u32 v158, {L_GZ}, v159")
        YY = list(range(44, 49)); YL = [92, 93, 94, 95, 49]
        a("s_cbranch_execz L_Gpw\ns_cmp_ge_u32 s94, 160\ns_cbranch_scc1 L_Gpw")
        self.spin_lds([C_YA if o.yack else C_W], 44, target=1 if o.yack else 4)
        a("s_branch L_Gb\nL_Gpw:")
        self.prewait(lambda: a(f"buffer_load_dwordx4 v[92:95], v157, s[44:47], s87 offen sc1"), lambda: self.chk_tag(range(92, 96), 50), 0x01010101, 0, o.preb)
        a("L_Gb:")
        self.stamp(39)
        self.ppoll(lambda: ld8(92, 87, 157, 5), lambda: self.chk_tag(range(92, 100), 50), 2, o.bo_b, 35, rl=52, pipe=o.pipeb)
        self.stamp(29)
        sel5(92, 49)
        for k in range(5): a(f"v_add_f32_dpp v{YY[k]}, v{YL[k]}, v{YL[k]} quad_perm:[2,3,0,1] row_mask:0xf bank_mask:0xf")
        for n in (4, 8):
            for k in range(5): self.ror(YY[k], n)
        for k in range(5): a(f"v_mov_b32 v{52+k}, v{YY[k]}")
        for k in range(5): a(f"v_permlane16_swap_b32 v{52+k}, v{YY[k]}")
        for k in range(5): a(f"v_add_f32 v{YY[k]}, v{YY[k]}, v{52+k}")
        for k in range(5): a(f"v_fma_f32 v{YY[k]}, v{YY[k]}, v{GA[k]}, v{XF[k]}")
        ZZ = list(range(70, 75))
        for k in range(5): a(f"v_mul_f32 v{ZZ[k]}, v{YY[k]}, v{TT[k]}")
        pack5(ZZ); gpass()
        a("v_add_f32 v76, v44, v45\nv_mul_f32 v77, v44, v44\nv_add_f32 v78, v46, v47\nv_fmac_f32 v77, v45, v45\nv_add_f32 v76, v76, v48\nv_fmac_f32 v77, v46, v46\nv_add_f32 v76, v76, v78\nv_fmac_f32 v77, v47, v47\nv_fmac_f32 v77, v48, v48")
        gred()
        a("ds_write_b64 v11, v[64:65]")
        a("v_permlane32_swap_b32 v76, v77\nv_add_f32 v76, v76, v77")
        self.allred(76, 50, bits=(0,))
        a("ds_write_b32 v12, v76")
        a("ds_write_b128 v13, v[44:47]\nds_write_b32 v6, v48 offset:64")
        self.last_arriver(C_Z, "L_wend", 50)
        a("s_and_b32 exec_hi, exec_hi, 1")
        for q in range(4): a(f"ds_read_b128 v[{120+4*q}:{123+4*q}], v158 offset:{528*q}")
        a("s_waitcnt lgkmcnt(0)")
        self.sum4x4(120); self.tag(range(120, 124))
        a("buffer_store_dwordx4 v[120:123], v159, s[44:47], s88 offen sc1")
        self.stamp(30)
        a("s_cbranch_execz L_Gx2\ns_cmp_lg_u32 s93, 0\ns_cbranch_scc1 L_wend\nL_Gx2:")
        a(f"s_and_b32 exec_lo, exec_lo, 0xfffff\ns_mov_b32 exec_hi, 0\nv_add_u32 v158, {L_GX2}, v159\nds_read_b128 v[52:55], v158")
        a(f"s_mul_i32 s60, s92, 320\ns_add_u32 s60, s60, {WS_X2}\ns_waitcnt lgkmcnt(0)")
        self.tag(range(52, 56))
        a("buffer_store_dwordx4 v[52:55], v159, s[44:47], s60 offen sc1")
        a("s_branch L_wend")
        a("L_wend:")
        self.endwave()

        a("L_aux:")
        if o.prio: a(f"s_setprio {o.prio}")
        a("s_sub_u32 s8, s3, 4")
        a("v_lshlrev_b32 v6, 2, v0\ns_cmp_lg_u32 s8, 0\ns_cbranch_scc1 L_noinit")
        a(f"v_add_u32 v16, v14, v6\nv_mov_b32 v17, 0\nds_write_b32 v16, v17\nL_noinit:")
        CR = list(range(160, 165))
        WM = [[96 + 4*k + q for q in range(4)] for k in range(5)]
        XR = list(range(166, 171)); XP = 171
        WQ = list(range(136, 156))
        a("s_mul_i32 s67, s2, 205\ns_lshr_b32 s67, s67, 12\ns_mul_i32 s60, s67, 20\ns_sub_u32 s66, s2, s60")
        a("s_cmp_lt_u32 s2, 80\ns_cbranch_scc1 L_unit")
        a("s_sub_u32 s61, s2, 80\ns_mul_i32 s67, s61, 205\ns_lshr_b32 s67, s67, 13\ns_mul_i32 s60, s67, 40\ns_sub_u32 s66, s61, s60\ns_add_u32 s66, s66, 20")
        a("L_unit:")
        a("s_mul_i32 s68, s67, 160\ns_mul_i32 s60, s8, 40\ns_add_u32 s68, s68, s60")
        a("s_mul_i32 s69, s68, 7680\ns_lshl_b32 s60, s66, 7\ns_add_u32 s69, s69, s60\ns_lshl_b32 s68, s68, 1")
        a("v_lshrrev_b32 v3, 3, v0\nv_mul_u32_u24 v5, 7680, v3\nv_and_b32 v4, 7, v0\nv_lshl_add_u32 v5, v4, 4, v5\nv_lshlrev_b32 v3, 1, v3")
        a("s_mul_i32 s70, s7, 80\ns_mul_i32 s61, s8, 20\ns_add_u32 s70, s70, s61")
        a("s_lshl_b32 s71, s70, 13\ns_lshl_b32 s61, s6, 8\ns_add_u32 s71, s71, s61")
        a("s_waitcnt lgkmcnt(0)")
        self.stamp_init()
        self.stamp(44)
        a("s_load_dword s9, s[42:43], 0")
        self.srd(44, 42, 0x10000000)
        if o.td:
            a(f"s_add_u32 s60, s2, s8\ns_cmp_lg_u32 s60, 0\ns_cbranch_scc1 L_nocnt\nv_lshlrev_b32 v7, 7, v0\nv_mov_b32 v8, 0\ns_mov_b32 s60, {WS_CNT}")
            a("buffer_store_dword v8, v7, s[44:47], s60 offen sc1\nL_nocnt:")
        a("s_cmp_ge_u32 s2, 240\ns_cbranch_scc1 L_noprod")
        self.srd(52, 36, 4915200); self.srd(48, 34, 1280)
        for k in range(5):
            if not o.nofront: a(f"buffer_load_dwordx4 v[{WM[k][0]}:{WM[k][3]}], v5, s[52:55], s69 offen {WNT}")
            if k < 4: a("s_add_u32 s69, s69, 61440")
        for k in range(5): a(f"buffer_load_ushort v{CR[k]}, v3, s[48:51], s68 offen offset:{16*k}")
        a("L_noprod:")
        if o.codepf:
            a(f"s_cmp_lg_u32 s8, 1\ns_cbranch_scc1 L_ncp\ns_getpc_b64 s[78:79]\nL_cp:\ns_sub_u32 s78, s78, L_cp-{NAME}_kernel\ns_subb_u32 s79, s79, 0")
            a(f"s_mul_i32 s60, s5, {o.codepf}\nv_min_u32 v7, {o.codepf-1}, v0\nv_add_u32 v7, s60, v7\nv_lshlrev_b32 v7, 7, v7\nv_min_u32 v7, L_end-{NAME}_kernel, v7")
            a("global_load_dword v21, v7, s[78:79]\nL_ncp:")
        if o.b1early: a("s_barrier")
        self.srd(52, 22, 5242880); self.srd(48, 16, 1280)
        for k in range(20):
            if not o.nofront: a(f"buffer_load_dword v{WQ[k]}, v6, s[52:55], s71 offen {WNT}")
            if k < 19: a("s_addk_i32 s71, 0x2000")
        a("v_lshrrev_b32 v16, 4, v0\nv_and_b32 v17, 15, v0\nv_min_u32 v17, 9, v17")
        a("v_mul_u32_u24 v4, 20, v0\ns_lshl_b32 s61, s70, 1\nv_lshlrev_b32 v5, 2, v17")
        a(f"buffer_load_dwordx4 v[{XR[0]}:{XR[3]}], v4, s[48:51], 0 offen\nbuffer_load_dword v{XR[4]}, v4, s[48:51], 0 offen offset:16")
        a(f"buffer_load_dword v{XP}, v5, s[48:51], s61 offen")
        a("s_waitcnt lgkmcnt(0)")
        if not o.b1early: a("s_barrier")
        self.stamp(1)
        a(f"s_add_u32 s9, s9, {TAGADD}\ns_mov_b32 s98, 0xff\nv_mov_b32 v18, s9")
        for r in [2] + list(range(7, 14)) + [157, 158, 159]: a(f"v_mov_b32 v{r}, 0")
        a("s_mov_b32 s10, 0\ns_sub_u32 s11, s2, 160\ns_cmp_lt_u32 s11, 40\ns_cselect_b32 s10, 3, 0\ns_mov_b32 s95, 0\ns_mov_b32 s92, 0\ns_mov_b32 s93, 0\ns_mov_b32 s94, 0")
        a("L_roled:")
        if o.fdry:
            a("s_mov_b64 exec, 0\ns_branch L_front")
        a("L_fdry_ret:\ns_mov_b64 exec, -1")
        self.stamp(2)
        a("L_front:")
        a("s_cmp_ge_u32 s2, 240\ns_cbranch_scc1 L_ln1")
        self.waitvm(23)
        self.stamp(20)
        for k in range(5):
            x, e = CR[k], 44 + k
            a(f"v_lshlrev_b32 v{x}, 16, v{x}\nv_mul_f32 v{e}, 0xbfb8aa3b, v{x}\nv_exp_f32 v{e}, v{e}")
        for k in range(5): a(f"v_add_f32 v{44+k}, 1.0, v{44+k}\nv_rcp_f32 v{44+k}, v{44+k}")
        for k in range(5): a(f"v_mul_f32 v{44+k}, v{CR[k]}, v{44+k}")
        a("v_cvt_pk_bf16_f32 v36, v44, v45\nv_cvt_pk_bf16_f32 v37, v46, v47\nv_cvt_pk_bf16_f32 v38, v48, 0")
        ACC = list(range(48, 56))
        for k in ACC: a(f"v_mov_b32 v{k}, 0")
        Tf = [44, 45, 46, 47]
        for m in range(2):
            lo, hi, Tf = self.permpair(WM[2*m], WM[2*m+1], Tf)
            for k in range(4):
                a(f"v_dot2c_f32_bf16 v{ACC[2*k]}, v{lo[k]}, v{36+m}\nv_dot2c_f32_bf16 v{ACC[2*k+1]}, v{hi[k]}, v{36+m}")
        for k in range(4):
            a(f"v_and_b32 v{Tf[k]}, 0xffff, v{WM[4][k]}\nv_lshrrev_b32 v{WM[4][k]}, 16, v{WM[4][k]}")
            a(f"v_dot2c_f32_bf16 v{ACC[2*k]}, v{Tf[k]}, v38\nv_dot2c_f32_bf16 v{ACC[2*k+1]}, v{WM[4][k]}, v38")
        self.red8(ACC); self.ror(48, 8); self.ror(49, 8)
        a(f"s_lshl_b32 s60, s8, 8\ns_add_u32 s60, s60, {L_RED1}\nv_and_b32 v3, 7, v0\nv_lshlrev_b32 v2, 5, v3\nv_lshl_add_u32 v2, v16, 3, v2\nv_add_u32 v2, s60, v2")
        a("ds_write_b64 v2, v[48:49]")
        self.last_arriver(C_F1, "L_ln1", 44)
        a(f"v_lshlrev_b32 v3, 3, v0\nv_add_u32 v3, {L_RED1}, v3\nv_lshlrev_b32 v2, 4, v0\ns_mov_b64 s[14:15], exec\ns_mov_b32 exec_hi, 0")
        for q in range(4): a(f"ds_read_b64 v[{44+2*q}:{45+2*q}], v3 offset:{256*q}")
        a("s_mul_i32 s67, s2, 205\ns_lshr_b32 s67, s67, 12\ns_mul_i32 s60, s67, 20\ns_sub_u32 s66, s2, s60")
        a("s_cmp_lt_u32 s2, 80\ns_cbranch_scc1 L_unit2")
        a("s_sub_u32 s61, s2, 80\ns_mul_i32 s67, s61, 205\ns_lshr_b32 s67, s67, 13\ns_mul_i32 s60, s67, 40\ns_sub_u32 s66, s61, s60\ns_add_u32 s66, s66, 20")
        a("L_unit2:")
        a(f"s_mul_i32 s60, s67, 30720\ns_lshl_b32 s61, s66, 9\ns_add_u32 s60, s60, s61\ns_add_u32 s60, s60, {WS_G1}")
        a("s_waitcnt lgkmcnt(0)")
        a("v_pk_add_f32 v[44:45], v[44:45], v[46:47]\nv_pk_add_f32 v[48:49], v[48:49], v[50:51]\nv_pk_add_f32 v[44:45], v[44:45], v[48:49]")
        a("v_mov_b32 v46, v45\nv_mov_b32 v45, s9\nv_mov_b32 v47, s9\nv_mov_b32 v4, 0")
        if not o.nostore: a("buffer_store_dwordx4 v[44:47], v2, s[44:47], s60 offen sc1")
        a("s_mov_b64 exec, s[14:15]")
        self.stamp(3)
        a("L_ln1:")
        if o.fdry == 1: a("s_cbranch_execz L_fdry_ret")
        self.waitvm(2)
        self.stamp(21)
        a("s_nop 0")
        WQp = []; WQf = [64]
        for m in range(10):
            lo, hi, WQf = self.permpair([WQ[2*m]], [WQ[2*m+1]], WQf)
            WQp.append((lo[0], hi[0]))
        self.waitvm(0)
        X = list(range(48, 58))
        for m in range(5):
            self.lo(X[2*m], XR[m]); self.hi(X[2*m+1], XR[m])
        a(f"v_add_f32 v58, v{X[0]}, v{X[1]}")
        for k in range(2, 10): a(f"v_add_f32 v58, v58, v{X[k]}")
        self.allred(58, 59)
        a("v_mul_f32 v58, 0x3acccccd, v58")
        a("v_mov_b32 v60, 0")
        for k in range(10): a(f"v_sub_f32 v{X[k]}, v{X[k]}, v58\nv_fmac_f32 v60, v{X[k]}, v{X[k]}")
        self.allred(60, 59)
        a("v_mul_f32 v60, 0x3acccccd, v60")
        self.round2(58, 60, 59)
        a("v_add_f32 v60, 0x3727c5ac, v60")
        self.round2(60, 61, 59)
        a("v_sqrt_f32 v60, v60")
        self.round2(60, 61, 59)
        a("v_rcp_f32 v60, v60")
        self.lo(62, XP); self.hi(63, XP)
        a("v_sub_f32 v62, v62, v58\nv_sub_f32 v63, v63, v58")
        self.round2(62, 63, 59)
        a("v_mul_f32 v62, v62, v60\nv_mul_f32 v63, v63, v60")
        self.round2(62, 63, 59)
        a("s_mul_i32 s60, s7, 80\ns_mul_i32 s61, s8, 20\ns_add_u32 s60, s60, s61")
        a("v_mul_u32_u24 v2, 30720, v16\nv_lshl_add_u32 v2, v17, 4, v2")
        a(f"s_lshl_b32 s62, s60, 3\ns_add_u32 s62, s62, {WS_G1}\ns_add_u32 s63, s62, 5120")
        if o.pretouch:
            a(f"s_cmp_lg_u32 s8, 3\ns_cbranch_scc1 L_npt\ns_mul_i32 s60, s2, {21*128}\ns_add_u32 s60, s60, {WS_O}\nv_min_u32 v44, 20, v0\nv_lshlrev_b32 v44, 7, v44")
            a(f"buffer_load_dword v45, v44, s[44:47], s60 offen {o.ptf}\nL_npt:")
        if o.w1dry:
            a("s_mov_b64 exec, 0\ns_cmp_eq_u32 s8, 0\ns_cbranch_scc1 L_h1b\ns_cmp_eq_u32 s8, 1\ns_cbranch_scc1 L_h2b\ns_branch L_qk2")
            a("L_w1_ret:\ns_mov_b64 exec, -1")
            a("s_mul_i32 s60, s7, 80\ns_mul_i32 s61, s8, 20\ns_add_u32 s60, s60, s61")
            a(f"s_lshl_b32 s62, s60, 3\ns_add_u32 s62, s62, {WS_G1}\ns_add_u32 s63, s62, 5120")
            self.stamp(2)
        a("L_h1b:")
        self.spin_lds([C_T1], 46)
        self.stamp(22)
        def ld():
            a("buffer_load_dwordx4 v[44:47], v2, s[44:47], s62 offen sc1\nbuffer_load_dwordx4 v[48:51], v2, s[44:47], s63 offen sc1")
        def ck():
            a("v_xor_b32 v53, s9, v45\nv_xor_b32 v54, s9, v47\nv_xor_b32 v55, s9, v49\nv_xor_b32 v56, s9, v51")
            a("v_or3_b32 v53, v53, v54, v55\nv_or_b32 v53, v53, v56\nv_cmp_ne_u32 vcc, 0, v53")
        self.poll(ld, ck, o.fsleep, 32)
        self.stamp(4)
        for v in (44, 46, 48, 50): self.allred(v, 53, bits=(4, 5))
        self.round2(44, 46, 53); self.round2(48, 50, 53)
        a("v_add_f32 v48, 1.0, v48\nv_add_f32 v50, 1.0, v50")
        self.round2(48, 50, 53)
        a("v_mul_f32 v48, v62, v48\nv_mul_f32 v50, v63, v50")
        self.round2(48, 50, 53)
        a("v_add_f32 v48, v48, v44\nv_add_f32 v50, v50, v46\nv_cvt_pk_bf16_f32 v53, v48, v50")
        for m in range(10): a(f"v_readlane_b32 s{64+m}, v53, {m}")
        a("v_mov_b32 v44, 0\nv_mov_b32 v45, 0")
        for m in range(10):
            a(f"v_dot2c_f32_bf16 v44, s{64+m}, v{WQp[m][0]}\nv_dot2c_f32_bf16 v45, s{64+m}, v{WQp[m][1]}")
        a(f"s_lshl_b32 s60, s8, 9\ns_add_u32 s60, s60, {L_RED2}\nv_lshlrev_b32 v2, 3, v0\nv_add_u32 v2, s60, v2")
        a("ds_write_b64 v2, v[44:45]")
        self.last_arriver(C_F2, "L_h2", 46)
        a(f"v_lshlrev_b32 v2, 4, v0\nv_add_u32 v3, {L_RED2}, v2\ns_mov_b64 s[14:15], exec\ns_mov_b32 exec_hi, 0")
        for q in range(4): a(f"ds_read_b128 v[{44+4*q}:{47+4*q}], v3 offset:{512*q}")
        a(f"s_lshl_b32 s60, s6, 3\ns_add_u32 s60, s60, s7\ns_lshl_b32 s60, s60, 9\ns_add_u32 s60, s60, {WS_Q2}")
        a("s_waitcnt lgkmcnt(0)")
        self.sum4x4(44)
        self.tag(range(44, 48), rnd=True)
        if not o.nostore: a("buffer_store_dwordx4 v[44:47], v2, s[44:47], s60 offen sc1")
        a("s_mov_b64 exec, s[14:15]")
        self.stamp(5)
        a("L_h2:")
        if o.fdry == 2: a("s_cbranch_execz L_fdry_ret")
        if o.dry:
            if o.fdry == 3 or o.w1dry: a("s_cbranch_execz L_h2b")
            a("s_mov_b64 exec, 0")
            a("s_cmp_eq_u32 s8, 0\ns_cbranch_scc1 L_pv")
            a("s_cmp_eq_u32 s8, 1\ns_cbranch_scc1 L_D2")
            a("s_cmp_eq_u32 s8, 2\ns_cbranch_scc1 L_W2\ns_branch L_Gprep")
        a("L_dry_ret:\ns_mov_b64 exec, -1")
        self.stamp(24)
        a("L_h2b:")
        a("v_lshrrev_b32 v2, 3, v0\nv_lshlrev_b32 v2, 9, v2\nv_and_b32 v3, 7, v0\nv_lshl_add_u32 v2, v3, 4, v2")
        a(f"s_lshl_b32 s62, s6, 12\ns_lshl_b32 s60, s8, 7\ns_add_u32 s62, s62, s60\ns_add_u32 s62, s62, {WS_Q2}")
        a("s_cbranch_execz L_M\ns_cmp_lg_u32 s10, 3\ns_cbranch_scc1 L_Mend\ns_cmp_lg_u32 s8, 0\ns_cbranch_scc1 L_Mend\nL_M:")
        a("v_and_b32 v4, 15, v0\nv_mul_u32_u24 v5, 30720, v16\nv_lshl_add_u32 v5, v4, 5, v5\nv_lshlrev_b32 v4, 4, v4")
        a(f"s_lshl_b32 s63, s11, 9\ns_add_u32 s63, s63, {WS_G1 + 1280*8}\ns_lshl_b32 s64, s11, 8\ns_add_u32 s64, s64, {WS_MR}")
        def ld():
            a("buffer_load_dwordx4 v[44:47], v5, s[44:47], s63 offen sc1\nbuffer_load_dwordx4 v[48:51], v5, s[44:47], s63 offen offset:16 sc1")
        self.poll(ld, ck, o.fsleep)
        for v in (44, 46, 48, 50): self.allred(v, 53, bits=(4, 5))
        self.round2(44, 46, 53); self.round2(48, 50, 53)
        a("v_mov_b32 v45, v46\nv_mov_b32 v46, v48\nv_mov_b32 v47, v50")
        self.tag(range(44, 48))
        a("s_mov_b64 s[14:15], exec\ns_and_b32 exec_lo, exec_lo, 0xffff\ns_mov_b32 exec_hi, 0")
        if not o.nostore: a("buffer_store_dwordx4 v[44:47], v4, s[44:47], s64 offen sc1")
        a("s_mov_b64 exec, s[14:15]\nL_Mend:")
        self.spin_lds([C_T2], 44)
        self.stamp(23)
        if o.tickets:
            self.srd(48, 40, 256)
            a("s_cbranch_execz L_tk1\ns_cmp_lg_u32 s8, 0\ns_cbranch_scc1 L_tk1")
            a("s_and_b32 s63, s5, 3\ns_lshl_b32 s60, s63, 6\nv_mov_b32 v54, 1\nv_mov_b32 v55, 0\ns_mov_b64 s[14:15], exec\ns_and_b32 exec_lo, exec_lo, 1\ns_mov_b32 exec_hi, 0")
            a("buffer_atomic_add v54, v55, s[48:51], s60 offen sc0\ns_mov_b64 exec, s[14:15]\nL_tk1:")
        a("buffer_load_dwordx4 v[48:51], v2, s[44:47], s62 offen sc1")
        a("v_and_b32 v17, 15, v0")
        a(f"v_xor_b32 v4, v16, v17\nv_lshlrev_b32 v4, 4, v4\nv_lshl_add_u32 v4, v17, 8, v4\ns_lshl_b32 s60, s8, 15\nv_add_u32 v4, s60, v4")
        a("v_xor_b32 v5, 64, v4\nv_xor_b32 v6, 0x80, v4\nv_xor_b32 v7, 0xc0, v4")
        self.spin_lds([C_K], 44)
        for t in range(8):
            for s in range(4): a(f"ds_read_b128 v[{96+16*t+4*s}:{99+16*t+4*s}], v{4+s} offset:{4096*t}")
        self.poll(lambda: a("buffer_load_dwordx4 v[48:51], v2, s[44:47], s62 offen sc1"), lambda: self.chk_tag(range(48, 52), 52), o.fsleep, 33, preloaded=True)
        self.stamp(6)
        if o.tickets:
            a("s_cmp_lg_u32 s8, 0\ns_cbranch_scc1 L_tk2")
            a(f"s_mov_b64 s[14:15], exec\ns_and_b32 exec_lo, exec_lo, 1\ns_mov_b32 exec_hi, 0\nv_lshlrev_b32 v54, 2, v54\nv_add_u32 v54, s63, v54\nv_add_u32 v54, 1, v54\nds_write_b32 v14, v54 offset:{C_TKT}\ns_mov_b64 exec, s[14:15]\nL_tk2:")
        self.red4([48, 49, 50, 51]); self.ror(48, 8)
        a(f"s_lshl_b32 s60, s8, 6\ns_add_u32 s60, s60, {L_QBUF}\nv_lshlrev_b32 v3, 3, v3\nv_lshl_add_u32 v3, v16, 1, v3\nv_add_u32 v3, s60, v3")
        a("v_cvt_pk_bf16_f32 v48, v48, v48\nds_write_b16 v3, v48")
        self.cnt_add(C_Q)
        a("L_qk2:")
        a(f"v_lshlrev_b32 v6, 4, v16\nv_add_u32 v6, {L_QBUF}, v6")
        self.spin_lds([C_Q], 44)
        self.stamp(7)
        QF = 20
        for s in range(4): a(f"ds_read_b128 v[{QF+4*s}:{QF+4*s+3}], v6 offset:{64*s}")
        a("s_waitcnt lgkmcnt(0)")
        S = [36, 37]
        for s in range(4):
            for t in range(8):
                d = 224 + 4*t
                c = "0" if s == 0 else f"v[{d}:{d+3}]"
                a(f"v_mfma_f32_16x16x32_bf16 v[{d}:{d+3}], v[{QF+4*s}:{QF+4*s+3}], v[{96+16*t+4*s}:{99+16*t+4*s}], {c}")
        for t in range(8): a(f"v_mov_b32_dpp v{S[t//4]}, v{224+4*t} quad_perm:[0,1,2,3] row_mask:{hex(1<<(t%4))} bank_mask:0xf")
        self.round2(36, 37, 38)
        a("v_mul_f32 v36, 0x3db504f3, v36\nv_mul_f32 v37, 0x3db504f3, v37")
        self.round2(36, 37, 38)
        a("v_max_f32 v39, v36, v37")
        self.allred(39, 38, op="max")
        a(f"s_lshl_b32 s60, s8, 2\ns_add_u32 s60, s60, {L_MAXB}\nv_mov_b32 v2, s60\nv_mov_b32 v3, {L_MAXB}\nds_write_b32 v2, v39")
        self.cnt_add(C_MAX)
        self.spin_lds([C_MAX], 44)
        a("ds_read_b128 v[44:47], v3")
        a(f"s_lshl_b32 s60, s8, 4\ns_add_u32 s60, s60, {L_PBUF}\nv_lshlrev_b32 v2, 6, v17\nv_lshl_add_u32 v2, v16, 1, v2\nv_add_u32 v2, s60, v2")
        a("s_waitcnt lgkmcnt(0)")
        a("v_max3_f32 v44, v44, v45, v46\nv_max_f32 v40, v44, v47")
        a(f"v_sub_f32 v36, v36, v40\nv_sub_f32 v37, v37, v40\nv_mul_f32 v36, {hex(LOG2E)}, v36\nv_mul_f32 v37, {hex(LOG2E)}, v37\nv_exp_f32 v36, v36\nv_exp_f32 v37, v37")
        a("v_cvt_pk_bf16_f32 v38, v36, v37\nds_write_b16 v2, v38\nds_write_b16_d16_hi v2, v38 offset:8")
        self.lo(36, 38); self.hi(37, 38)
        a("v_add_f32 v41, v36, v37")
        self.allred(41, 38)
        a(f"s_lshl_b32 s60, s8, 2\ns_add_u32 s60, s60, {L_LSUM}\nv_mov_b32 v2, s60\nv_mov_b32 v3, {L_LSUM}\nds_write_b32 v2, v41\nds_write_b32 v3, v40 offset:16")
        self.cnt_add(C_P)
        self.stamp(8)
        if o.fdry == 3: a("s_cbranch_execz L_fdry_ret")
        if o.w1dry: a("s_cbranch_execz L_w1_ret")
        self.get_ticket()
        a("s_sub_u32 s11, s94, 202\ns_cmp_ge_u32 s94, 202\ns_cbranch_scc1 L_D0\ns_cmp_ge_u32 s94, 160\ns_cbranch_scc1 L_wend")
        self.spin_lds([C_T3], 44)
        a(f"s_cmp_ge_u32 s94, {o.wlate}\ns_cbranch_scc1 L_W1")
        self.spin_lds([C_O], 44)
        a("L_W1:")
        self.srd(48, 24, 5242880)
        wids()
        a("v_lshrrev_b32 v2, 3, v0\nv_mul_u32_u24 v2, 10240, v2\nv_and_b32 v3, 7, v0\nv_lshl_add_u32 v2, v3, 4, v2")
        a("s_lshl_b32 s60, s66, 1\ns_add_u32 s60, s60, s67\ns_mul_i32 s60, s60, 81920\ns_lshl_b32 s61, s65, 7\ns_add_u32 s60, s60, s61\ns_add_u32 s61, s60, 5120")
        for i in range(8): a(f"buffer_load_dwordx4 v[{WW[i][0]}:{WW[i][3]}], v2, s[48:51], s{60 + i//4} offen offset:{1280*(i%4)} {LNT}")
        a("L_W2:")
        wids()
        a("v_and_b32 v3, 7, v0\nv_lshlrev_b32 v2, 4, v3")
        a(f"v_lshrrev_b32 v4, 3, v0\nv_lshlrev_b32 v4, 5, v4\nv_lshl_add_u32 v4, v3, 9, v4")
        a(f"s_lshl_b32 s60, s8, 8\ns_add_u32 s60, s60, {L_REDW}\nv_lshlrev_b32 v5, 5, v3\nv_lshl_add_u32 v5, v16, 3, v5\nv_add_u32 v5, s60, v5")
        a(f"v_lshlrev_b32 v6, 4, v0\nv_add_u32 v7, {L_REDW}, v6")
        a(f"s_lshl_b32 s86, s66, 7\ns_add_u32 s86, s86, {WS_ML}\ns_lshl_b32 s84, s66, 12\ns_lshl_b32 s60, s67, 8\ns_add_u32 s84, s84, s60\ns_add_u32 s84, s84, {WS_O}")
        a(f"s_mul_i32 s85, s64, 2560\ns_lshl_b32 s60, s65, 8\ns_add_u32 s85, s85, s60\ns_add_u32 s85, s85, {WS_Y}")
        self.waitvm(0)
        Tf = [128, 129, 130, 131]; Wp = []
        for m in range(4):
            lo, hi, Tf = self.permpair(WW[2*m], WW[2*m+1], Tf); Wp.append((lo, hi))
        self.stamp(9)
        self.spin_lds([C_GL if o.atrig else C_O], 44)
        if o.sml:
            a("s_cbranch_execz L_smo\ns_add_u32 s80, s42, s86\ns_addc_u32 s81, s43, 0\ns_mov_b32 s61, 0\nL_sm:")
            a("s_load_dwordx16 s[64:79], s[80:81], 0 glc\ns_load_dwordx8 s[48:55], s[80:81], 64 glc\ns_load_dword s56, s[80:81], 96 glc\ns_load_dword s57, s[80:81], 112 glc\ns_waitcnt lgkmcnt(0)")
            regs = [64, 68, 72, 76, 48, 52, 56, 57]
            a("s_xor_b32 s60, s64, s9")
            for r in regs[1:]: a(f"s_xor_b32 s{r}, s{r}, s9\ns_or_b32 s60, s60, s{r}")
            a(f"s_and_b32 s60, s60, 0xff\ns_cbranch_scc0 L_smo\ns_sleep {o.sml}\ns_add_u32 s61, s61, 1\ns_cmp_lt_u32 s61, 0x8000\ns_cbranch_scc1 L_sm\nL_smo:")
        self.stamp(38)
        a("L_Wtail:")
        def ld():
            a("buffer_load_dwordx4 v[52:55], v2, s[44:47], s86 offen sc1")
            a("buffer_load_dwordx4 v[44:47], v4, s[44:47], s84 offen sc1\nbuffer_load_dwordx4 v[48:51], v4, s[44:47], s84 offen offset:16 sc1")
        if o.gtrig == 1:
            a("s_cbranch_execz L_wl1")
            ld()
            a("L_wl1:")
            self.cnt_add(C_WL)
            self.poll(ld, lambda: self.chk_tag(list(range(44, 56)), 60), o.bo_a, 34, rl=40, preloaded=True)
        else:
            self.ppoll(ld, lambda: self.chk_tag(list(range(44, 56)), 60), 3, o.bo_a, 34, rl=40, pipe=o.pipea)
        self.cnt_add(C_A)
        self.stamp(11)
        a("v_and_b32 v62, 0xffff0000, v52\nv_mov_b32 v63, v62")
        self.allred(63, 60, op="max", bits=(0, 1, 2))
        a(f"v_sub_f32 v62, v62, v63\nv_mul_f32 v62, {hex(LOG2E)}, v62\nv_exp_f32 v56, v62\nv_mul_f32 v63, v53, v56")
        for k in range(0, 8, 2): a(f"v_pk_mul_f32 v[{64+k}:{65+k}], v[{44+k}:{45+k}], v[56:57] op_sel_hi:[1,0]")
        for bit in (0, 1, 2):
            self.allred(63, 60, bits=(bit,))
            for k in range(8): self.allred(64 + k, 60, bits=(bit,))
        a("v_rcp_f32 v56, v63")
        for k in range(0, 8, 2): a(f"v_pk_mul_f32 v[{64+k}:{65+k}], v[{64+k}:{65+k}], v[56:57] op_sel_hi:[1,0]")
        for m in range(4): a(f"v_cvt_pk_bf16_f32 v{72+m}, v{64+2*m}, v{65+2*m}")
        ACC = list(range(24, 32))
        for m in range(4):
            lo, hi = Wp[m]
            for k in range(4):
                if m == 0: a(f"v_dot2_f32_bf16 v{ACC[2*k]}, v{lo[k]}, v{72+m}, 0\nv_dot2_f32_bf16 v{ACC[2*k+1]}, v{hi[k]}, v{72+m}, 0")
                else: a(f"v_dot2c_f32_bf16 v{ACC[2*k]}, v{lo[k]}, v{72+m}\nv_dot2c_f32_bf16 v{ACC[2*k+1]}, v{hi[k]}, v{72+m}")
        self.red8(ACC)
        self.ror(24, 8); self.ror(25, 8)
        a("ds_write_b64 v5, v[24:25]")
        self.last_arriver(C_W, "L_Wfin", 60)
        a("s_mov_b64 s[76:77], exec\ns_and_b32 exec_lo, exec_lo, 0xffff\ns_mov_b32 exec_hi, 0")
        for q in range(4): a(f"ds_read_b128 v[{76+4*q}:{79+4*q}], v7 offset:{256*q}")
        a("s_waitcnt lgkmcnt(0)")
        self.sum4x4(76)
        self.tag(range(76, 80))
        a("buffer_store_dwordx4 v[76:79], v6, s[44:47], s85 offen sc1\ns_mov_b64 exec, s[76:77]")
        self.stamp(12)
        if o.yack:
            self.waitvm(0); self.cnt_add(C_YA); self.stamp(31)
        a("L_Wfin:")
        a("s_cbranch_execz L_final\ns_cmp_lg_u32 s8, 0\ns_cbranch_scc1 L_wend\ns_cmp_lt_u32 s94, 40\ns_cbranch_scc1 L_final\ns_branch L_wend")
        a("L_D0:")
        self.spin_lds([C_O], 44)
        DW = [[96 + 2*n + q for q in range(2)] for n in range(32)]
        a("L_D1:")
        self.srd(48, 32, 2211840)
        def dids():
            a("s_mul_i32 s64, s8, 192\ns_cmp_eq_u32 s8, 3\ns_cselect_b32 s64, 512, s64\ns_cmp_ge_u32 s8, 2\ns_cselect_b32 s65, 31, 47")
        dids()
        a("v_min_u32 v4, s65, v0\nv_lshlrev_b32 v2, 3, v4\ns_lshl_b32 s60, s64, 1\ns_mul_i32 s61, s11, 40960\ns_add_u32 s61, s61, s60")
        for n in range(32):
            a(f"buffer_load_dwordx2 v[{DW[n][0]}:{DW[n][1]}], v2, s[48:51], s61 offen offset:{1280*(n%4)} {LNT}")
            if n % 4 == 3 and n < 31: a("s_addk_i32 s61, 5120")
        a("L_D2:")
        dids()
        a("v_min_u32 v4, s65, v0\nv_lshlrev_b32 v4, 4, v4")
        a(f"s_mul_i32 s70, s11, 2560\ns_lshl_b32 s60, s64, 2\ns_add_u32 s70, s70, s60\ns_add_u32 s70, s70, {WS_OP}")
        a("v_lshrrev_b32 v5, 3, v0\nv_and_b32 v6, 7, v0\nv_lshlrev_b32 v6, 4, v6")
        a("v_mul_u32_u24 v7, 17280, v5\nv_add_u32 v8, v7, v6\nv_mul_u32_u24 v9, 27648, v5\nv_add_u32 v9, v9, v6")
        a("s_lshr_b32 s60, s11, 1\ns_and_b32 s61, s11, 1\ns_lshl_b32 s61, s61, 7")
        a(f"s_mul_i32 s66, s60, 640\ns_add_u32 s66, s66, {WS_Z}\ns_add_u32 s67, s66, s61\ns_lshl_b32 s68, s60, 10\ns_add_u32 s68, s68, s61\ns_add_u32 s68, s68, {WS_U}")
        self.waitvm(0)
        Tf = [160, 161]; Dp = []
        for m in range(16):
            lo, hi, Tf = self.permpair(DW[2*m], DW[2*m+1], Tf); Dp.append((lo, hi))
        self.stamp(9)
        def ld():
            for q in range(4): a(f"buffer_load_dwordx4 v[{44+4*q}:{47+4*q}], v9, s[44:47], s68 offen offset:{256*q} sc1")
        self.poll(ld, lambda: self.chk_tag(range(44, 60), 64), o.usleep, 37)
        def R(b):
            for k in range(4): a(f"v_permlane32_swap_b32 v{b+k}, v{b+4+k}")
            a(f"v_pk_add_f32 v[{b}:{b+1}], v[{b}:{b+1}], v[{b+4}:{b+5}]\nv_pk_add_f32 v[{b+2}:{b+3}], v[{b+2}:{b+3}], v[{b+6}:{b+7}]")
            a(f"v_permlane16_swap_b32 v{b}, v{b+2}\nv_permlane16_swap_b32 v{b+1}, v{b+3}\nv_pk_add_f32 v[{b}:{b+1}], v[{b}:{b+1}], v[{b+2}:{b+3}]")
            self.ror(b, 8); self.ror(b + 1, 8)
        R(44); R(52)
        a("v_mov_b32 v20, v44\nv_mov_b32 v21, v45\nv_mov_b32 v22, v52\nv_mov_b32 v23, v53")
        a("v_mov_b32 v26, 0x3d372713\ns_cmp_ge_u32 s8, 2\ns_cselect_b32 s71, 0, 0xffff")
        self.stamp(10)
        if o.td: self.spin_lds([C_TD], 60, target=1)
        def ld0(): a("buffer_load_dwordx4 v[72:75], v7, s[44:47], s66 offen offset:512 sc1")
        def ld():
            ld0()
            a("buffer_load_dwordx4 v[64:67], v8, s[44:47], s67 offen sc1\nbuffer_load_dwordx4 v[68:71], v8, s[44:47], s67 offen offset:256 sc1")
        self.prewait(ld0, lambda: self.chk_tag(range(72, 76), 60), 0x01010101, 0x01010101, o.prez)
        self.ppoll(ld, lambda: self.chk_tag(range(64, 76), 60), 3, o.bo_z, 38, rl=40, pipe=o.pipez)
        self.stamp(11)
        for k in range(0, 10, 2): a(f"v_pk_mov_b32 v[{44+k}:{45+k}], v[{64+k}:{65+k}], v[{64+k}:{65+k}] op_sel:[0,1]")
        a("v_permlane32_swap_b32 v52, v53")
        for k in range(4): a(f"v_permlane32_swap_b32 v{44+k}, v{48+k}")
        a("v_add_f32 v52, v52, v53\nv_pk_add_f32 v[44:45], v[44:45], v[48:49]\nv_pk_add_f32 v[46:47], v[46:47], v[50:51]\nv_mov_b32 v53, v52")
        a("v_permlane16_swap_b32 v44, v46\nv_permlane16_swap_b32 v45, v47\nv_permlane16_swap_b32 v52, v53")
        a("v_pk_add_f32 v[44:45], v[44:45], v[46:47]\nv_add_f32 v52, v52, v53")
        self.ror(52, 8); self.ror(44, 8); self.ror(45, 8)
        a("v_mul_f32 v52, 0x3acccccd, v52")
        a("v_readlane_b32 s60, v52, 0\nv_readlane_b32 s61, v52, 32")
        a("v_mov_b32 v54, s60\nv_mov_b32 v55, s61\nv_fma_f32 v55, -v54, v54, v55\nv_add_f32 v55, 0x3727c5ac, v55\nv_rsq_f32 v56, v55")
        a("v_fma_f32 v44, -v54, v20, v44\nv_fma_f32 v45, -v54, v21, v45\nv_fma_f32 v44, v56, v44, v22\nv_fma_f32 v45, v56, v45, v23")
        a("v_mov_b32 v46, v44\nv_mov_b32 v47, v45\nv_permlane32_swap_b32 v44, v46\nv_permlane32_swap_b32 v45, v47")
        a("v_mul_f32 v48, v44, v44\nv_mul_f32 v49, v45, v45\nv_fma_f32 v48, v48, v26, 1.0\nv_fma_f32 v49, v49, v26, 1.0\nv_mul_f32 v48, v48, v44\nv_mul_f32 v49, v49, v45")
        a("v_mul_f32 v48, 0xc0135761, v48\nv_mul_f32 v49, 0xc0135761, v49\nv_exp_f32 v48, v48\nv_exp_f32 v49, v49\nv_mul_f32 v44, v44, v46\nv_mul_f32 v45, v45, v47")
        a("v_add_f32 v48, 1.0, v48\nv_add_f32 v49, 1.0, v49\nv_rcp_f32 v48, v48\nv_rcp_f32 v49, v49\nv_mul_f32 v44, v44, v48\nv_mul_f32 v45, v45, v49\nv_cvt_pk_bf16_f32 v44, v44, v45")
        for m in range(16): a(f"v_readlane_b32 s{72+m}, v44, {16*(m&1) + (m>>1)}")
        for m in range(16):
            lo, hi = Dp[m]
            for k in range(2):
                if m == 0: a(f"v_dot2_f32_bf16 v{48+2*k}, s{72+m}, v{lo[k]}, 0\nv_dot2_f32_bf16 v{49+2*k}, s{72+m}, v{hi[k]}, 0")
                else: a(f"v_dot2c_f32_bf16 v{48+2*k}, s{72+m}, v{lo[k]}\nv_dot2c_f32_bf16 v{49+2*k}, s{72+m}, v{hi[k]}")
        a("s_and_b32 exec_hi, exec_hi, s71")
        self.tag(range(48, 52))
        a("buffer_store_dwordx4 v[48:51], v4, s[44:47], s70 offen sc1")
        self.stamp(13)
        a("s_branch L_wend")
        a("L_final:")
        self.srd(52, 38, 1280)
        a("v_and_b32 v10, 3, v0\nv_lshlrev_b32 v10, 4, v10\ns_min_u32 s60, s94, 39\ns_lshl_b32 s69, s60, 6")
        a("v_lshrrev_b32 v2, 2, v0\nv_mul_u32_u24 v2, 2560, v2\nv_add_u32 v2, v2, v10\nv_lshrrev_b32 v3, 1, v10\nv_lshl_add_u32 v3, v16, 1, v3")
        a(f"s_add_u32 s62, s69, {WS_OP}\ns_add_u32 s63, s62, 40960\ns_add_u32 s64, s62, 81920\ns_add_u32 s65, s62, 122880\ns_add_u32 s66, s69, {WS_X2}\ns_lshr_b32 s67, s69, 1\ns_add_u32 s68, s69, {WS_MR + 7680}")
        self.spin_lds([C_Z], 44)
        def ld():
            a("buffer_load_dwordx4 v[60:63], v10, s[44:47], s66 offen sc1\nbuffer_load_dwordx4 v[64:67], v10, s[44:47], s68 offen sc1")
        self.poll(ld, lambda: self.chk_tag(range(60, 68), 68), o.xsleep)
        for g in range(4): a(f"v_mov_b32_dpp v24, v{64+g} quad_perm:[0,1,2,3] row_mask:{hex(1<<g)} bank_mask:0xf\nv_mov_b32_dpp v25, v{60+g} quad_perm:[0,1,2,3] row_mask:{hex(1<<g)} bank_mask:0xf")
        self.hi(24, 24)
        self.stamp(26)
        def ld():
            for u in range(3): a(f"buffer_load_dwordx4 v[{44+4*u}:{47+4*u}], v2, s[44:47], s{62+u} offen sc1")
            a("s_mov_b64 s[76:77], exec\ns_and_b32 exec_lo, exec_lo, 0xffffff\ns_mov_b32 exec_hi, 0")
            a("buffer_load_dwordx4 v[56:59], v2, s[44:47], s65 offen sc1\ns_mov_b64 exec, s[76:77]")
        for k in range(56, 60): a(f"v_and_b32 v{k}, s98, v18")
        self.prewait(lambda: a("buffer_load_dwordx4 v[44:47], v2, s[44:47], s62 offen sc1"), lambda: self.chk_tag(range(44, 48), 68), 0x00010001, 0x00010001, o.prec)
        self.ppoll(ld, lambda: self.chk_tag(range(44, 60), 68), 4, o.bo_c, 36, rl=52, pipe=o.pipec)
        self.stamp(14)
        a("v_pk_add_f32 v[60:61], v[44:45], v[48:49]\nv_pk_add_f32 v[62:63], v[46:47], v[50:51]\nv_pk_add_f32 v[64:65], v[52:53], v[56:57]\nv_pk_add_f32 v[66:67], v[54:55], v[58:59]")
        a("v_pk_add_f32 v[60:61], v[60:61], v[64:65]\nv_pk_add_f32 v[62:63], v[62:63], v[66:67]")
        self.red4([60, 61, 62, 63]); self.ror(60, 4); self.ror(60, 8)
        a("v_fma_f32 v60, v60, v24, v25\nv_cvt_pk_bf16_f32 v60, v60, v60")
        a("s_and_b32 exec_lo, exec_lo, 0x000f000f\ns_and_b32 exec_hi, exec_hi, 0x000f000f")
        a("buffer_store_short v60, v3, s[52:55], s67 offen")
        a("s_cbranch_execz L_dry_ret")
        a("s_cmp_lg_u32 s94, 0\ns_cbranch_scc1 L_fin2")
        a("s_mov_b64 exec, 1\nv_mov_b32 v6, 0\nbuffer_store_dword v18, v6, s[44:47], 0 offen sc1")
        a("L_fin2:")
        self.stamp(15)
        a("s_branch L_wend")
        a("L_end:\ns_endpgm")
        a(footer(256, 100, 256))
        if o.skipvm:
            L = []
            for i, line in enumerate(a.L):
                if "buffer_store" in line and "v19" not in line and "v18" not in line:
                    L += [f"    s_cbranch_execz L_sks{i}", line, f"L_sks{i}:"]
                else: L.append(line)
            a.L = L
        return a.text()

if __name__ == "__main__":
    ap = argparse.ArgumentParser()
    ap.add_argument("-o", default="k.s")
    for k, v in dict(depth=6, depth2=0, d2pos=12, d0=2, stamps=0, dry=1, fdry=0, prio=3, sprio=3, masked=1, swait=0, fsleep=8, msleep=4, tsleep=0, usleep=6,
                     nopoll=0, b1early=1, nofront=0, nostore=0, norole=0, nohopld=0, t1=18, t2=36, t3=64, tickets=1, wlate=0, gearly=160,
                     pipe=0, pgap=1, xsleep=4, preb=4, prez=4, prec=4, asleep=1, hx=0, ackst=0, td=0, tdnear=240, tdsleep=8, yack=1, pretouch=0, dynord=0, w1dry=0, codepf=0, cons=0, skipvm=1, sml=0, atgt=4, gtrig=1, gprio=-1, early=0, atrig=1).items():
        ap.add_argument("--" + k, type=int, default=v)
    for k in ("nt", "wnt", "lnt"): ap.add_argument("--" + k, default="nt")
    ap.add_argument("--ptf", default="")
    for k in ("pipea", "pipeb", "pipez", "pipec"): ap.add_argument("--" + k, type=int, default=None)
    for k in ("bo_a", "bo_b", "bo_z", "bo_c"): ap.add_argument("--" + k, default="0")
    o = ap.parse_args()
    for k in ("bo_a", "bo_b", "bo_z", "bo_c"):
        v = [int(x) for x in getattr(o, k).split(",")]; setattr(o, k, v[0] if len(v) == 1 else tuple(v))
    for k in ("nt", "wnt", "lnt"):
        if getattr(o, k) == "pl": setattr(o, k, "")
    g = G(o); t = g.build()
    open(o.o, "w").write(t)
    print("nops inserted:", g.a.nops, "lines:", len(t.splitlines()))
```

```python
import sys, argparse
from asmlib import *

WS_EPOCH = 0x0
WS_CNT   = 0x1000
WS_MR    = 0x10000
WS_Q2    = 0x20000
WS_O     = 0x40000
WS_ML    = 0x60000
WS_X2    = 0x61000
WS_Y     = 0x62000
WS_OP    = 0x6C000
WS_Z     = 0x8E000
WS_U     = 0xB0000
WS_G1    = 0x100000
WS_STAMP = 0x200000
L_FLAG = 0x20000
C_F1, C_F2, C_Q, C_K, C_P, C_MAX, C_T1, C_T2, C_T3, C_O, C_W, C_U, C_Z, C_TKT, C_TD, C_YA, C_A, C_WL, C_GL = [4*i for i in range(19)]
L_RED1 = 0x20100
L_RED2 = 0x20800
L_QBUF = 0x21000
L_MAXB = 0x21100
L_LSUM = 0x21110
L_PBUF = 0x21200
L_REDO = 0x21800
L_REDW = 0x22000
L_GU   = 0x22400
L_GZ   = 0x23400
L_GX2  = 0x23D00
L_OH   = 0x20600
LDS_BYTES = 0x24000
LOG2E = 0x3fb8aa3b
TAGADD = 0x61C88647

class G:
    def __init__(self, opt):
        self.o = opt
        self.a = Asm()
        self.n = 0
    def lab(self, p="L"):
        self.n += 1
        return f"{p}_{self.n}"
    def stamp(self, k):
        if not self.o.stamps: return
        a = self.a; sk = self.lab("st")
        a(f"s_cbranch_execz {sk}\ns_memrealtime s[96:97]\ns_waitcnt lgkmcnt(0)\nv_writelane_b32 v19, s96, {k}\n{sk}:")
    def note(self, k, sreg):
        if not self.o.stamps: return
        a = self.a; sk = self.lab("st")
        a(f"s_cbranch_execz {sk}\nv_writelane_b32 v19, {sreg}, {k}\n{sk}:")
    def stamp_init(self):
        if not self.o.stamps: return
        self.a("v_mov_b32 v19, 0\nv_writelane_b32 v19, s96, 0")
    def dump_stamps(self):
        if not self.o.stamps: return
        a = self.a
        a("s_mov_b64 exec, -1")
        a("s_lshl_b32 s60, s2, 3\ns_add_u32 s60, s60, s3\ns_lshl_b32 s60, s60, 8")
        a(f"s_add_u32 s60, s60, {WS_STAMP}\nv_lshlrev_b32 v1, 2, v0")
        if self.o.stamps == 2:
            self.srd(48, 40, 256)
            a("v_not_b32 v2, v19\nv_cmp_eq_u32 vcc, 0, v0\nv_cndmask_b32 v19, v19, v2, vcc")
            a("s_cmp_ge_u32 s3, 4\ns_cselect_b32 s60, 64, 0\ns_mov_b32 exec_lo, 0xffff\ns_mov_b32 exec_hi, 0")
            a("buffer_atomic_umax v19, v1, s[48:51], s60 offen")
        else:
            a(f"buffer_store_dword v19, v1, s[44:47], s60 offen")
    def waitvm(self, n):
        a = self.a; sk = self.lab("wv")
        a(f"s_cbranch_execz {sk}\ns_waitcnt vmcnt({n})\n{sk}:")
    def barrier(self):
        a = self.a; sk = self.lab("bar")
        a(f"s_cbranch_execz {sk}\ns_barrier\n{sk}:")
    def srd(self, q, ptr, size, off=0):
        a = self.a
        if off: a(f"s_add_u32 s{q}, s{ptr}, {off}\ns_addc_u32 s{q+1}, s{ptr+1}, 0")
        else: a(f"s_mov_b32 s{q}, s{ptr}\ns_mov_b32 s{q+1}, s{ptr+1}")
        a(f"s_mov_b32 s{q+2}, {size}\ns_mov_b32 s{q+3}, 0x20000")
    def lo(self, d, s): self.a(f"v_lshlrev_b32 v{d}, 16, v{s}")
    def hi(self, d, s): self.a(f"v_and_b32 v{d}, 0xffff0000, v{s}")
    def round2(self, x, y, t):
        self.a(f"v_cvt_pk_bf16_f32 v{t}, v{x}, v{y}"); self.lo(x, t); self.hi(y, t)
    def allred(self, v, t, op="add", bits=(0, 1, 2, 3, 4, 5)):
        a = self.a
        d = {0: "quad_perm:[1,0,3,2]", 1: "quad_perm:[2,3,0,1]", 2: "row_half_mirror", 3: "row_mirror"}
        for b in bits:
            if b < 4: a(f"v_{op}_f32_dpp v{v}, v{v}, v{v} {d[b]} row_mask:0xf bank_mask:0xf")
            else:
                a(f"v_mov_b32 v{t}, v{v}\nv_permlane{16 if b == 4 else 32}_swap_b32 v{t}, v{v}\nv_{op}_f32 v{v}, v{v}, v{t}")
    def ror(self, v, n): self.a(f"v_add_f32_dpp v{v}, v{v}, v{v} row_ror:{n} row_mask:0xf bank_mask:0xf")
    def red8(self, acc):
        a = self.a
        for k in range(4): a(f"v_permlane32_swap_b32 v{acc[k]}, v{acc[k+4]}")
        for k in range(4): a(f"v_add_f32 v{acc[k]}, v{acc[k]}, v{acc[k+4]}")
        for k in range(2): a(f"v_permlane16_swap_b32 v{acc[k]}, v{acc[k+2]}")
        for k in range(2): a(f"v_add_f32 v{acc[k]}, v{acc[k]}, v{acc[k+2]}")
    def red4(self, v):
        a = self.a
        a(f"v_permlane32_swap_b32 v{v[0]}, v{v[2]}\nv_permlane32_swap_b32 v{v[1]}, v{v[3]}")
        a(f"v_add_f32 v{v[0]}, v{v[0]}, v{v[2]}\nv_add_f32 v{v[1]}, v{v[1]}, v{v[3]}")
        a(f"v_permlane16_swap_b32 v{v[0]}, v{v[1]}\nv_add_f32 v{v[0]}, v{v[0]}, v{v[1]}")
    def permpair(self, A, B, T):
        a = self.a
        for k in range(len(A)):
            a(f"v_perm_b32 v{T[k]}, v{B[k]}, v{A[k]}, s12")
            a(f"v_perm_b32 v{B[k]}, v{B[k]}, v{A[k]}, s13")
        return list(T), list(B), list(A)
    def silu2(self, src, dst, t):
        a = self.a
        x0, x1, e0, e1 = t
        self.lo(x0, src); self.hi(x1, src)
        a(f"v_mul_f32 v{e0}, 0xbfb8aa3b, v{x0}\nv_mul_f32 v{e1}, 0xbfb8aa3b, v{x1}")
        a(f"v_exp_f32 v{e0}, v{e0}\nv_exp_f32 v{e1}, v{e1}")
        a(f"v_add_f32 v{e0}, 1.0, v{e0}\nv_add_f32 v{e1}, 1.0, v{e1}")
        a(f"v_rcp_f32 v{e0}, v{e0}\nv_rcp_f32 v{e1}, v{e1}")
        a(f"v_mul_f32 v{x0}, v{x0}, v{e0}\nv_mul_f32 v{x1}, v{x1}, v{e1}")
        a(f"v_cvt_pk_bf16_f32 v{dst}, v{x0}, v{x1}")
    def cnt_add(self, cnt, rtn=None):
        a = self.a
        a("s_mov_b64 s[14:15], exec\ns_and_b32 exec_lo, exec_lo, 1\ns_mov_b32 exec_hi, 0")
        if rtn is None: a(f"ds_add_u32 v14, v15 offset:{cnt}")
        else: a(f"ds_add_rtn_u32 v{rtn}, v14, v15 offset:{cnt}")
        a("s_mov_b64 exec, s[14:15]")
    def last_arriver(self, cnt, skip, t):
        a = self.a; go = self.lab("la")
        self.cnt_add(cnt, t)
        a(f"s_waitcnt lgkmcnt(0)\ns_cbranch_execz {go}\nv_readfirstlane_b32 s60, v{t}\ns_cmp_lg_u32 s60, 3\ns_cbranch_scc1 {skip}\n{go}:")
    def spin_lds(self, cnts, t, target=None):
        a = self.a; top = self.lab("sp"); out = self.lab("spo")
        a(f"s_mov_b32 s61, 0\n{top}:")
        for i, c in enumerate(cnts): a(f"ds_read_b32 v{t+i}, v14 offset:{c}")
        a(f"s_waitcnt lgkmcnt(0)\ns_cbranch_execz {out}")
        for i in range(1, len(cnts)): a(f"v_add_u32 v{t}, v{t}, v{t+i}")
        a(f"v_readfirstlane_b32 s60, v{t}\ns_cmp_ge_u32 s60, {target or 4*len(cnts)}\ns_cbranch_scc1 {out}")
        a(f"s_sleep 1\ns_add_u32 s61, s61, 1\ns_cmp_lt_u32 s61, 0x40000\ns_cbranch_scc1 {top}\n{out}:")
    def poll(self, loads, check, sleep=0, nk=None, pre=0, rk=None, rl=None, preloaded=False):
        a = self.a; top = self.lab("pl"); out = self.lab("plo"); full = self.lab("plf"); nx = self.lab("pln")
        a(f"s_mov_b32 s61, 0\ns_mov_b64 s[14:15], exec")
        if pre: a("s_and_b32 exec_lo, exec_lo, 1\ns_mov_b32 exec_hi, 0\ns_mov_b32 s99, 1")
        if preloaded: a(f"s_branch {top}_c")
        a(f"{top}:")
        if self.o.skipvm: a(f"s_cbranch_execz {top}_s")
        if not self.o.nohopld: loads()
        if preloaded: a(f"{top}_c:")
        if self.o.skipvm: a(f"s_cbranch_execz {top}_s\ns_waitcnt vmcnt(0)\n{top}_s:" if preloaded else f"s_waitcnt vmcnt(0)\n{top}_s:")
        else: self.waitvm(0)
        if rk is not None and self.o.stamps:
            sk = self.lab("rs")
            a(f"s_cbranch_execz {sk}\ns_memrealtime s[96:97]\ns_min_u32 s60, s61, 7\ns_add_u32 s60, s60, {rk}\ns_mov_b32 m0, s60\ns_waitcnt lgkmcnt(0)\nv_writelane_b32 v19, s96, m0\n{sk}:")
        if rl is not None and self.o.stamps:
            sk = self.lab("rs")
            a(f"s_cbranch_execz {sk}\ns_memrealtime s[96:97]\ns_add_u32 s95, s95, 1\ns_and_b32 s60, s95, 7\ns_add_u32 s60, s60, {rl}\ns_mov_b32 m0, s60\ns_waitcnt lgkmcnt(0)\nv_writelane_b32 v19, s96, m0\n{sk}:")
        check()
        a(f"s_cbranch_vccz {full if pre else out}")
        if self.o.nopoll: a(f"s_branch {out}")
        if self.o.masked: a("s_mov_b64 exec, vcc")
        if pre:
            a(f"s_cmp_eq_u32 s99, 0\ns_cbranch_scc1 {nx}\ns_sleep {pre}\n{nx}:")
        self.backoff(sleep)
        a(f"s_add_u32 s61, s61, 1\ns_cmp_lt_u32 s61, 0x8000\ns_cbranch_scc1 {top}")
        if pre:
            a(f"s_branch {out}\n{full}:\ns_cmp_eq_u32 s99, 0\ns_cbranch_scc1 {out}\ns_mov_b32 s99, 0\ns_andn2_b64 exec, s[14:15], exec\ns_cbranch_execnz {top}")
        a(f"{out}:\ns_mov_b64 exec, s[14:15]")
        if nk is not None: self.note(nk, "s61")
    def backoff(self, sleep):
        a = self.a
        if isinstance(sleep, tuple):
            th, sh, tl, sl = sleep; l1 = self.lab("bo"); l2 = self.lab("bo")
            a(f"s_bcnt1_i32_b64 s60, vcc\ns_cmp_le_u32 s60, {tl}\ns_cbranch_scc1 {l2}\ns_cmp_le_u32 s60, {th}\ns_cbranch_scc1 {l1}\ns_sleep {sh}\n{l1}:")
            if sl: a(f"s_sleep {sl}")
            a(f"{l2}:")
        elif sleep: a(f"s_sleep {sleep}")
    def ppoll(self, loads, check, nops, sleep=0, nk=None, rl=None, pipe=None):
        if not (self.o.pipe if pipe is None else pipe):
            return self.poll(loads, check, sleep, nk, rl=rl)
        a = self.a; top = self.lab("pp"); out = self.lab("ppo")
        a("s_mov_b32 s61, 0\ns_mov_b64 s[14:15], exec")
        loads()
        if self.o.pgap: a(f"s_sleep {self.o.pgap}")
        a(f"{top}:")
        loads()
        self.waitvm(nops)
        if rl is not None and self.o.stamps:
            sk = self.lab("rs")
            a(f"s_cbranch_execz {sk}\ns_memrealtime s[96:97]\ns_add_u32 s95, s95, 1\ns_and_b32 s60, s95, 7\ns_add_u32 s60, s60, {rl}\ns_mov_b32 m0, s60\ns_waitcnt lgkmcnt(0)\nv_writelane_b32 v19, s96, m0\n{sk}:")
        check()
        a(f"s_cbranch_vccz {out}\ns_mov_b64 exec, vcc")
        self.backoff(sleep)
        a(f"s_add_u32 s61, s61, 1\ns_cmp_lt_u32 s61, 0x8000\ns_cbranch_scc1 {top}")
        a(f"{out}:\ns_mov_b64 exec, s[14:15]")
        if nk is not None: self.note(nk, "s61")
    def prewait(self, loads, check, mlo, mhi, sleep):
        if not sleep: return
        a = self.a; top = self.lab("pw"); out = self.lab("pwo")
        a(f"s_mov_b32 s61, 0\ns_mov_b64 s[78:79], exec\ns_and_b32 exec_lo, exec_lo, {hex(mlo)}\ns_and_b32 exec_hi, exec_hi, {hex(mhi)}\n{top}:\ns_cbranch_execz {out}")
        loads()
        a(f"s_waitcnt vmcnt(0)")
        check()
        a(f"s_cmp_eq_u64 vcc, exec\ns_cbranch_scc0 {out}\ns_sleep {sleep}")
        a(f"s_add_u32 s61, s61, 1\ns_cmp_lt_u32 s61, 0x8000\ns_cbranch_scc1 {top}\n{out}:\ns_mov_b64 exec, s[78:79]")
    def tdetect(self):
        if not self.o.td: return
        a = self.a; out = self.lab("tdo"); w = self.lab("tdw")
        a(f"s_cbranch_execz {out}\ns_cmp_lg_u32 s3, 4\ns_cbranch_scc1 {w}")
        a(f"s_and_b32 s62, s2, {self.o.tdrep-1}\ns_lshl_b32 s62, s62, 7\ns_add_u32 s62, s62, {WS_CNT}\nv_mov_b32 v1, 0\ns_mov_b64 s[78:79], exec\ns_mov_b64 exec, 1")
        def ck():
            a("v_xor_b32 v60, v56, v18\nv_bitop3_b32 v60, v57, v18, v60 bitop3:0xbe\nv_bitop3_b32 v60, v58, v18, v60 bitop3:0xbe\nv_bitop3_b32 v60, v59, v18, v60 bitop3:0xbe\nv_cmp_ne_u32 vcc, 0, v60")
        self.poll(lambda: a("buffer_load_dwordx4 v[56:59], v1, s[44:47], s62 offen sc1"), ck, self.o.tdsleep)
        a("s_mov_b64 exec, s[78:79]")
        self.cnt_add(C_TD)
        a(f"s_branch {out}\n{w}:")
        self.spin_lds([C_TD], 60, target=1)
        a(f"{out}:")
    def get_ticket(self):
        a = self.a; top = self.lab("tk"); out = self.lab("tko")
        if not self.o.tickets:
            a("s_mov_b32 s94, s2"); return
        a(f"s_mov_b32 s61, 0\n{top}:\nds_read_b32 v1, v14 offset:{C_TKT}\ns_waitcnt lgkmcnt(0)\nv_readfirstlane_b32 s94, v1\ns_cbranch_execz {out}")
        a(f"s_cmp_lg_u32 s94, 0\ns_cbranch_scc1 {out}\ns_sleep 1\ns_add_u32 s61, s61, 1\ns_cmp_lt_u32 s61, 0x40000\ns_cbranch_scc1 {top}\n{out}:")
        a("s_sub_u32 s94, s94, 1\ns_and_b32 s94, s94, 0xff")
    def swait(self, loads, regs, ref, eq):
        if not self.o.swait: return
        a = self.a; top = self.lab("sw"); out = self.lab("swo"); again = self.lab("swa")
        a(f"s_cbranch_execz {out}\ns_mov_b32 s61, 0\n{top}:")
        loads()
        a("s_waitcnt lgkmcnt(0)")
        for r in regs:
            a(f"s_cmp_{'lg' if eq else 'eq'}_u32 s{r}, {ref}\ns_cbranch_scc1 {again}")
        a(f"s_branch {out}\n{again}:")
        a(f"s_add_u32 s61, s61, 1\ns_cmp_lt_u32 s61, 0x8000\ns_cbranch_scc1 {top}\n{out}:")
    def chk_sent(self, regs, t):
        a = self.a
        regs = list(regs)
        if len(regs) == 1:
            a(f"v_cmp_eq_u32 vcc, -1, v{regs[0]}"); return
        if len(regs) % 2 == 0:
            a(f"v_max_u32 v{t}, v{regs[0]}, v{regs[1]}"); rest = regs[2:]
        else:
            a(f"v_max3_u32 v{t}, v{regs[0]}, v{regs[1]}, v{regs[2]}"); rest = regs[3:]
        for i in range(0, len(rest), 2): a(f"v_max3_u32 v{t}, v{t}, v{rest[i]}, v{rest[i+1]}")
        a(f"v_cmp_eq_u32 vcc, -1, v{t}")
    def tag(self, regs, rnd=False):
        for r in regs:
            if rnd: self.a(f"v_add_u32 v{r}, 0x80, v{r}")
            self.a(f"v_bfi_b32 v{r}, s98, v18, v{r}")
    def chk_tag(self, regs, t):
        a = self.a; regs = list(regs)
        a(f"v_xor_b32 v{t}, v{regs[0]}, v18")
        for r in regs[1:]: a(f"v_bitop3_b32 v{t}, v{r}, v18, v{t} bitop3:0xbe")
        a(f"v_and_b32 v{t}, s98, v{t}\nv_cmp_ne_u32 vcc, 0, v{t}")
    def sum4x4(self, base):
        a = self.a; b = base
        for h in (0, 2):
            a(f"v_pk_add_f32 v[{b+h}:{b+h+1}], v[{b+h}:{b+h+1}], v[{b+4+h}:{b+5+h}]")
            a(f"v_pk_add_f32 v[{b+8+h}:{b+9+h}], v[{b+8+h}:{b+9+h}], v[{b+12+h}:{b+13+h}]")
        for h in (0, 2):
            a(f"v_pk_add_f32 v[{b+h}:{b+h+1}], v[{b+h}:{b+h+1}], v[{b+8+h}:{b+9+h}]")
    def endwave(self):
        a = self.a
        a("s_cbranch_execz L_dry_ret")
        self.dump_stamps()
        a("s_endpgm")

    def build(self):
        a = self.a; o = self.o; D = o.depth; NT = o.nt; WNT = o.wnt; LNT = o.lnt
        a(header(256, 512, LDS_BYTES))
        a("s_cmp_ge_u32 s2, 256\ns_cbranch_scc1 L_end")
        a("s_load_dwordx16 s[16:31], s[0:1], 0\ns_load_dwordx8 s[32:39], s[0:1], 64\ns_load_dwordx4 s[40:43], s[0:1], 96")
        if o.stamps:
            a("s_memrealtime s[96:97]")
        a("v_lshrrev_b32 v1, 6, v0\nv_and_b32 v0, 63, v0\nv_readfirstlane_b32 s3, v1")
        a("s_and_b32 s4, s2, 7\ns_lshr_b32 s5, s2, 3\ns_lshr_b32 s6, s5, 3")
        if o.hx: a(f"s_add_u32 s60, s4, {o.hx}\ns_and_b32 s60, s60, 7\ns_lshl_b32 s60, s60, 2")
        else: a("s_lshl_b32 s60, s4, 2")
        a("s_add_u32 s6, s6, s60\ns_and_b32 s7, s5, 7")
        a("s_mov_b32 s12, 0x05040100\ns_mov_b32 s13, 0x07060302")
        a(f"v_mov_b32 v14, {L_FLAG}\nv_mov_b32 v15, 1")
        a("s_cmp_ge_u32 s3, 4\ns_cbranch_scc1 L_aux")
        a("v_lshrrev_b32 v4, 4, v0\nv_and_b32 v5, 15, v0\ns_lshl_b32 s60, s3, 2\nv_add_u32 v6, s60, v4")
        a("v_xor_b32 v2, v5, v6\nv_lshlrev_b32 v2, 4, v2\nv_lshl_add_u32 v2, v4, 8, v2\nv_lshlrev_b32 v3, 4, v0")
        a("s_lshl_b32 s62, s6, 20\ns_lshl_b32 s60, s7, 17\ns_add_u32 s62, s62, s60\ns_lshl_b32 s60, s3, 10\ns_add_u32 s62, s62, s60\ns_mov_b32 m0, s60\ns_mov_b32 s63, s62")
        a("s_waitcnt lgkmcnt(0)")
        self.stamp_init()
        self.srd(48, 18, 0x2000000)
        a("s_mov_b32 s61, 0")
        if o.d0 > 0:
            a("L_k1:")
            a(f"buffer_load_dwordx4 v2, s[48:51], s62 offen {NT} lds")
            a(f"s_addk_i32 s62, 0x1000\ns_addk_i32 m0, 0x1000\ns_add_u32 s61, s61, 1\ns_cmp_lt_u32 s61, {o.d0}\ns_cbranch_scc1 L_k1")
        self.stamp(44)
        a("s_barrier")
        self.stamp(45)
        if o.stamps and o.early:
            a(f"s_waitcnt vmcnt({o.d0-1})"); self.stamp(46)
        N = 64
        VB = 128
        Vr = [[VB + 4 * t + k for k in range(4)] for t in range(32)]
        trig = sorted([(o.t1, C_T1), (o.t2, C_T2), (o.t3, C_T3)])
        Tfree = [32, 33, 34, 35]; pairs = {}
        cur = o.d0; j = 0
        first = True
        for n, c in [(n, c) for n, c in trig if n <= 32] + [(32, None)]:
            if n > cur:
                lb = f"L_k2_{j}"; j += 1
                a(f"{lb}:\ns_waitcnt vmcnt({D-1})")
                a(f"buffer_load_dwordx4 v2, s[48:51], s62 offen {NT} lds")
                a(f"s_addk_i32 s62, 0x1000\ns_addk_i32 m0, 0x1000\ns_add_u32 s61, s61, 1\ns_cmp_lt_u32 s61, {n}\ns_cbranch_scc1 {lb}")
                cur = n
            if first:
                first = False
                a("s_load_dword s9, s[42:43], 0")
                self.srd(52, 20, 0x2000000); self.srd(44, 42, 0x10000000)
                a("s_mov_b32 s8, s3\ns_mov_b32 s10, 0\ns_mov_b32 s11, 0\ns_mov_b32 s98, 0xff\ns_mov_b32 s95, 0\ns_mov_b32 s81, 0")
                for r in list(range(7, 14)) + [157, 158, 159]: a(f"v_mov_b32 v{r}, 0")
            if c is not None: self.cnt_add(c)
        self.stamp(1)
        if o.stamps:
            a("s_getreg_b32 s60, hwreg(HW_REG_XCC_ID)\ns_add_u32 s60, s60, 1"); self.note(50, "s60")
        def doperm(u):
            nonlocal Tfree
            lo, hi, Tfree = self.permpair(Vr[2*u], Vr[2*u+1], Tfree)
            pairs[u] = (lo, hi)
        D2 = o.depth2 or D
        for t in range(32):
            n = 32 + t
            DD = D2 if t >= o.d2pos else D
            a(f"s_waitcnt vmcnt({DD-1})")
            if n - D == 31:
                self.cnt_add(C_K); self.stamp(2)
            for tn, c in trig:
                if tn == n and tn > 32: self.cnt_add(c)
            a(f"buffer_load_dwordx4 v[{Vr[t][0]}:{Vr[t][3]}], v3, s[52:55], s63 offen {NT}")
            if t < 31: a("s_addk_i32 s63, 0x1000")
            for u in range(16):
                if u not in pairs and 32 + 2*u + 1 <= n - DD: doperm(u)
        for tn, c in trig:
            if tn >= N: self.cnt_add(c)
        if o.sprio: a(f"s_setprio {o.sprio}")
        a(f"s_waitcnt lgkmcnt(0)\ns_add_u32 s9, s9, {TAGADD}\nv_mov_b32 v18, s9")
        self.stamp(3)
        a(f"v_lshlrev_b32 v7, 6, v6\nv_add_u32 v7, {L_PBUF}, v7")
        a(f"v_lshlrev_b32 v8, 5, v5\nv_lshl_add_u32 v8, v4, 3, v8\ns_lshl_b32 s60, s3, 9\ns_add_u32 s60, s60, {L_REDO}\nv_add_u32 v8, s60, v8")
        a(f"v_lshlrev_b32 v9, 4, v0\nv_add_u32 v10, {L_REDO}, v9\nv_mov_b32 v11, {L_LSUM}\nv_mov_b32 v12, 0\nv_lshlrev_b32 v13, 7, v0")
        a("L_pv:")
        a(f"s_lshl_b32 s60, s6, 3\ns_add_u32 s60, s60, s7\ns_lshl_b32 s63, s60, 4\ns_add_u32 s63, s63, {WS_ML}\ns_lshl_b32 s60, s60, 9\ns_add_u32 s62, s60, {WS_O}")
        ACC = list(range(36, 44)); P = list(range(48, 64))
        for k in ACC: a(f"v_mov_b32 v{k}, 0")
        self.spin_lds([C_P], 44)
        self.stamp(4)
        for q in range(4): a(f"ds_read_b128 v[{48+4*q}:{51+4*q}], v7 offset:{16*q}")
        a("s_waitcnt lgkmcnt(0)")
        for u in range(16):
            if u not in pairs:
                self.waitvm(30 - 2*u)
                doperm(u)
            lo, hi = pairs[u]
            for k in range(4):
                a(f"v_dot2c_f32_bf16 v{ACC[2*k]}, v{lo[k]}, v{P[u]}")
                a(f"v_dot2c_f32_bf16 v{ACC[2*k+1]}, v{hi[k]}, v{P[u]}")
        self.stamp(5)
        self.red8(ACC)
        a(f"ds_write_b64 v8, v[{ACC[0]}:{ACC[1]}]")
        self.last_arriver(C_O, "L_send", 44)
        a("s_mov_b64 s[76:77], exec\ns_mov_b32 exec_hi, 0")
        for q in range(4): a(f"ds_read_b128 v[{48+4*q}:{51+4*q}], v10 offset:{512*q}")
        a("ds_read_b128 v[64:67], v11\nds_read_b32 v68, v11 offset:16")
        a("s_waitcnt lgkmcnt(2)")
        self.sum4x4(48)
        self.tag(range(48, 52))
        a("buffer_store_dwordx4 v[48:51], v9, s[44:47], s62 offen sc1")
        a("s_and_b32 exec_lo, exec_lo, 1\ns_waitcnt lgkmcnt(0)")
        a("v_add_f32 v64, v64, v65\nv_add_f32 v66, v66, v67\nv_add_f32 v69, v64, v66")
        self.tag([68, 69])
        a("v_mov_b32 v70, v68\nv_mov_b32 v71, v69")
        a("buffer_store_dwordx4 v[68:71], v12, s[44:47], s63 offen sc1")
        if o.td:
            self.srd(48, 40, 256)
            a("s_cbranch_execz L_tdp\ns_and_b32 s64, s5, 3\ns_lshl_b32 s60, s64, 6\nv_mov_b32 v72, 1")
            a("buffer_atomic_add v72, v12, s[48:51], s60 offen offset:32 sc0")
            self.stamp(6)
            a("s_mov_b32 s81, 1")
            a("L_tdp:")
        a("s_mov_b64 exec, s[76:77]")
        if not o.td: self.stamp(6)
        if o.stamps and o.ackst:
            self.waitvm(0); self.stamp(31)
        def lastchk(n):
            if not o.td: return
            sk = self.lab("lc")
            a(f"s_cmp_eq_u32 s81, 0\ns_cbranch_scc1 {sk}\ns_waitcnt vmcnt({n})\nv_readfirstlane_b32 s60, v72\ns_cmp_lg_u32 s60, 63\ns_cbranch_scc1 {sk}")
            a(f"s_mov_b32 exec_lo, {hex((1 << o.tdrep) - 1)}\ns_mov_b32 exec_hi, 0\ns_and_b32 s60, s5, 3\ns_lshl_b32 s60, s60, 2\ns_add_u32 s60, s60, {WS_CNT}")
            a("buffer_store_dword v18, v13, s[44:47], s60 offen sc1\ns_mov_b64 exec, -1")
            self.stamp(47)
            a(f"{sk}:")
        a("L_send:")
        a("s_cbranch_execz L_dry_ret")
        self.get_ticket()
        self.note(51, "s94")
        if o.cons == 3:
            a("s_cmp_lt_u32 s5, 27\ns_cbranch_scc1 L_hasG")
            self.cnt_add(C_GL); self.cnt_add(C_Z)
            a("s_branch L_wend\nL_hasG:")
        else:
            a("s_cmp_lt_u32 s94, 216\ns_cbranch_scc1 L_hasG")
            lastchk(0)
            a("s_branch L_wend\nL_hasG:")
        if o.cons == 1: a("s_mul_i32 s92, s94, 304\ns_lshr_b32 s92, s92, 13\ns_mul_i32 s93, s92, 27\ns_sub_u32 s93, s94, s93")
        elif o.cons == 3: a("s_mov_b32 s92, s4\ns_mov_b32 s93, s5")
        else: a("s_and_b32 s92, s94, 7\ns_lshr_b32 s93, s94, 3")
        WW = [[96 + 4*i + q for q in range(4)] for i in range(8)]
        GW = list(range(136, 146)); UW = list(range(146, 156)); XF = list(range(160, 165))
        GA = list(range(166, 171)); TT = list(range(174, 179)); SB = list(range(182, 187)); IN = list(range(190, 195))
        def ld8(b0, so, vo, v5):
            a(f"buffer_load_dwordx4 v[{b0}:{b0+3}], v{vo}, s[44:47], s{so} offen sc1\nbuffer_load_dwordx4 v[{b0+4}:{b0+7}], v{v5}, s[44:47], s{so} offen offset:64 sc1")
        def sel5(b0, d):
            a(f"v_cndmask_b32 v{d}, v{b0+4}, v{b0+5}, s[68:69]\nv_cndmask_b32 v51, v{b0+6}, v{b0+7}, s[68:69]\nv_cndmask_b32 v{d}, v{d}, v51, s[70:71]")
        def ldmr():
            ld8(GA[0], 62, 8, 7); ld8(SB[0], 63, 8, 7); ld8(TT[0], 66, 8, 7)
        def gpulls():
            self.srd(48, 28, 2211840); self.srd(52, 30, 2211840); self.srd(56, 16, 1280)
            a("s_mul_i32 s64, s92, 80\ns_mul_i32 s60, s8, 20\ns_add_u32 s64, s64, s60")
            a("s_mul_i32 s60, s64, 3456\ns_lshl_b32 s61, s93, 7\ns_add_u32 s60, s60, s61\ns_add_u32 s61, s60, 55296")
            a("v_lshrrev_b32 v158, 5, v0\nv_and_b32 v1, 31, v0\nv_lshlrev_b32 v1, 2, v1\nv_mul_u32_u24 v159, 27648, v158\nv_add_u32 v159, v159, v1\nv_mul_u32_u24 v157, 6912, v158\nv_add_u32 v157, v157, v1")
            for k in range(8):
                a(f"buffer_load_dword v{GW[k]}, v159, s[48:51], s60 offen offset:{3456*(k%2)} {LNT}\nbuffer_load_dword v{UW[k]}, v159, s[52:55], s60 offen offset:{3456*(k%2)} {LNT}")
                if k % 2 == 1 and k < 7: a("s_addk_i32 s60, 6912")
            for k in range(8, 10):
                a(f"buffer_load_dword v{GW[k]}, v157, s[48:51], s61 offen offset:{3456*(k%2)} {LNT}\nbuffer_load_dword v{UW[k]}, v157, s[52:55], s61 offen offset:{3456*(k%2)} {LNT}")
            a("v_and_b32 v1, 3, v0\nv_lshlrev_b32 v158, 3, v1\nv_lshlrev_b32 v157, 1, v1\nv_lshlrev_b32 v8, 4, v1\nv_mov_b32 v7, 0\ns_lshl_b32 s60, s64, 1")
            a(f"v_mov_b32 v{XF[4]}, 0\nbuffer_load_dwordx2 v[196:197], v158, s[56:59], s60 offen\nbuffer_load_short_d16_hi v{XF[4]}, v157, s[56:59], s60 offen offset:32")
            a(f"s_lshl_b32 s65, s64, 2\ns_add_u32 s62, s65, {WS_MR}\ns_add_u32 s63, s62, 2560\ns_add_u32 s66, s62, 5120")
            ldmr()
        def wids():
            if o.cons in (1, 2): a("s_mul_i32 s64, s94, 205\ns_lshr_b32 s64, s64, 11\ns_mul_i32 s65, s64, 10\ns_sub_u32 s65, s94, s65")
            else: a("s_and_b32 s64, s94, 15\ns_lshr_b32 s65, s94, 4")
            a("s_lshr_b32 s60, s8, 1\ns_lshl_b32 s66, s64, 1\ns_add_u32 s66, s66, s60\ns_and_b32 s67, s8, 1")
        a(f"s_cmp_ge_u32 s94, 160\ns_cbranch_scc1 L_G1\ns_cmp_lt_u32 s94, {o.gearly}\ns_cbranch_scc1 L_G1")
        self.spin_lds([C_A if o.gtrig == 2 else C_WL], 44, target=o.atgt)
        a("L_G1:")
        if o.gprio >= 0: a(f"s_setprio {o.gprio}")
        self.stamp(7)
        gpulls()
        lastchk(28)
        a("L_Gprep:")
        a(f"s_add_u32 s87, s65, {WS_Y}\ns_mov_b32 s68, 0xaaaaaaaa\ns_mov_b32 s69, 0xaaaaaaaa\ns_mov_b32 s70, 0xcccccccc\ns_mov_b32 s71, 0xcccccccc")
        a("v_mov_b32 v9, s12\nv_mov_b32 v10, 0x01000504\nv_cndmask_b32 v9, v9, v10, s[68:69]")
        a("v_lshlrev_b32 v158, 3, v0\nv_lshrrev_b32 v5, 2, v0")
        a(f"s_lshl_b32 s60, s8, 9\ns_add_u32 s60, s60, {L_GU}\nv_add_u32 v10, s60, v158")
        a(f"s_mul_i32 s60, s8, 528\ns_add_u32 s60, s60, {L_GZ}\nv_add_u32 v11, s60, v158")
        a(f"v_lshrrev_b32 v6, 2, v8\ns_add_u32 s60, s60, 512\nv_add_u32 v12, s60, v6")
        a(f"s_mul_i32 s60, s8, 80\ns_add_u32 s60, s60, {L_GX2}\nv_add_u32 v13, s60, v8\nv_add_u32 v6, s60, v6")
        a(f"v_mul_u32_u24 v5, 2560, v5\nv_add_u32 v157, v5, v8")
        self.poll(ldmr, lambda: self.chk_tag(list(range(166, 190)), 50), o.msleep, preloaded=True)
        if o.atrig: self.cnt_add(C_GL)
        self.stamp(27)
        for b0 in (GA[0], TT[0], SB[0]): sel5(b0, b0 + 4)
        self.lo(XF[0], 196); self.hi(XF[1], 196); self.lo(XF[2], 197); self.hi(XF[3], 197)
        Gp = []; Up = []; Tf = [156]
        for W, Lp in ((GW, Gp), (UW, Up)):
            for m in range(5):
                r0, r1 = (W[m], W[4+m]) if m < 4 else (W[8], W[9])
                lo, hi, Tf = self.permpair([r0], [r1], Tf); Lp.append((lo[0], hi[0]))
        for k in range(5):
            self.hi(GA[k], GA[k]); self.hi(TT[k], TT[k])
            a(f"v_add_f32 v{TT[k]}, 1.0, v{TT[k]}")
        def pack5(src, keep=None):
            for k in range(5): a(f"v_cvt_pk_bf16_f32 v{52+k}, v{src[k]}, v{src[k]}")
            for k in range(5): a(f"v_mov_b32_dpp v{58+k}, v{52+k} quad_perm:[1,0,3,2] row_mask:0xf bank_mask:0xf")
            if keep:
                for k in range(5): self.lo(keep[k], 52 + k)
            for k in range(5): a(f"v_perm_b32 v{58+k}, v{58+k}, v{52+k}, v9")
            for k in range(5): a(f"v_mov_b32_dpp v{IN[k]}, v{58+k} quad_perm:[0,0,0,0] row_mask:0x3 bank_mask:0xf")
            for k in range(5): a(f"v_mov_b32_dpp v{IN[k]}, v{58+k} quad_perm:[2,2,2,2] row_mask:0xc bank_mask:0xf")
        def gpass():
            for m in range(5):
                for i, (Lp, b) in enumerate(((Gp, 64), (Up, 66))):
                    for h in range(2):
                        if m == 0: a(f"v_dot2_f32_bf16 v{b+h}, v{Lp[m][h]}, v{IN[m]}, 0")
                        else: a(f"v_dot2c_f32_bf16 v{b+h}, v{Lp[m][h]}, v{IN[m]}")
        def gred():
            a("v_permlane32_swap_b32 v64, v66\nv_permlane32_swap_b32 v65, v67\nv_pk_add_f32 v[64:65], v[64:65], v[66:67]")
        pack5(TT, keep=TT); gpass(); gred()
        a("ds_write_b64 v10, v[64:65]")
        for k in range(5): self.hi(SB[k], SB[k])
        pack5(SB); gpass(); gred()
        a("ds_write_b64 v10, v[64:65] offset:2048")
        a(f"s_mul_i32 s67, s92, 27\ns_add_u32 s67, s67, s93\ns_mul_i32 s88, s67, 640\ns_add_u32 s88, s88, {WS_Z}")
        self.last_arriver(C_U, "L_Gprepd", 50)
        a(f"v_lshrrev_b32 v158, 5, v0\nv_lshlrev_b32 v158, 11, v158\nv_and_b32 v159, 31, v0\nv_lshl_add_u32 v158, v159, 4, v158\nv_add_u32 v158, {L_GU}, v158\nv_lshlrev_b32 v159, 4, v0")
        for q in range(4): a(f"ds_read_b128 v[{68+4*q}:{71+4*q}], v158 offset:{512*q}")
        a(f"s_lshl_b32 s60, s67, 10\ns_add_u32 s60, s60, {WS_U}\ns_waitcnt lgkmcnt(0)")
        self.sum4x4(68); self.tag(range(68, 72))
        a("buffer_store_dwordx4 v[68:71], v159, s[44:47], s60 offen sc1")
        a("L_Gprepd:")
        self.stamp(28)
        a("L_Gtail:")
        if o.gprio >= 0: a(f"s_setprio 3")
        a(f"v_lshlrev_b32 v159, 4, v0\nv_add_u32 v158, {L_GZ}, v159")
        YY = list(range(44, 49)); YL = [92, 93, 94, 95, 49]
        a("s_cbranch_execz L_Gpw\ns_cmp_ge_u32 s94, 160\ns_cbranch_scc1 L_Gpw")
        self.spin_lds([C_YA if o.yack else C_W], 44, target=1 if o.yack else 4)
        a("s_branch L_Gb\nL_Gpw:")
        if o.td: self.spin_lds([C_TD], 44, target=1)
        self.prewait(lambda: a(f"buffer_load_dwordx4 v[92:95], v157, s[44:47], s87 offen sc1"), lambda: self.chk_tag(range(92, 96), 50), 0x00010001, 0x00010001, o.preb)
        a("L_Gb:")
        self.stamp(39)
        self.ppoll(lambda: ld8(92, 87, 157, 5), lambda: self.chk_tag(range(92, 100), 50), 2, o.bo_b, 35, rl=52, pipe=o.pipeb)
        self.stamp(29)
        sel5(92, 49)
        for k in range(5): a(f"v_add_f32_dpp v{YY[k]}, v{YL[k]}, v{YL[k]} row_ror:4 row_mask:0xf bank_mask:0xf")
        for k in range(5): self.ror(YY[k], 8)
        for sw in (16, 32):
            a("v_pk_mov_b32 v[52:53], v[44:45], v[44:45] op_sel:[0,1]\nv_pk_mov_b32 v[54:55], v[46:47], v[46:47] op_sel:[0,1]\nv_mov_b32 v56, v48")
            for k in range(5): a(f"v_permlane{sw}_swap_b32 v{52+k}, v{YY[k]}")
            a("v_pk_add_f32 v[44:45], v[44:45], v[52:53]\nv_pk_add_f32 v[46:47], v[46:47], v[54:55]\nv_add_f32 v48, v48, v56")
        for k in range(5): a(f"v_fma_f32 v{YY[k]}, v{YY[k]}, v{GA[k]}, v{XF[k]}")
        ZZ = list(range(70, 75))
        for k in range(5): a(f"v_mul_f32 v{ZZ[k]}, v{YY[k]}, v{TT[k]}")
        pack5(ZZ); gpass()
        a("v_add_f32 v76, v44, v45\nv_mul_f32 v77, v44, v44\nv_add_f32 v78, v46, v47\nv_fmac_f32 v77, v45, v45\nv_add_f32 v76, v76, v48\nv_fmac_f32 v77, v46, v46\nv_add_f32 v76, v76, v78\nv_fmac_f32 v77, v47, v47\nv_fmac_f32 v77, v48, v48")
        gred()
        a("ds_write_b64 v11, v[64:65]")
        a("v_cndmask_b32 v78, v77, v76, s[68:69]\nv_cndmask_b32 v76, v76, v77, s[68:69]")
        a("v_add_f32_dpp v76, v78, v76 quad_perm:[1,0,3,2] row_mask:0xf bank_mask:0xf")
        self.allred(76, 50, bits=(1,))
        a("ds_write_b32 v12, v76")
        a("ds_write_b128 v13, v[44:47]\nds_write_b32 v6, v48 offset:64")
        self.last_arriver(C_Z, "L_wend", 50)
        a("s_and_b32 exec_hi, exec_hi, 1")
        for q in range(4): a(f"ds_read_b128 v[{120+4*q}:{123+4*q}], v158 offset:{528*q}")
        a("s_waitcnt lgkmcnt(0)")
        self.sum4x4(120); self.tag(range(120, 124))
        a("buffer_store_dwordx4 v[120:123], v159, s[44:47], s88 offen sc1")
        self.stamp(30)
        a("s_cbranch_execz L_Gx2\ns_cmp_lg_u32 s93, 0\ns_cbranch_scc1 L_wend\nL_Gx2:")
        a(f"s_and_b32 exec_lo, exec_lo, 0xfffff\ns_mov_b32 exec_hi, 0\nv_add_u32 v158, {L_GX2}, v159\nds_read_b128 v[52:55], v158")
        a(f"s_mul_i32 s60, s92, 320\ns_add_u32 s60, s60, {WS_X2}\ns_waitcnt lgkmcnt(0)")
        self.tag(range(52, 56))
        a("buffer_store_dwordx4 v[52:55], v159, s[44:47], s60 offen sc1")
        a("s_branch L_wend")
        a("L_wend:")
        self.endwave()

        a("L_aux:")
        if o.prio: a(f"s_setprio {o.prio}")
        a("s_sub_u32 s8, s3, 4")
        a("v_lshlrev_b32 v6, 2, v0\ns_cmp_lg_u32 s8, 0\ns_cbranch_scc1 L_noinit")
        a(f"v_add_u32 v16, v14, v6\nv_mov_b32 v17, 0\nds_write_b32 v16, v17\nL_noinit:")
        CR = list(range(160, 165))
        WM = [[96 + 4*k + q for q in range(4)] for k in range(5)]
        XR = list(range(166, 171)); XP = 171
        WQ = list(range(136, 156))
        a("s_mul_i32 s67, s2, 205\ns_lshr_b32 s67, s67, 12\ns_mul_i32 s60, s67, 20\ns_sub_u32 s66, s2, s60")
        a("s_cmp_lt_u32 s2, 80\ns_cbranch_scc1 L_unit")
        a("s_sub_u32 s61, s2, 80\ns_mul_i32 s67, s61, 205\ns_lshr_b32 s67, s67, 13\ns_mul_i32 s60, s67, 40\ns_sub_u32 s66, s61, s60\ns_add_u32 s66, s66, 20")
        a("L_unit:")
        a("s_mul_i32 s68, s67, 160\ns_mul_i32 s60, s8, 40\ns_add_u32 s68, s68, s60")
        a("s_mul_i32 s69, s68, 7680\ns_lshl_b32 s60, s66, 7\ns_add_u32 s69, s69, s60\ns_lshl_b32 s68, s68, 1")
        a("v_lshrrev_b32 v3, 3, v0\nv_mul_u32_u24 v5, 7680, v3\nv_and_b32 v4, 7, v0\nv_lshl_add_u32 v5, v4, 4, v5\nv_lshlrev_b32 v3, 1, v3")
        a("s_mul_i32 s70, s7, 80\ns_mul_i32 s61, s8, 20\ns_add_u32 s70, s70, s61")
        a("s_lshl_b32 s71, s70, 13\ns_lshl_b32 s61, s6, 8\ns_add_u32 s71, s71, s61")
        a("s_waitcnt lgkmcnt(0)")
        self.stamp_init()
        self.stamp(44)
        a("s_load_dword s9, s[42:43], 0")
        self.srd(44, 42, 0x10000000)
        a("s_cmp_ge_u32 s2, 240\ns_cbranch_scc1 L_noprod")
        self.srd(52, 36, 4915200); self.srd(48, 34, 1280)
        for k in range(5):
            if not o.nofront: a(f"buffer_load_dwordx4 v[{WM[k][0]}:{WM[k][3]}], v5, s[52:55], s69 offen {WNT}")
            if k < 4: a("s_add_u32 s69, s69, 61440")
        for k in range(5): a(f"buffer_load_ushort v{CR[k]}, v3, s[48:51], s68 offen offset:{16*k}")
        a("L_noprod:")
        if o.codepf:
            a(f"s_cmp_lg_u32 s8, 1\ns_cbranch_scc1 L_ncp\ns_getpc_b64 s[78:79]\nL_cp:\ns_sub_u32 s78, s78, L_cp-{NAME}_kernel\ns_subb_u32 s79, s79, 0")
            a(f"s_mul_i32 s60, s5, {o.codepf}\nv_min_u32 v7, {o.codepf-1}, v0\nv_add_u32 v7, s60, v7\nv_lshlrev_b32 v7, 7, v7\nv_min_u32 v7, L_end-{NAME}_kernel, v7")
            a("global_load_dword v21, v7, s[78:79]\nL_ncp:")
        if o.b1early: a("s_barrier")
        self.srd(52, 22, 5242880); self.srd(48, 16, 1280)
        for k in range(20):
            if not o.nofront: a(f"buffer_load_dword v{WQ[k]}, v6, s[52:55], s71 offen {WNT}")
            if k < 19: a("s_addk_i32 s71, 0x2000")
        a("v_lshrrev_b32 v16, 4, v0\nv_and_b32 v17, 15, v0\nv_min_u32 v17, 9, v17")
        a("v_mul_u32_u24 v4, 20, v0\ns_lshl_b32 s61, s70, 1\nv_lshlrev_b32 v5, 2, v17")
        a(f"buffer_load_dwordx4 v[{XR[0]}:{XR[3]}], v4, s[48:51], 0 offen\nbuffer_load_dword v{XR[4]}, v4, s[48:51], 0 offen offset:16")
        a(f"buffer_load_dword v{XP}, v5, s[48:51], s61 offen")
        a("s_waitcnt lgkmcnt(0)")
        if not o.b1early: a("s_barrier")
        self.stamp(1)
        a(f"s_add_u32 s9, s9, {TAGADD}\ns_mov_b32 s98, 0xff\nv_mov_b32 v18, s9")
        for r in [2] + list(range(7, 14)) + [157, 158, 159]: a(f"v_mov_b32 v{r}, 0")
        a("s_mov_b32 s10, 0\ns_sub_u32 s11, s2, 160\ns_cmp_lt_u32 s11, 40\ns_cselect_b32 s10, 3, 0\ns_mov_b32 s95, 0\ns_mov_b32 s92, 0\ns_mov_b32 s93, 0\ns_mov_b32 s94, 0")
        a("L_roled:")
        if o.fdry:
            a("s_mov_b64 exec, 0\ns_branch L_front")
        a("L_fdry_ret:\ns_mov_b64 exec, -1")
        self.stamp(2)
        a("L_front:")
        a("s_cmp_ge_u32 s2, 240\ns_cbranch_scc1 L_ln1")
        self.waitvm(23)
        self.stamp(20)
        for k in range(5):
            x, e = CR[k], 44 + k
            a(f"v_lshlrev_b32 v{x}, 16, v{x}\nv_mul_f32 v{e}, 0xbfb8aa3b, v{x}\nv_exp_f32 v{e}, v{e}")
        for k in range(5): a(f"v_add_f32 v{44+k}, 1.0, v{44+k}\nv_rcp_f32 v{44+k}, v{44+k}")
        for k in range(5): a(f"v_mul_f32 v{44+k}, v{CR[k]}, v{44+k}")
        a("v_cvt_pk_bf16_f32 v36, v44, v45\nv_cvt_pk_bf16_f32 v37, v46, v47\nv_cvt_pk_bf16_f32 v38, v48, 0")
        ACC = list(range(48, 56))
        for k in ACC: a(f"v_mov_b32 v{k}, 0")
        Tf = [44, 45, 46, 47]
        for m in range(2):
            lo, hi, Tf = self.permpair(WM[2*m], WM[2*m+1], Tf)
            for k in range(4):
                a(f"v_dot2c_f32_bf16 v{ACC[2*k]}, v{lo[k]}, v{36+m}\nv_dot2c_f32_bf16 v{ACC[2*k+1]}, v{hi[k]}, v{36+m}")
        for k in range(4):
            a(f"v_and_b32 v{Tf[k]}, 0xffff, v{WM[4][k]}\nv_lshrrev_b32 v{WM[4][k]}, 16, v{WM[4][k]}")
            a(f"v_dot2c_f32_bf16 v{ACC[2*k]}, v{Tf[k]}, v38\nv_dot2c_f32_bf16 v{ACC[2*k+1]}, v{WM[4][k]}, v38")
        self.red8(ACC); self.ror(48, 8); self.ror(49, 8)
        a(f"s_lshl_b32 s60, s8, 8\ns_add_u32 s60, s60, {L_RED1}\nv_and_b32 v3, 7, v0\nv_lshlrev_b32 v2, 5, v3\nv_lshl_add_u32 v2, v16, 3, v2\nv_add_u32 v2, s60, v2")
        a("ds_write_b64 v2, v[48:49]")
        self.last_arriver(C_F1, "L_ln1", 44)
        a(f"v_lshlrev_b32 v3, 3, v0\nv_add_u32 v3, {L_RED1}, v3\nv_lshlrev_b32 v2, 4, v0\ns_mov_b64 s[14:15], exec\ns_mov_b32 exec_hi, 0")
        for q in range(4): a(f"ds_read_b64 v[{44+2*q}:{45+2*q}], v3 offset:{256*q}")
        a("s_mul_i32 s67, s2, 205\ns_lshr_b32 s67, s67, 12\ns_mul_i32 s60, s67, 20\ns_sub_u32 s66, s2, s60")
        a("s_cmp_lt_u32 s2, 80\ns_cbranch_scc1 L_unit2")
        a("s_sub_u32 s61, s2, 80\ns_mul_i32 s67, s61, 205\ns_lshr_b32 s67, s67, 13\ns_mul_i32 s60, s67, 40\ns_sub_u32 s66, s61, s60\ns_add_u32 s66, s66, 20")
        a("L_unit2:")
        a(f"s_mul_i32 s60, s67, 30720\ns_lshl_b32 s61, s66, 9\ns_add_u32 s60, s60, s61\ns_add_u32 s60, s60, {WS_G1}")
        a("s_waitcnt lgkmcnt(0)")
        a("v_pk_add_f32 v[44:45], v[44:45], v[46:47]\nv_pk_add_f32 v[48:49], v[48:49], v[50:51]\nv_pk_add_f32 v[44:45], v[44:45], v[48:49]")
        a("v_mov_b32 v46, v45\nv_mov_b32 v45, s9\nv_mov_b32 v47, s9\nv_mov_b32 v4, 0")
        if not o.nostore: a("buffer_store_dwordx4 v[44:47], v2, s[44:47], s60 offen sc1")
        a("s_mov_b64 exec, s[14:15]")
        self.stamp(3)
        a("L_ln1:")
        if o.fdry == 1: a("s_cbranch_execz L_fdry_ret")
        self.waitvm(2)
        self.stamp(21)
        a("s_nop 0")
        WQp = []; WQf = [64]
        for m in range(10):
            lo, hi, WQf = self.permpair([WQ[2*m]], [WQ[2*m+1]], WQf)
            WQp.append((lo[0], hi[0]))
        self.waitvm(0)
        X = list(range(48, 58))
        for m in range(5):
            self.lo(X[2*m], XR[m]); self.hi(X[2*m+1], XR[m])
        a(f"v_add_f32 v58, v{X[0]}, v{X[1]}")
        for k in range(2, 10): a(f"v_add_f32 v58, v58, v{X[k]}")
        self.allred(58, 59)
        a("v_mul_f32 v58, 0x3acccccd, v58")
        a("v_mov_b32 v60, 0")
        for k in range(10): a(f"v_sub_f32 v{X[k]}, v{X[k]}, v58\nv_fmac_f32 v60, v{X[k]}, v{X[k]}")
        self.allred(60, 59)
        a("v_mul_f32 v60, 0x3acccccd, v60")
        self.round2(58, 60, 59)
        a("v_add_f32 v60, 0x3727c5ac, v60")
        self.round2(60, 61, 59)
        a("v_sqrt_f32 v60, v60")
        self.round2(60, 61, 59)
        a("v_rcp_f32 v60, v60")
        self.lo(62, XP); self.hi(63, XP)
        a("v_sub_f32 v62, v62, v58\nv_sub_f32 v63, v63, v58")
        self.round2(62, 63, 59)
        a("v_mul_f32 v62, v62, v60\nv_mul_f32 v63, v63, v60")
        self.round2(62, 63, 59)
        a("s_mul_i32 s60, s7, 80\ns_mul_i32 s61, s8, 20\ns_add_u32 s60, s60, s61")
        a("v_mul_u32_u24 v2, 30720, v16\nv_lshl_add_u32 v2, v17, 4, v2")
        a(f"s_lshl_b32 s62, s60, 3\ns_add_u32 s62, s62, {WS_G1}\ns_add_u32 s63, s62, 5120")
        if o.pretouch:
            a(f"s_cmp_lg_u32 s8, 3\ns_cbranch_scc1 L_npt\ns_mul_i32 s60, s2, {21*128}\ns_add_u32 s60, s60, {WS_O}\nv_min_u32 v44, 20, v0\nv_lshlrev_b32 v44, 7, v44")
            a(f"buffer_load_dword v45, v44, s[44:47], s60 offen {o.ptf}\nL_npt:")
        if o.w1dry:
            a("s_mov_b64 exec, 0\ns_cmp_eq_u32 s8, 0\ns_cbranch_scc1 L_h1b\ns_cmp_eq_u32 s8, 1\ns_cbranch_scc1 L_h2b\ns_branch L_qk2")
            a("L_w1_ret:\ns_mov_b64 exec, -1")
            a("s_mul_i32 s60, s7, 80\ns_mul_i32 s61, s8, 20\ns_add_u32 s60, s60, s61")
            a(f"s_lshl_b32 s62, s60, 3\ns_add_u32 s62, s62, {WS_G1}\ns_add_u32 s63, s62, 5120")
            self.stamp(2)
        a("L_h1b:")
        self.spin_lds([C_T1], 46)
        self.stamp(22)
        def ld():
            a("buffer_load_dwordx4 v[44:47], v2, s[44:47], s62 offen sc1\nbuffer_load_dwordx4 v[48:51], v2, s[44:47], s63 offen sc1")
        def ck():
            a("v_xor_b32 v53, s9, v45\nv_xor_b32 v54, s9, v47\nv_xor_b32 v55, s9, v49\nv_xor_b32 v56, s9, v51")
            a("v_or3_b32 v53, v53, v54, v55\nv_or_b32 v53, v53, v56\nv_cmp_ne_u32 vcc, 0, v53")
        self.poll(ld, ck, o.fsleep, 32)
        self.stamp(4)
        for v in (44, 46, 48, 50): self.allred(v, 53, bits=(4, 5))
        self.round2(44, 46, 53); self.round2(48, 50, 53)
        a("v_add_f32 v48, 1.0, v48\nv_add_f32 v50, 1.0, v50")
        self.round2(48, 50, 53)
        a("v_mul_f32 v48, v62, v48\nv_mul_f32 v50, v63, v50")
        self.round2(48, 50, 53)
        a("v_add_f32 v48, v48, v44\nv_add_f32 v50, v50, v46\nv_cvt_pk_bf16_f32 v53, v48, v50")
        for m in range(10): a(f"v_readlane_b32 s{64+m}, v53, {m}")
        a("v_mov_b32 v44, 0\nv_mov_b32 v45, 0")
        for m in range(10):
            a(f"v_dot2c_f32_bf16 v44, s{64+m}, v{WQp[m][0]}\nv_dot2c_f32_bf16 v45, s{64+m}, v{WQp[m][1]}")
        a(f"s_lshl_b32 s60, s8, 9\ns_add_u32 s60, s60, {L_RED2}\nv_lshlrev_b32 v2, 3, v0\nv_add_u32 v2, s60, v2")
        a("ds_write_b64 v2, v[44:45]")
        self.last_arriver(C_F2, "L_h2", 46)
        a(f"v_lshlrev_b32 v2, 4, v0\nv_add_u32 v3, {L_RED2}, v2\ns_mov_b64 s[14:15], exec\ns_mov_b32 exec_hi, 0")
        for q in range(4): a(f"ds_read_b128 v[{44+4*q}:{47+4*q}], v3 offset:{512*q}")
        a(f"s_lshl_b32 s60, s6, 3\ns_add_u32 s60, s60, s7\ns_lshl_b32 s60, s60, 9\ns_add_u32 s60, s60, {WS_Q2}")
        a("s_waitcnt lgkmcnt(0)")
        self.sum4x4(44)
        self.tag(range(44, 48), rnd=True)
        if not o.nostore: a("buffer_store_dwordx4 v[44:47], v2, s[44:47], s60 offen sc1")
        a("s_mov_b64 exec, s[14:15]")
        self.stamp(5)
        a("L_h2:")
        if o.fdry == 2: a("s_cbranch_execz L_fdry_ret")
        if o.dry:
            if o.fdry == 3 or o.w1dry: a("s_cbranch_execz L_h2b")
            a("s_mov_b64 exec, 0")
            a("s_cmp_eq_u32 s8, 0\ns_cbranch_scc1 L_pv")
            a("s_cmp_eq_u32 s8, 1\ns_cbranch_scc1 L_D2")
            a("s_cmp_eq_u32 s8, 2\ns_cbranch_scc1 L_W2\ns_branch L_Gprep")
        a("L_dry_ret:\ns_mov_b64 exec, -1")
        self.stamp(24)
        a("L_h2b:")
        a("v_lshrrev_b32 v2, 3, v0\nv_lshlrev_b32 v2, 9, v2\nv_and_b32 v3, 7, v0\nv_lshl_add_u32 v2, v3, 4, v2")
        a(f"s_lshl_b32 s62, s6, 12\ns_lshl_b32 s60, s8, 7\ns_add_u32 s62, s62, s60\ns_add_u32 s62, s62, {WS_Q2}")
        a("s_cbranch_execz L_M\ns_cmp_lg_u32 s10, 3\ns_cbranch_scc1 L_Mend\ns_cmp_lg_u32 s8, 0\ns_cbranch_scc1 L_Mend\nL_M:")
        a("v_and_b32 v4, 15, v0\nv_mul_u32_u24 v5, 30720, v16\nv_lshl_add_u32 v5, v4, 5, v5\nv_lshlrev_b32 v4, 4, v4")
        a(f"s_lshl_b32 s63, s11, 9\ns_add_u32 s63, s63, {WS_G1 + 1280*8}\ns_lshl_b32 s64, s11, 8\ns_add_u32 s64, s64, {WS_MR}")
        def ld():
            a("buffer_load_dwordx4 v[44:47], v5, s[44:47], s63 offen sc1\nbuffer_load_dwordx4 v[48:51], v5, s[44:47], s63 offen offset:16 sc1")
        self.poll(ld, ck, o.fsleep)
        for v in (44, 46, 48, 50): self.allred(v, 53, bits=(4, 5))
        self.round2(44, 46, 53); self.round2(48, 50, 53)
        a("v_mov_b32 v45, v46\nv_mov_b32 v46, v48\nv_mov_b32 v47, v50")
        self.tag(range(44, 48))
        a("s_mov_b64 s[14:15], exec\ns_and_b32 exec_lo, exec_lo, 0xffff\ns_mov_b32 exec_hi, 0")
        if not o.nostore: a("buffer_store_dwordx4 v[44:47], v4, s[44:47], s64 offen sc1")
        a("s_mov_b64 exec, s[14:15]\nL_Mend:")
        self.spin_lds([C_T2], 44)
        self.stamp(23)
        if o.tickets:
            self.srd(48, 40, 256)
            a("s_cbranch_execz L_tk1\ns_cmp_lg_u32 s8, 0\ns_cbranch_scc1 L_tk1")
            a("s_and_b32 s63, s5, 3\ns_lshl_b32 s60, s63, 6\nv_mov_b32 v54, 1\nv_mov_b32 v55, 0\ns_mov_b64 s[14:15], exec\ns_and_b32 exec_lo, exec_lo, 1\ns_mov_b32 exec_hi, 0")
            a("buffer_atomic_add v54, v55, s[48:51], s60 offen sc0\ns_mov_b64 exec, s[14:15]\nL_tk1:")
        a("buffer_load_dwordx4 v[48:51], v2, s[44:47], s62 offen sc1")
        a("v_and_b32 v17, 15, v0")
        a(f"v_xor_b32 v4, v16, v17\nv_lshlrev_b32 v4, 4, v4\nv_lshl_add_u32 v4, v17, 8, v4\ns_lshl_b32 s60, s8, 15\nv_add_u32 v4, s60, v4")
        a("v_xor_b32 v5, 64, v4\nv_xor_b32 v6, 0x80, v4\nv_xor_b32 v7, 0xc0, v4")
        self.spin_lds([C_K], 44)
        for t in range(8):
            for s in range(4): a(f"ds_read_b128 v[{96+16*t+4*s}:{99+16*t+4*s}], v{4+s} offset:{4096*t}")
        self.poll(lambda: a("buffer_load_dwordx4 v[48:51], v2, s[44:47], s62 offen sc1"), lambda: self.chk_tag(range(48, 52), 52), o.fsleep, 33, preloaded=True)
        self.stamp(6)
        if o.tickets:
            a("s_cmp_lg_u32 s8, 0\ns_cbranch_scc1 L_tk2")
            a(f"s_mov_b64 s[14:15], exec\ns_and_b32 exec_lo, exec_lo, 1\ns_mov_b32 exec_hi, 0\nv_lshlrev_b32 v54, 2, v54\nv_add_u32 v54, s63, v54\nv_add_u32 v54, 1, v54\nds_write_b32 v14, v54 offset:{C_TKT}\ns_mov_b64 exec, s[14:15]\nL_tk2:")
        self.red4([48, 49, 50, 51]); self.ror(48, 8)
        a(f"s_lshl_b32 s60, s8, 6\ns_add_u32 s60, s60, {L_QBUF}\nv_lshlrev_b32 v3, 3, v3\nv_lshl_add_u32 v3, v16, 1, v3\nv_add_u32 v3, s60, v3")
        a("v_cvt_pk_bf16_f32 v48, v48, v48\nds_write_b16 v3, v48")
        self.cnt_add(C_Q)
        a("L_qk2:")
        a(f"v_lshlrev_b32 v6, 4, v16\nv_add_u32 v6, {L_QBUF}, v6")
        self.spin_lds([C_Q], 44)
        self.stamp(7)
        QF = 20
        for s in range(4): a(f"ds_read_b128 v[{QF+4*s}:{QF+4*s+3}], v6 offset:{64*s}")
        a("s_waitcnt lgkmcnt(0)")
        S = [36, 37]
        for s in range(4):
            for t in range(8):
                d = 224 + 4*t
                c = "0" if s == 0 else f"v[{d}:{d+3}]"
                a(f"v_mfma_f32_16x16x32_bf16 v[{d}:{d+3}], v[{QF+4*s}:{QF+4*s+3}], v[{96+16*t+4*s}:{99+16*t+4*s}], {c}")
        for t in range(8): a(f"v_mov_b32_dpp v{S[t//4]}, v{224+4*t} quad_perm:[0,1,2,3] row_mask:{hex(1<<(t%4))} bank_mask:0xf")
        self.round2(36, 37, 38)
        a("v_mul_f32 v36, 0x3db504f3, v36\nv_mul_f32 v37, 0x3db504f3, v37")
        self.round2(36, 37, 38)
        a("v_max_f32 v39, v36, v37")
        self.allred(39, 38, op="max")
        a(f"s_lshl_b32 s60, s8, 2\ns_add_u32 s60, s60, {L_MAXB}\nv_mov_b32 v2, s60\nv_mov_b32 v3, {L_MAXB}\nds_write_b32 v2, v39")
        self.cnt_add(C_MAX)
        self.spin_lds([C_MAX], 44)
        a("ds_read_b128 v[44:47], v3")
        a(f"s_lshl_b32 s60, s8, 4\ns_add_u32 s60, s60, {L_PBUF}\nv_lshlrev_b32 v2, 6, v17\nv_lshl_add_u32 v2, v16, 1, v2\nv_add_u32 v2, s60, v2")
        a("s_waitcnt lgkmcnt(0)")
        a("v_max3_f32 v44, v44, v45, v46\nv_max_f32 v40, v44, v47")
        a(f"v_sub_f32 v36, v36, v40\nv_sub_f32 v37, v37, v40\nv_mul_f32 v36, {hex(LOG2E)}, v36\nv_mul_f32 v37, {hex(LOG2E)}, v37\nv_exp_f32 v36, v36\nv_exp_f32 v37, v37")
        a("v_cvt_pk_bf16_f32 v38, v36, v37\nds_write_b16 v2, v38\nds_write_b16_d16_hi v2, v38 offset:8")
        self.lo(36, 38); self.hi(37, 38)
        a("v_add_f32 v41, v36, v37")
        self.allred(41, 38)
        a(f"s_lshl_b32 s60, s8, 2\ns_add_u32 s60, s60, {L_LSUM}\nv_mov_b32 v2, s60\nv_mov_b32 v3, {L_LSUM}\nds_write_b32 v2, v41\nds_write_b32 v3, v40 offset:16")
        self.cnt_add(C_P)
        self.stamp(8)
        if o.fdry == 3: a("s_cbranch_execz L_fdry_ret")
        if o.w1dry: a("s_cbranch_execz L_w1_ret")
        self.get_ticket()
        a("s_sub_u32 s11, s94, 202\ns_cmp_ge_u32 s94, 202\ns_cbranch_scc1 L_D0\ns_cmp_lt_u32 s94, 160\ns_cbranch_scc1 L_W0")
        if o.td:
            a("s_cmp_lg_u32 s8, 0\ns_cbranch_scc1 L_wend")
            self.spin_lds([C_GL], 44)
            self.tdetect()
        a("s_branch L_wend\nL_W0:")
        self.spin_lds([C_T3], 44)
        a(f"s_cmp_ge_u32 s94, {o.wlate}\ns_cbranch_scc1 L_W1")
        self.spin_lds([C_O], 44)
        a("L_W1:")
        self.srd(48, 24, 5242880)
        wids()
        a("v_lshrrev_b32 v2, 3, v0\nv_mul_u32_u24 v2, 10240, v2\nv_and_b32 v3, 7, v0\nv_lshl_add_u32 v2, v3, 4, v2")
        a("s_lshl_b32 s60, s66, 1\ns_add_u32 s60, s60, s67\ns_mul_i32 s60, s60, 81920\ns_lshl_b32 s61, s65, 7\ns_add_u32 s60, s60, s61\ns_add_u32 s61, s60, 5120")
        for i in range(8): a(f"buffer_load_dwordx4 v[{WW[i][0]}:{WW[i][3]}], v2, s[48:51], s{60 + i//4} offen offset:{1280*(i%4)} {LNT}")
        a("L_W2:")
        wids()
        a("v_and_b32 v3, 7, v0\nv_lshrrev_b32 v4, 3, v0\nv_lshlrev_b32 v2, 4, v4")
        a(f"s_lshl_b32 s60, s8, 7\ns_add_u32 s60, s60, {L_OH}\nv_add_u32 v9, s60, v2")
        a("v_lshrrev_b32 v8, 5, v0\nv_lshlrev_b32 v8, 6, v8\nv_lshl_add_u32 v8, v3, 3, v8\nv_and_b32 v1, 1, v16\nv_lshl_add_u32 v8, v1, 2, v8\nv_add_u32 v8, s60, v8")
        a(f"v_lshlrev_b32 v4, 9, v4\nv_lshl_add_u32 v4, v3, 4, v4")
        a(f"s_lshl_b32 s60, s8, 8\ns_add_u32 s60, s60, {L_REDW}\nv_lshlrev_b32 v5, 5, v3\nv_lshl_add_u32 v5, v16, 3, v5\nv_add_u32 v5, s60, v5")
        a(f"v_lshlrev_b32 v6, 4, v0\nv_add_u32 v7, {L_REDW}, v6")
        a(f"s_lshl_b32 s86, s66, 7\ns_add_u32 s86, s86, {WS_ML}\ns_lshl_b32 s84, s66, 12\ns_lshl_b32 s60, s67, 8\ns_add_u32 s84, s84, s60\ns_add_u32 s84, s84, {WS_O}")
        a(f"s_mul_i32 s85, s64, 2560\ns_lshl_b32 s60, s65, 8\ns_add_u32 s85, s85, s60\ns_add_u32 s85, s85, {WS_Y}")
        self.waitvm(0)
        Tf = [128, 129, 130, 131]; Wp = []
        for m in range(4):
            lo, hi, Tf = self.permpair(WW[2*m], WW[2*m+1], Tf); Wp.append((lo, hi))
        self.stamp(9)
        self.spin_lds([C_GL if o.atrig else C_O], 44)
        self.tdetect()
        if o.sml:
            a("s_cbranch_execz L_smo\ns_add_u32 s80, s42, s86\ns_addc_u32 s81, s43, 0\ns_mov_b32 s61, 0\nL_sm:")
            a("s_load_dwordx16 s[64:79], s[80:81], 0 glc\ns_load_dwordx8 s[48:55], s[80:81], 64 glc\ns_load_dword s56, s[80:81], 96 glc\ns_load_dword s57, s[80:81], 112 glc\ns_waitcnt lgkmcnt(0)")
            regs = [64, 68, 72, 76, 48, 52, 56, 57]
            a("s_xor_b32 s60, s64, s9")
            for r in regs[1:]: a(f"s_xor_b32 s{r}, s{r}, s9\ns_or_b32 s60, s60, s{r}")
            a(f"s_and_b32 s60, s60, 0xff\ns_cbranch_scc0 L_smo\ns_sleep {o.sml}\ns_add_u32 s61, s61, 1\ns_cmp_lt_u32 s61, 0x8000\ns_cbranch_scc1 L_sm\nL_smo:")
        self.stamp(38)
        a("L_Wtail:")
        def ld():
            a("buffer_load_dwordx4 v[52:55], v2, s[44:47], s86 offen sc1")
            a("buffer_load_dwordx4 v[44:47], v4, s[44:47], s84 offen sc1\nbuffer_load_dwordx4 v[48:51], v4, s[44:47], s84 offen offset:128 sc1")
        if o.gtrig == 1:
            a("s_cbranch_execz L_wl1")
            ld()
            a("L_wl1:")
            self.cnt_add(C_WL)
            self.poll(ld, lambda: self.chk_tag(list(range(44, 56)), 60), o.bo_a, 34, rl=40, preloaded=True)
        else:
            self.ppoll(ld, lambda: self.chk_tag(list(range(44, 56)), 60), 3, o.bo_a, 34, rl=40, pipe=o.pipea)
        self.cnt_add(C_A)
        self.stamp(11)
        a("v_and_b32 v62, 0xffff0000, v52")
        a("v_max_f32_dpp v63, v62, v62 row_ror:8 row_mask:0xf bank_mask:0xf")
        self.allred(63, 60, op="max", bits=(4, 5))
        a(f"v_sub_f32 v62, v62, v63\nv_mul_f32 v62, {hex(LOG2E)}, v62\nv_exp_f32 v56, v62\nv_mul_f32 v63, v53, v56")
        for k in range(0, 8, 2): a(f"v_pk_mul_f32 v[{64+k}:{65+k}], v[{44+k}:{45+k}], v[56:57] op_sel_hi:[1,0]")
        for k in range(4): a(f"v_permlane32_swap_b32 v{64+k}, v{68+k}")
        a("v_pk_add_f32 v[64:65], v[64:65], v[68:69]\nv_pk_add_f32 v[66:67], v[66:67], v[70:71]")
        self.ror(63, 8)
        a("v_permlane16_swap_b32 v64, v66\nv_permlane16_swap_b32 v65, v67\nv_pk_add_f32 v[64:65], v[64:65], v[66:67]")
        self.ror(64, 8); self.ror(65, 8)
        a("v_cvt_pk_bf16_f32 v66, v64, v65\nds_write_b32 v8, v66\nds_read_b128 v[72:75], v9")
        self.allred(63, 60, bits=(4, 5))
        a("v_rcp_f32 v56, v63\ns_waitcnt lgkmcnt(0)")
        ACC = list(range(24, 32))
        for m in range(4):
            lo, hi = Wp[m]
            for k in range(4):
                if m == 0: a(f"v_dot2_f32_bf16 v{ACC[2*k]}, v{lo[k]}, v{72+m}, 0\nv_dot2_f32_bf16 v{ACC[2*k+1]}, v{hi[k]}, v{72+m}, 0")
                else: a(f"v_dot2c_f32_bf16 v{ACC[2*k]}, v{lo[k]}, v{72+m}\nv_dot2c_f32_bf16 v{ACC[2*k+1]}, v{hi[k]}, v{72+m}")
        self.red8(ACC)
        self.ror(24, 8); self.ror(25, 8)
        a("v_pk_mul_f32 v[24:25], v[24:25], v[56:57] op_sel_hi:[1,0]")
        a("ds_write_b64 v5, v[24:25]")
        self.last_arriver(C_W, "L_Wfin", 60)
        a("s_mov_b64 s[76:77], exec\ns_and_b32 exec_lo, exec_lo, 0xffff\ns_mov_b32 exec_hi, 0")
        for q in range(4): a(f"ds_read_b128 v[{76+4*q}:{79+4*q}], v7 offset:{256*q}")
        a("s_waitcnt lgkmcnt(0)")
        self.sum4x4(76)
        self.tag(range(76, 80))
        a("buffer_store_dwordx4 v[76:79], v6, s[44:47], s85 offen sc1\ns_mov_b64 exec, s[76:77]")
        self.stamp(12)
        if o.yack:
            self.waitvm(0); self.cnt_add(C_YA); self.stamp(31)
        a("L_Wfin:")
        a("s_cbranch_execz L_final\ns_cmp_lg_u32 s8, 0\ns_cbranch_scc1 L_wend\ns_cmp_lt_u32 s94, 40\ns_cbranch_scc1 L_final\ns_branch L_wend")
        a("L_D0:")
        self.spin_lds([C_O], 44)
        DW = [[96 + 2*n + q for q in range(2)] for n in range(32)]
        a("L_D1:")
        self.srd(48, 32, 2211840)
        def dids():
            a("s_mul_i32 s64, s8, 192\ns_cmp_eq_u32 s8, 3\ns_cselect_b32 s64, 512, s64\ns_cmp_ge_u32 s8, 2\ns_cselect_b32 s65, 31, 47")
        dids()
        a("v_min_u32 v4, s65, v0\nv_lshlrev_b32 v2, 3, v4\ns_lshl_b32 s60, s64, 1\ns_mul_i32 s61, s11, 40960\ns_add_u32 s61, s61, s60")
        for n in range(32):
            a(f"buffer_load_dwordx2 v[{DW[n][0]}:{DW[n][1]}], v2, s[48:51], s61 offen offset:{1280*(n%4)} {LNT}")
            if n % 4 == 3 and n < 31: a("s_addk_i32 s61, 5120")
        a("L_D2:")
        dids()
        a("v_min_u32 v4, s65, v0\nv_lshlrev_b32 v4, 4, v4")
        a(f"s_mul_i32 s70, s11, 2560\ns_lshl_b32 s60, s64, 2\ns_add_u32 s70, s70, s60\ns_add_u32 s70, s70, {WS_OP}")
        a("v_lshrrev_b32 v5, 3, v0\nv_and_b32 v6, 7, v0\nv_lshlrev_b32 v6, 4, v6")
        a("v_mul_u32_u24 v7, 17280, v5\nv_add_u32 v8, v7, v6\nv_mul_u32_u24 v9, 27648, v5\nv_add_u32 v9, v9, v6")
        a("s_lshr_b32 s60, s11, 1\ns_and_b32 s61, s11, 1\ns_lshl_b32 s61, s61, 7")
        a(f"s_mul_i32 s66, s60, 640\ns_add_u32 s66, s66, {WS_Z}\ns_add_u32 s67, s66, s61\ns_lshl_b32 s68, s60, 10\ns_add_u32 s68, s68, s61\ns_add_u32 s68, s68, {WS_U}")
        self.waitvm(0)
        Tf = [160, 161]; Dp = []
        for m in range(16):
            lo, hi, Tf = self.permpair(DW[2*m], DW[2*m+1], Tf); Dp.append((lo, hi))
        self.stamp(9)
        def ld():
            for q in range(4): a(f"buffer_load_dwordx4 v[{44+4*q}:{47+4*q}], v9, s[44:47], s68 offen offset:{256*q} sc1")
        self.poll(ld, lambda: self.chk_tag(range(44, 60), 64), o.usleep, 37)
        def R(b):
            for k in range(4): a(f"v_permlane32_swap_b32 v{b+k}, v{b+4+k}")
            a(f"v_pk_add_f32 v[{b}:{b+1}], v[{b}:{b+1}], v[{b+4}:{b+5}]\nv_pk_add_f32 v[{b+2}:{b+3}], v[{b+2}:{b+3}], v[{b+6}:{b+7}]")
            a(f"v_permlane16_swap_b32 v{b}, v{b+2}\nv_permlane16_swap_b32 v{b+1}, v{b+3}\nv_pk_add_f32 v[{b}:{b+1}], v[{b}:{b+1}], v[{b+2}:{b+3}]")
            self.ror(b, 8); self.ror(b + 1, 8)
        R(44); R(52)
        a("v_mov_b32 v20, v44\nv_mov_b32 v21, v45\nv_mov_b32 v22, v52\nv_mov_b32 v23, v53")
        a("v_mov_b32 v26, 0x3d372713\ns_cmp_ge_u32 s8, 2\ns_cselect_b32 s71, 0, 0xffff")
        self.stamp(10)
        self.tdetect()
        def ld0(): a("buffer_load_dwordx4 v[72:75], v7, s[44:47], s66 offen offset:512 sc1")
        def ld():
            ld0()
            a("buffer_load_dwordx4 v[64:67], v8, s[44:47], s67 offen sc1\nbuffer_load_dwordx4 v[68:71], v8, s[44:47], s67 offen offset:256 sc1")
        self.prewait(ld0, lambda: self.chk_tag(range(72, 76), 60), 0x01010101, 0x01010101, o.prez)
        self.ppoll(ld, lambda: self.chk_tag(range(64, 76), 60), 3, o.bo_z, 38, rl=40, pipe=o.pipez)
        self.stamp(11)
        for k in range(0, 10, 2): a(f"v_pk_mov_b32 v[{44+k}:{45+k}], v[{64+k}:{65+k}], v[{64+k}:{65+k}] op_sel:[0,1]")
        a("v_permlane32_swap_b32 v52, v53")
        for k in range(4): a(f"v_permlane32_swap_b32 v{44+k}, v{48+k}")
        a("v_add_f32 v52, v52, v53\nv_pk_add_f32 v[44:45], v[44:45], v[48:49]\nv_pk_add_f32 v[46:47], v[46:47], v[50:51]\nv_mov_b32 v53, v52")
        a("v_permlane16_swap_b32 v44, v46\nv_permlane16_swap_b32 v45, v47\nv_permlane16_swap_b32 v52, v53")
        a("v_pk_add_f32 v[44:45], v[44:45], v[46:47]\nv_add_f32 v52, v52, v53")
        self.ror(52, 8); self.ror(44, 8); self.ror(45, 8)
        a("v_mul_f32 v52, 0x3acccccd, v52")
        a("v_readlane_b32 s60, v52, 0\nv_readlane_b32 s61, v52, 32")
        a("v_mov_b32 v54, s60\nv_mov_b32 v55, s61\nv_fma_f32 v55, -v54, v54, v55\nv_add_f32 v55, 0x3727c5ac, v55\nv_rsq_f32 v56, v55")
        a("v_fma_f32 v44, -v54, v20, v44\nv_fma_f32 v45, -v54, v21, v45\nv_fma_f32 v44, v56, v44, v22\nv_fma_f32 v45, v56, v45, v23")
        a("v_mov_b32 v46, v44\nv_mov_b32 v47, v45\nv_permlane32_swap_b32 v44, v46\nv_permlane32_swap_b32 v45, v47")
        a("v_mul_f32 v48, v44, v44\nv_mul_f32 v49, v45, v45\nv_fma_f32 v48, v48, v26, 1.0\nv_fma_f32 v49, v49, v26, 1.0\nv_mul_f32 v48, v48, v44\nv_mul_f32 v49, v49, v45")
        a("v_mul_f32 v48, 0xc0135761, v48\nv_mul_f32 v49, 0xc0135761, v49\nv_exp_f32 v48, v48\nv_exp_f32 v49, v49\nv_mul_f32 v44, v44, v46\nv_mul_f32 v45, v45, v47")
        a("v_add_f32 v48, 1.0, v48\nv_add_f32 v49, 1.0, v49\nv_rcp_f32 v48, v48\nv_rcp_f32 v49, v49\nv_mul_f32 v44, v44, v48\nv_mul_f32 v45, v45, v49\nv_cvt_pk_bf16_f32 v44, v44, v45")
        for m in range(16): a(f"v_readlane_b32 s{72+m}, v44, {16*(m&1) + (m>>1)}")
        for m in range(16):
            lo, hi = Dp[m]
            for k in range(2):
                if m == 0: a(f"v_dot2_f32_bf16 v{48+2*k}, s{72+m}, v{lo[k]}, 0\nv_dot2_f32_bf16 v{49+2*k}, s{72+m}, v{hi[k]}, 0")
                else: a(f"v_dot2c_f32_bf16 v{48+2*k}, s{72+m}, v{lo[k]}\nv_dot2c_f32_bf16 v{49+2*k}, s{72+m}, v{hi[k]}")
        a("s_and_b32 exec_hi, exec_hi, s71")
        self.tag(range(48, 52))
        a("buffer_store_dwordx4 v[48:51], v4, s[44:47], s70 offen sc1")
        self.stamp(13)
        a("s_branch L_wend")
        a("L_final:")
        self.srd(52, 38, 1280)
        a("v_and_b32 v10, 3, v0\nv_lshlrev_b32 v10, 4, v10\ns_min_u32 s60, s94, 39\ns_lshl_b32 s69, s60, 6")
        a("v_lshrrev_b32 v2, 2, v0\nv_mul_u32_u24 v2, 2560, v2\nv_add_u32 v2, v2, v10\nv_lshrrev_b32 v3, 1, v10\nv_lshl_add_u32 v3, v16, 1, v3")
        a(f"s_add_u32 s62, s69, {WS_OP}\ns_add_u32 s63, s62, 40960\ns_add_u32 s64, s62, 81920\ns_add_u32 s65, s62, 122880\ns_add_u32 s66, s69, {WS_X2}\ns_lshr_b32 s67, s69, 1\ns_add_u32 s68, s69, {WS_MR + 7680}")
        self.spin_lds([C_Z], 44)
        def ld():
            a("buffer_load_dwordx4 v[60:63], v10, s[44:47], s66 offen sc1\nbuffer_load_dwordx4 v[64:67], v10, s[44:47], s68 offen sc1")
        self.poll(ld, lambda: self.chk_tag(range(60, 68), 68), o.xsleep)
        for g in range(4): a(f"v_mov_b32_dpp v24, v{64+g} quad_perm:[0,1,2,3] row_mask:{hex(1<<g)} bank_mask:0xf\nv_mov_b32_dpp v25, v{60+g} quad_perm:[0,1,2,3] row_mask:{hex(1<<g)} bank_mask:0xf")
        self.hi(24, 24)
        self.stamp(26)
        def ld():
            for u in range(3): a(f"buffer_load_dwordx4 v[{44+4*u}:{47+4*u}], v2, s[44:47], s{62+u} offen sc1")
            a("s_mov_b64 s[76:77], exec\ns_and_b32 exec_lo, exec_lo, 0xffffff\ns_mov_b32 exec_hi, 0")
            a("buffer_load_dwordx4 v[56:59], v2, s[44:47], s65 offen sc1\ns_mov_b64 exec, s[76:77]")
        for k in range(56, 60): a(f"v_and_b32 v{k}, s98, v18")
        self.prewait(lambda: a("buffer_load_dwordx4 v[44:47], v2, s[44:47], s62 offen sc1"), lambda: self.chk_tag(range(44, 48), 68), 0x00010001, 0x00010001, o.prec)
        self.ppoll(ld, lambda: self.chk_tag(range(44, 60), 68), 4, o.bo_c, 36, rl=52, pipe=o.pipec)
        self.stamp(14)
        a("v_pk_add_f32 v[60:61], v[44:45], v[48:49]\nv_pk_add_f32 v[62:63], v[46:47], v[50:51]\nv_pk_add_f32 v[64:65], v[52:53], v[56:57]\nv_pk_add_f32 v[66:67], v[54:55], v[58:59]")
        a("v_pk_add_f32 v[60:61], v[60:61], v[64:65]\nv_pk_add_f32 v[62:63], v[62:63], v[66:67]")
        self.red4([60, 61, 62, 63]); self.ror(60, 4); self.ror(60, 8)
        a("v_fma_f32 v60, v60, v24, v25\nv_cvt_pk_bf16_f32 v60, v60, v60")
        a("s_and_b32 exec_lo, exec_lo, 0x000f000f\ns_and_b32 exec_hi, exec_hi, 0x000f000f")
        a("buffer_store_short v60, v3, s[52:55], s67 offen")
        a("s_cbranch_execz L_dry_ret")
        a("s_cmp_lg_u32 s94, 0\ns_cbranch_scc1 L_fin2")
        a("s_mov_b64 exec, 1\nv_mov_b32 v6, 0\nbuffer_store_dword v18, v6, s[44:47], 0 offen sc1")
        a("L_fin2:")
        self.stamp(15)
        a("s_branch L_wend")
        a("L_end:\ns_endpgm")
        a(footer(256, 100, 256))
        if o.skipvm:
            L = []
            for i, line in enumerate(a.L):
                if "buffer_store" in line and "v19" not in line and "v18" not in line:
                    L += [f"    s_cbranch_execz L_sks{i}", line, f"L_sks{i}:"]
                else: L.append(line)
            a.L = L
        return a.text()

if __name__ == "__main__":
    ap = argparse.ArgumentParser()
    ap.add_argument("-o", default="k.s")
    for k, v in dict(depth=6, depth2=0, d2pos=12, d0=2, stamps=0, dry=1, fdry=0, prio=3, sprio=3, masked=1, swait=0, fsleep=8, msleep=4, tsleep=0, usleep=6,
                     nopoll=0, b1early=1, nofront=0, nostore=0, norole=0, nohopld=0, t1=18, t2=36, t3=64, tickets=1, wlate=0, gearly=160,
                     pipe=0, pgap=1, xsleep=4, preb=4, prez=4, prec=4, asleep=1, hx=0, ackst=0, td=0, tdrep=16, tdsleep=1, yack=1, pretouch=0, dynord=0, w1dry=0, codepf=0, cons=0, skipvm=1, sml=0, atgt=4, gtrig=1, gprio=-1, early=0, atrig=1).items():
        ap.add_argument("--" + k, type=int, default=v)
    for k in ("nt", "wnt", "lnt"): ap.add_argument("--" + k, default="nt")
    ap.add_argument("--ptf", default="")
    for k in ("pipea", "pipeb", "pipez", "pipec"): ap.add_argument("--" + k, type=int, default=None)
    for k in ("bo_a", "bo_b", "bo_z", "bo_c"): ap.add_argument("--" + k, default="0")
    o = ap.parse_args()
    for k in ("bo_a", "bo_b", "bo_z", "bo_c"):
        v = [int(x) for x in getattr(o, k).split(",")]; setattr(o, k, v[0] if len(v) == 1 else tuple(v))
    for k in ("nt", "wnt", "lnt"):
        if getattr(o, k) == "pl": setattr(o, k, "")
    g = G(o); t = g.build()
    open(o.o, "w").write(t)
    print("nops inserted:", g.a.nops, "lines:", len(t.splitlines()))
```

```python
import sys, argparse
from asmlib import *

WS_EPOCH = 0x0
WS_CNT   = 0x1000
WS_MR    = 0x10000
WS_Q2    = 0x20000
WS_O     = 0x40000
WS_ML    = 0x60000
WS_X2    = 0x61000
WS_Y     = 0x62000
WS_OP    = 0x6C000
WS_Z     = 0x8E000
WS_U     = 0xB0000
WS_G1    = 0x100000
WS_STAMP = 0x200000
L_FLAG = 0x20000
C_F1, C_F2, C_Q, C_K, C_P, C_MAX, C_T1, C_T2, C_T3, C_O, C_W, C_U, C_Z, C_TKT, C_TD, C_YA, C_A, C_WL, C_GL, C_PAR, C_GI = [4*i for i in range(21)]
L_RED1 = 0x20100
L_RED2 = 0x20800
L_QBUF = 0x21000
L_MAXB = 0x21100
L_LSUM = 0x21110
L_PBUF = 0x21200
L_REDO = 0x21800
L_REDW = 0x22000
L_OH   = 0x22400
L_H    = 0x22800
L_STAT = 0x22D00
L_GZ   = 0x22E00
L_X2   = 0x23200
L_PAR  = 0x0
LDS_BYTES = 0x24000
LOG2E = 0x3fb8aa3b
TAGADD = 0x61C88647

class G:
    def __init__(self, opt):
        self.o = opt
        self.a = Asm()
        self.n = 0
    def lab(self, p="L"):
        self.n += 1
        return f"{p}_{self.n}"
    def stamp(self, k):
        if not self.o.stamps: return
        a = self.a; sk = self.lab("st")
        a(f"s_cbranch_execz {sk}\ns_memrealtime s[96:97]\ns_waitcnt lgkmcnt(0)\nv_writelane_b32 v19, s96, {k}\n{sk}:")
    def note(self, k, sreg):
        if not self.o.stamps: return
        a = self.a; sk = self.lab("st")
        a(f"s_cbranch_execz {sk}\nv_writelane_b32 v19, {sreg}, {k}\n{sk}:")
    def stamp_init(self):
        if not self.o.stamps: return
        self.a("v_mov_b32 v19, 0\nv_writelane_b32 v19, s96, 0")
    def dump_stamps(self):
        if not self.o.stamps: return
        a = self.a
        a("s_mov_b64 exec, -1")
        a("s_lshl_b32 s60, s2, 3\ns_add_u32 s60, s60, s3\ns_lshl_b32 s60, s60, 8")
        a(f"s_add_u32 s60, s60, {WS_STAMP}\nv_lshlrev_b32 v1, 2, v0")
        if self.o.stamps == 2:
            self.srd(48, 40, 256)
            a("v_not_b32 v2, v19\nv_cmp_eq_u32 vcc, 0, v0\nv_cndmask_b32 v19, v19, v2, vcc")
            a("s_cmp_ge_u32 s3, 4\ns_cselect_b32 s60, 64, 0\ns_mov_b32 exec_lo, 0xffff\ns_mov_b32 exec_hi, 0")
            a("buffer_atomic_umax v19, v1, s[48:51], s60 offen")
        else:
            a(f"buffer_store_dword v19, v1, s[44:47], s60 offen")
    def waitvm(self, n):
        a = self.a; sk = self.lab("wv")
        a(f"s_cbranch_execz {sk}\ns_waitcnt vmcnt({n})\n{sk}:")
    def barrier(self):
        a = self.a; sk = self.lab("bar")
        a(f"s_cbranch_execz {sk}\ns_barrier\n{sk}:")
    def srd(self, q, ptr, size, off=0):
        a = self.a
        if off: a(f"s_add_u32 s{q}, s{ptr}, {off}\ns_addc_u32 s{q+1}, s{ptr+1}, 0")
        else: a(f"s_mov_b32 s{q}, s{ptr}\ns_mov_b32 s{q+1}, s{ptr+1}")
        a(f"s_mov_b32 s{q+2}, {size}\ns_mov_b32 s{q+3}, 0x20000")
    def lo(self, d, s): self.a(f"v_lshlrev_b32 v{d}, 16, v{s}")
    def hi(self, d, s): self.a(f"v_and_b32 v{d}, 0xffff0000, v{s}")
    def round2(self, x, y, t):
        self.a(f"v_cvt_pk_bf16_f32 v{t}, v{x}, v{y}"); self.lo(x, t); self.hi(y, t)
    def allred(self, v, t, op="add", bits=(0, 1, 2, 3, 4, 5)):
        a = self.a
        d = {0: "quad_perm:[1,0,3,2]", 1: "quad_perm:[2,3,0,1]", 2: "row_half_mirror", 3: "row_mirror"}
        for b in bits:
            if b < 4: a(f"v_{op}_f32_dpp v{v}, v{v}, v{v} {d[b]} row_mask:0xf bank_mask:0xf")
            else:
                a(f"v_mov_b32 v{t}, v{v}\nv_permlane{16 if b == 4 else 32}_swap_b32 v{t}, v{v}\nv_{op}_f32 v{v}, v{v}, v{t}")
    def ror(self, v, n): self.a(f"v_add_f32_dpp v{v}, v{v}, v{v} row_ror:{n} row_mask:0xf bank_mask:0xf")
    def red8(self, acc):
        a = self.a
        for k in range(4): a(f"v_permlane32_swap_b32 v{acc[k]}, v{acc[k+4]}")
        for k in range(4): a(f"v_add_f32 v{acc[k]}, v{acc[k]}, v{acc[k+4]}")
        for k in range(2): a(f"v_permlane16_swap_b32 v{acc[k]}, v{acc[k+2]}")
        for k in range(2): a(f"v_add_f32 v{acc[k]}, v{acc[k]}, v{acc[k+2]}")
    def red4(self, v):
        a = self.a
        a(f"v_permlane32_swap_b32 v{v[0]}, v{v[2]}\nv_permlane32_swap_b32 v{v[1]}, v{v[3]}")
        a(f"v_add_f32 v{v[0]}, v{v[0]}, v{v[2]}\nv_add_f32 v{v[1]}, v{v[1]}, v{v[3]}")
        a(f"v_permlane16_swap_b32 v{v[0]}, v{v[1]}\nv_add_f32 v{v[0]}, v{v[0]}, v{v[1]}")
    def permpair(self, A, B, T):
        a = self.a
        for k in range(len(A)):
            a(f"v_perm_b32 v{T[k]}, v{B[k]}, v{A[k]}, s12")
            a(f"v_perm_b32 v{B[k]}, v{B[k]}, v{A[k]}, s13")
        return list(T), list(B), list(A)
    def silu2(self, src, dst, t):
        a = self.a
        x0, x1, e0, e1 = t
        self.lo(x0, src); self.hi(x1, src)
        a(f"v_mul_f32 v{e0}, 0xbfb8aa3b, v{x0}\nv_mul_f32 v{e1}, 0xbfb8aa3b, v{x1}")
        a(f"v_exp_f32 v{e0}, v{e0}\nv_exp_f32 v{e1}, v{e1}")
        a(f"v_add_f32 v{e0}, 1.0, v{e0}\nv_add_f32 v{e1}, 1.0, v{e1}")
        a(f"v_rcp_f32 v{e0}, v{e0}\nv_rcp_f32 v{e1}, v{e1}")
        a(f"v_mul_f32 v{x0}, v{x0}, v{e0}\nv_mul_f32 v{x1}, v{x1}, v{e1}")
        a(f"v_cvt_pk_bf16_f32 v{dst}, v{x0}, v{x1}")
    def cnt_add(self, cnt, rtn=None):
        a = self.a
        a("s_mov_b64 s[14:15], exec\ns_and_b32 exec_lo, exec_lo, 1\ns_mov_b32 exec_hi, 0")
        if rtn is None: a(f"ds_add_u32 v14, v15 offset:{cnt}")
        else: a(f"ds_add_rtn_u32 v{rtn}, v14, v15 offset:{cnt}")
        a("s_mov_b64 exec, s[14:15]")
    def last_arriver(self, cnt, skip, t):
        a = self.a; go = self.lab("la")
        self.cnt_add(cnt, t)
        a(f"s_waitcnt lgkmcnt(0)\ns_cbranch_execz {go}\nv_readfirstlane_b32 s60, v{t}\ns_cmp_lg_u32 s60, 3\ns_cbranch_scc1 {skip}\n{go}:")
    def spin_lds(self, cnts, t, target=None, nosleep=False):
        a = self.a; top = self.lab("sp"); out = self.lab("spo")
        a(f"s_mov_b32 s61, 0\n{top}:")
        for i, c in enumerate(cnts): a(f"ds_read_b32 v{t+i}, v14 offset:{c}")
        a(f"s_waitcnt lgkmcnt(0)\ns_cbranch_execz {out}")
        for i in range(1, len(cnts)): a(f"v_add_u32 v{t}, v{t}, v{t+i}")
        a(f"v_readfirstlane_b32 s60, v{t}\ns_cmp_ge_u32 s60, {target or 4*len(cnts)}\ns_cbranch_scc1 {out}")
        if not nosleep: a("s_sleep 1")
        a(f"s_add_u32 s61, s61, 1\ns_cmp_lt_u32 s61, 0x40000\ns_cbranch_scc1 {top}\n{out}:")
    def poll(self, loads, check, sleep=0, nk=None, pre=0, rk=None, rl=None, preloaded=False):
        a = self.a; top = self.lab("pl"); out = self.lab("plo"); full = self.lab("plf"); nx = self.lab("pln")
        a(f"s_mov_b32 s61, 0\ns_mov_b64 s[14:15], exec")
        if pre: a("s_and_b32 exec_lo, exec_lo, 1\ns_mov_b32 exec_hi, 0\ns_mov_b32 s99, 1")
        if preloaded: a(f"s_branch {top}_c")
        a(f"{top}:")
        if self.o.skipvm: a(f"s_cbranch_execz {top}_s")
        if not self.o.nohopld: loads()
        if preloaded: a(f"{top}_c:")
        if self.o.skipvm: a(f"s_cbranch_execz {top}_s\ns_waitcnt vmcnt(0)\n{top}_s:" if preloaded else f"s_waitcnt vmcnt(0)\n{top}_s:")
        else: self.waitvm(0)
        if rk is not None and self.o.stamps:
            sk = self.lab("rs")
            a(f"s_cbranch_execz {sk}\ns_memrealtime s[96:97]\ns_min_u32 s60, s61, 7\ns_add_u32 s60, s60, {rk}\ns_mov_b32 m0, s60\ns_waitcnt lgkmcnt(0)\nv_writelane_b32 v19, s96, m0\n{sk}:")
        if rl is not None and self.o.stamps:
            sk = self.lab("rs")
            a(f"s_cbranch_execz {sk}\ns_memrealtime s[96:97]\ns_add_u32 s95, s95, 1\ns_and_b32 s60, s95, 7\ns_add_u32 s60, s60, {rl}\ns_mov_b32 m0, s60\ns_waitcnt lgkmcnt(0)\nv_writelane_b32 v19, s96, m0\n{sk}:")
        check()
        a(f"s_cbranch_vccz {full if pre else out}")
        if self.o.nopoll: a(f"s_branch {out}")
        if self.o.masked: a("s_mov_b64 exec, vcc")
        if pre:
            a(f"s_cmp_eq_u32 s99, 0\ns_cbranch_scc1 {nx}\ns_sleep {pre}\n{nx}:")
        self.backoff(sleep)
        a(f"s_add_u32 s61, s61, 1\ns_cmp_lt_u32 s61, 0x8000\ns_cbranch_scc1 {top}")
        if pre:
            a(f"s_branch {out}\n{full}:\ns_cmp_eq_u32 s99, 0\ns_cbranch_scc1 {out}\ns_mov_b32 s99, 0\ns_andn2_b64 exec, s[14:15], exec\ns_cbranch_execnz {top}")
        a(f"{out}:\ns_mov_b64 exec, s[14:15]")
        if nk is not None: self.note(nk, "s61")
    def backoff(self, sleep):
        a = self.a
        if isinstance(sleep, tuple):
            th, sh, tl, sl = sleep; l1 = self.lab("bo"); l2 = self.lab("bo")
            a(f"s_bcnt1_i32_b64 s60, vcc\ns_cmp_le_u32 s60, {tl}\ns_cbranch_scc1 {l2}\ns_cmp_le_u32 s60, {th}\ns_cbranch_scc1 {l1}\ns_sleep {sh}\n{l1}:")
            if sl: a(f"s_sleep {sl}")
            a(f"{l2}:")
        elif sleep: a(f"s_sleep {sleep}")
    def ppoll(self, loads, check, nops, sleep=0, nk=None, rl=None, pipe=None):
        if not (self.o.pipe if pipe is None else pipe):
            return self.poll(loads, check, sleep, nk, rl=rl)
        a = self.a; top = self.lab("pp"); out = self.lab("ppo")
        a("s_mov_b32 s61, 0\ns_mov_b64 s[14:15], exec")
        loads()
        if self.o.pgap: a(f"s_sleep {self.o.pgap}")
        a(f"{top}:")
        loads()
        self.waitvm(nops)
        if rl is not None and self.o.stamps:
            sk = self.lab("rs")
            a(f"s_cbranch_execz {sk}\ns_memrealtime s[96:97]\ns_add_u32 s95, s95, 1\ns_and_b32 s60, s95, 7\ns_add_u32 s60, s60, {rl}\ns_mov_b32 m0, s60\ns_waitcnt lgkmcnt(0)\nv_writelane_b32 v19, s96, m0\n{sk}:")
        check()
        a(f"s_cbranch_vccz {out}\ns_mov_b64 exec, vcc")
        self.backoff(sleep)
        a(f"s_add_u32 s61, s61, 1\ns_cmp_lt_u32 s61, 0x8000\ns_cbranch_scc1 {top}")
        a(f"{out}:\ns_mov_b64 exec, s[14:15]")
        if nk is not None: self.note(nk, "s61")
    def prewait(self, loads, check, mlo, mhi, sleep):
        if not sleep: return
        a = self.a; top = self.lab("pw"); out = self.lab("pwo")
        a(f"s_mov_b32 s61, 0\ns_mov_b64 s[78:79], exec\ns_and_b32 exec_lo, exec_lo, {hex(mlo)}\ns_and_b32 exec_hi, exec_hi, {hex(mhi)}\n{top}:\ns_cbranch_execz {out}")
        loads()
        a(f"s_waitcnt vmcnt(0)")
        check()
        a(f"s_cmp_eq_u64 vcc, exec\ns_cbranch_scc0 {out}\ns_sleep {sleep}")
        a(f"s_add_u32 s61, s61, 1\ns_cmp_lt_u32 s61, 0x8000\ns_cbranch_scc1 {top}\n{out}:\ns_mov_b64 exec, s[78:79]")
    def tdetect(self):
        if not self.o.td: return
        a = self.a; out = self.lab("tdo"); w = self.lab("tdw")
        a(f"s_cbranch_execz {out}\ns_cmp_lg_u32 s3, 4\ns_cbranch_scc1 {w}")
        a(f"s_and_b32 s62, s2, {self.o.tdrep-1}\ns_lshl_b32 s62, s62, 7\ns_add_u32 s62, s62, {WS_CNT}\nv_mov_b32 v1, 0\ns_mov_b64 s[78:79], exec\ns_mov_b64 exec, 1")
        def ck():
            a("v_xor_b32 v60, v56, v18\nv_bitop3_b32 v60, v57, v18, v60 bitop3:0xbe\nv_bitop3_b32 v60, v58, v18, v60 bitop3:0xbe\nv_bitop3_b32 v60, v59, v18, v60 bitop3:0xbe\nv_cmp_ne_u32 vcc, 0, v60")
        self.poll(lambda: a("buffer_load_dwordx4 v[56:59], v1, s[44:47], s62 offen sc1"), ck, self.o.tdsleep)
        a("s_mov_b64 exec, s[78:79]")
        self.cnt_add(C_TD)
        a(f"s_branch {out}\n{w}:")
        self.spin_lds([C_TD], 60, target=1)
        a(f"{out}:")
    def get_ticket(self):
        a = self.a; top = self.lab("tk"); out = self.lab("tko")
        if not self.o.tickets:
            a("s_mov_b32 s94, s2"); return
        a(f"s_mov_b32 s61, 0\n{top}:\nds_read_b32 v1, v14 offset:{C_TKT}\ns_waitcnt lgkmcnt(0)\nv_readfirstlane_b32 s94, v1\ns_cbranch_execz {out}")
        a(f"s_cmp_lg_u32 s94, 0\ns_cbranch_scc1 {out}\ns_sleep 1\ns_add_u32 s61, s61, 1\ns_cmp_lt_u32 s61, 0x40000\ns_cbranch_scc1 {top}\n{out}:")
        a("s_sub_u32 s94, s94, 1\ns_and_b32 s94, s94, 0xff")
    def swait(self, loads, regs, ref, eq):
        if not self.o.swait: return
        a = self.a; top = self.lab("sw"); out = self.lab("swo"); again = self.lab("swa")
        a(f"s_cbranch_execz {out}\ns_mov_b32 s61, 0\n{top}:")
        loads()
        a("s_waitcnt lgkmcnt(0)")
        for r in regs:
            a(f"s_cmp_{'lg' if eq else 'eq'}_u32 s{r}, {ref}\ns_cbranch_scc1 {again}")
        a(f"s_branch {out}\n{again}:")
        a(f"s_add_u32 s61, s61, 1\ns_cmp_lt_u32 s61, 0x8000\ns_cbranch_scc1 {top}\n{out}:")
    def chk_sent(self, regs, t):
        a = self.a
        regs = list(regs)
        if len(regs) == 1:
            a(f"v_cmp_eq_u32 vcc, -1, v{regs[0]}"); return
        if len(regs) % 2 == 0:
            a(f"v_max_u32 v{t}, v{regs[0]}, v{regs[1]}"); rest = regs[2:]
        else:
            a(f"v_max3_u32 v{t}, v{regs[0]}, v{regs[1]}, v{regs[2]}"); rest = regs[3:]
        for i in range(0, len(rest), 2): a(f"v_max3_u32 v{t}, v{t}, v{rest[i]}, v{rest[i+1]}")
        a(f"v_cmp_eq_u32 vcc, -1, v{t}")
    def tag(self, regs, rnd=False):
        for r in regs:
            if rnd: self.a(f"v_add_u32 v{r}, 0x80, v{r}")
            self.a(f"v_bfi_b32 v{r}, s98, v18, v{r}")
    def chk_tag(self, regs, t):
        a = self.a; regs = list(regs)
        a(f"v_xor_b32 v{t}, v{regs[0]}, v18")
        for r in regs[1:]: a(f"v_bitop3_b32 v{t}, v{r}, v18, v{t} bitop3:0xbe")
        a(f"v_and_b32 v{t}, s98, v{t}\nv_cmp_ne_u32 vcc, 0, v{t}")
    def sum4x4(self, base):
        a = self.a; b = base
        for h in (0, 2):
            a(f"v_pk_add_f32 v[{b+h}:{b+h+1}], v[{b+h}:{b+h+1}], v[{b+4+h}:{b+5+h}]")
            a(f"v_pk_add_f32 v[{b+8+h}:{b+9+h}], v[{b+8+h}:{b+9+h}], v[{b+12+h}:{b+13+h}]")
        for h in (0, 2):
            a(f"v_pk_add_f32 v[{b+h}:{b+h+1}], v[{b+h}:{b+h+1}], v[{b+8+h}:{b+9+h}]")
    def endwave(self):
        a = self.a
        a("s_cbranch_execz L_dry_ret")
        self.dump_stamps()
        a("s_endpgm")

    def build(self):
        a = self.a; o = self.o; D = o.depth; NT = o.nt; WNT = o.wnt; LNT = o.lnt
        a(header(256, 512, LDS_BYTES))
        a("s_cmp_ge_u32 s2, 256\ns_cbranch_scc1 L_end")
        a("s_load_dwordx16 s[16:31], s[0:1], 0\ns_load_dwordx8 s[32:39], s[0:1], 64\ns_load_dwordx4 s[40:43], s[0:1], 96")
        if o.stamps:
            a("s_memrealtime s[96:97]")
        a("v_lshrrev_b32 v1, 6, v0\nv_and_b32 v0, 63, v0\nv_readfirstlane_b32 s3, v1")
        a("s_and_b32 s4, s2, 7\ns_lshr_b32 s5, s2, 3\ns_lshr_b32 s6, s5, 3")
        if o.hx: a(f"s_add_u32 s60, s4, {o.hx}\ns_and_b32 s60, s60, 7\ns_lshl_b32 s60, s60, 2")
        else: a("s_lshl_b32 s60, s4, 2")
        a("s_add_u32 s6, s6, s60\ns_and_b32 s7, s5, 7")
        a("s_mov_b32 s12, 0x05040100\ns_mov_b32 s13, 0x07060302")
        a(f"v_mov_b32 v14, {L_FLAG}\nv_mov_b32 v15, 1")
        a("s_cmp_ge_u32 s3, 4\ns_cbranch_scc1 L_aux")
        a("v_lshrrev_b32 v4, 4, v0\nv_and_b32 v5, 15, v0\ns_lshl_b32 s60, s3, 2\nv_add_u32 v6, s60, v4")
        a("v_xor_b32 v2, v5, v6\nv_lshlrev_b32 v2, 4, v2\nv_lshl_add_u32 v2, v4, 8, v2\nv_lshlrev_b32 v3, 4, v0")
        a("s_lshl_b32 s62, s6, 20\ns_lshl_b32 s60, s7, 17\ns_add_u32 s62, s62, s60\ns_lshl_b32 s60, s3, 10\ns_add_u32 s62, s62, s60\ns_mov_b32 m0, s60\ns_mov_b32 s63, s62")
        a("s_waitcnt lgkmcnt(0)")
        self.stamp_init()
        self.srd(48, 18, 0x2000000)
        a("s_mov_b32 s61, 0")
        if o.d0 > 0:
            a("L_k1:")
            a(f"buffer_load_dwordx4 v2, s[48:51], s62 offen {NT} lds")
            a(f"s_addk_i32 s62, 0x1000\ns_addk_i32 m0, 0x1000\ns_add_u32 s61, s61, 1\ns_cmp_lt_u32 s61, {o.d0}\ns_cbranch_scc1 L_k1")
        self.stamp(44)
        a("s_barrier")
        self.stamp(45)
        if o.stamps and o.early:
            a(f"s_waitcnt vmcnt({o.d0-1})"); self.stamp(46)
        N = 64
        VB = 128
        Vr = [[VB + 4 * t + k for k in range(4)] for t in range(32)]
        trig = sorted([(o.t1, C_T1), (o.t2, C_T2), (o.t3, C_T3)])
        Tfree = [32, 33, 34, 35]; pairs = {}
        cur = o.d0; j = 0
        first = True
        for n, c in [(n, c) for n, c in trig if n <= 32] + [(32, None)]:
            if n > cur:
                lb = f"L_k2_{j}"; j += 1
                a(f"{lb}:\ns_waitcnt vmcnt({D-1})")
                a(f"buffer_load_dwordx4 v2, s[48:51], s62 offen {NT} lds")
                a(f"s_addk_i32 s62, 0x1000\ns_addk_i32 m0, 0x1000\ns_add_u32 s61, s61, 1\ns_cmp_lt_u32 s61, {n}\ns_cbranch_scc1 {lb}")
                cur = n
            if first:
                first = False
                a("s_load_dword s9, s[42:43], 0")
                self.srd(52, 20, 0x2000000); self.srd(44, 42, 0x10000000)
                a("s_mov_b32 s8, s3\ns_mov_b32 s10, 0\ns_mov_b32 s11, 0\ns_mov_b32 s98, 0xff\ns_mov_b32 s95, 0\ns_mov_b32 s81, 0")
                for r in list(range(7, 14)) + [157, 158, 159]: a(f"v_mov_b32 v{r}, 0")
            if c is not None: self.cnt_add(c)
        self.stamp(1)
        if o.stamps:
            a("s_getreg_b32 s60, hwreg(HW_REG_XCC_ID)\ns_add_u32 s60, s60, 1"); self.note(50, "s60")
        def doperm(u):
            nonlocal Tfree
            lo, hi, Tfree = self.permpair(Vr[2*u], Vr[2*u+1], Tfree)
            pairs[u] = (lo, hi)
        D2 = o.depth2 or D
        for t in range(32):
            n = 32 + t
            DD = D2 if t >= o.d2pos else D
            a(f"s_waitcnt vmcnt({DD-1})")
            if n - D == 31:
                self.cnt_add(C_K); self.stamp(2)
            for tn, c in trig:
                if tn == n and tn > 32: self.cnt_add(c)
            a(f"buffer_load_dwordx4 v[{Vr[t][0]}:{Vr[t][3]}], v3, s[52:55], s63 offen {NT}")
            if t < 31: a("s_addk_i32 s63, 0x1000")
            for u in range(16):
                if u not in pairs and 32 + 2*u + 1 <= n - DD: doperm(u)
        for tn, c in trig:
            if tn >= N: self.cnt_add(c)
        if o.sprio: a(f"s_setprio {o.sprio}")
        a(f"s_waitcnt lgkmcnt(0)\ns_add_u32 s9, s9, {TAGADD}\nv_mov_b32 v18, s9")
        self.stamp(3)
        a(f"v_lshlrev_b32 v7, 6, v6\nv_add_u32 v7, {L_PBUF}, v7")
        a(f"v_lshlrev_b32 v8, 5, v5\nv_lshl_add_u32 v8, v4, 3, v8\ns_lshl_b32 s60, s3, 9\ns_add_u32 s60, s60, {L_REDO}\nv_add_u32 v8, s60, v8")
        a(f"v_lshlrev_b32 v9, 4, v0\nv_add_u32 v10, {L_REDO}, v9\nv_mov_b32 v11, {L_LSUM}\nv_mov_b32 v12, 0\nv_lshlrev_b32 v13, 7, v0")
        a("L_pv:")
        a(f"s_lshl_b32 s60, s6, 3\ns_add_u32 s60, s60, s7\ns_lshl_b32 s63, s60, 4\ns_add_u32 s63, s63, {WS_ML}\ns_lshl_b32 s60, s60, 9\ns_add_u32 s62, s60, {WS_O}")
        ACC = list(range(36, 44)); P = list(range(48, 64))
        for k in ACC: a(f"v_mov_b32 v{k}, 0")
        self.spin_lds([C_P], 44)
        self.stamp(4)
        for q in range(4): a(f"ds_read_b128 v[{48+4*q}:{51+4*q}], v7 offset:{16*q}")
        a("s_waitcnt lgkmcnt(0)")
        for u in range(16):
            if u not in pairs:
                self.waitvm(30 - 2*u)
                doperm(u)
            lo, hi = pairs[u]
            for k in range(4):
                a(f"v_dot2c_f32_bf16 v{ACC[2*k]}, v{lo[k]}, v{P[u]}")
                a(f"v_dot2c_f32_bf16 v{ACC[2*k+1]}, v{hi[k]}, v{P[u]}")
        self.stamp(5)
        self.red8(ACC)
        a(f"ds_write_b64 v8, v[{ACC[0]}:{ACC[1]}]")
        self.last_arriver(C_O, "L_send", 44)
        a("s_mov_b64 s[76:77], exec\ns_mov_b32 exec_hi, 0")
        for q in range(4): a(f"ds_read_b128 v[{48+4*q}:{51+4*q}], v10 offset:{512*q}")
        a("ds_read_b128 v[64:67], v11\nds_read_b32 v68, v11 offset:16")
        a("s_waitcnt lgkmcnt(2)")
        self.sum4x4(48)
        self.tag(range(48, 52))
        a("buffer_store_dwordx4 v[48:51], v9, s[44:47], s62 offen sc1")
        a("s_and_b32 exec_lo, exec_lo, 1\ns_waitcnt lgkmcnt(0)")
        a("v_add_f32 v64, v64, v65\nv_add_f32 v66, v66, v67\nv_add_f32 v69, v64, v66")
        self.tag([68, 69])
        a("v_mov_b32 v70, v68\nv_mov_b32 v71, v69")
        a("buffer_store_dwordx4 v[68:71], v12, s[44:47], s63 offen sc1")
        if o.td:
            self.srd(48, 40, 256)
            a("s_cbranch_execz L_tdp\ns_and_b32 s64, s5, 3\ns_lshl_b32 s60, s64, 6\nv_mov_b32 v72, 1")
            a("buffer_atomic_add v72, v12, s[48:51], s60 offen offset:32 sc0")
            self.stamp(6)
            a("s_mov_b32 s81, 1")
            a("L_tdp:")
        a("s_mov_b64 exec, s[76:77]")
        if not o.td: self.stamp(6)
        if o.stamps and o.ackst:
            self.waitvm(0); self.stamp(31)
        a("L_send:")
        a("s_cbranch_execz L_dry_ret")
        if o.stamps:
            self.get_ticket(); self.note(51, "s94")
        self.srd(48, 28, 2211840); self.srd(52, 30, 2211840); self.srd(56, 32, 2211840)
        a("v_lshlrev_b32 v10, 6, v0\nv_mov_b32 v13, 0x7fffffff")
        a("v_lshrrev_b32 v11, 3, v0\nv_mul_u32_u24 v11, 3456, v11\nv_bfe_u32 v12, v0, 1, 2\nv_lshlrev_b32 v12, 3, v12\nv_add_u32 v12, s4, v12")
        a("v_lshl_add_u32 v11, v12, 7, v11\nv_and_b32 v9, 1, v0\nv_lshl_add_u32 v11, v9, 6, v11")
        a("v_cmp_gt_u32 vcc, 27, v12\nv_cndmask_b32 v11, v13, v11, vcc\nv_cmp_gt_u32 vcc, 40, v0\nv_cndmask_b32 v11, v13, v11, vcc\nv_cndmask_b32 v12, v13, v10, vcc")
        a("s_lshl_b32 s60, s5, 2\ns_add_u32 s60, s60, s3\ns_mul_i32 s78, s60, 17280\ns_lshr_b32 s61, s60, 5\ns_lshl_b32 s61, s61, 3\ns_add_u32 s61, s61, s4\ns_lshl_b32 s61, s61, 5\ns_and_b32 s60, s60, 31\ns_add_u32 s61, s61, s60\ns_mul_i32 s77, s61, 2560")
        a(f"buffer_load_dword v64, v11, s[48:51], s78 offen {o.pnt}\nbuffer_load_dword v65, v11, s[52:55], s78 offen {o.pnt}\nbuffer_load_dword v66, v12, s[56:59], s77 offen {o.pnt}")
        a("s_sub_u32 s60, s5, 24\ns_lshr_b32 s61, s60, 1\ns_lshl_b32 s61, s61, 3\ns_add_u32 s61, s61, s4\ns_cmp_ge_u32 s60, 8\ns_cbranch_scc1 L_noG\ns_cmp_lt_u32 s61, 27\ns_cbranch_scc1 L_G0")
        a("L_noG:\ns_waitcnt vmcnt(0)")
        self.cnt_add(C_GL)
        self.stamp(7)
        a("s_branch L_wend\nL_G0:")
        a("s_lshl_b32 s11, s61, 1\ns_and_b32 s60, s60, 1\ns_add_u32 s11, s11, s60")
        if o.gwait: a("s_waitcnt vmcnt(0)")
        self.stamp(7)
        GW = [[96 + 4*k + q for q in range(4)] for k in range(10)]
        UW = [[136 + 4*k + q for q in range(4)] for k in range(10)]
        a("s_mul_i32 s60, s8, 160\nv_lshrrev_b32 v2, 2, v0\nv_mul_u32_u24 v2, 10, v2\nv_add_u32 v2, s60, v2")
        a("v_mul_u32_u24 v3, 3456, v2\nv_and_b32 v4, 3, v0\nv_lshl_add_u32 v3, v4, 4, v3\ns_lshl_b32 s61, s11, 6")
        for k in range(10):
            a(f"buffer_load_dwordx4 v[{GW[k][0]}:{GW[k][3]}], v3, s[48:51], s61 offen {o.gnt}\nbuffer_load_dwordx4 v[{UW[k][0]}:{UW[k][3]}], v3, s[52:55], s61 offen {o.gnt}")
            if k < 9: a("s_addk_i32 s61, 3456")
        self.cnt_add(C_GI)
        a("v_and_b32 v5, 7, v0\nv_lshlrev_b32 v6, 4, v5\ns_mul_i32 s65, s8, 640")
        a("v_lshrrev_b32 v16, 4, v0")
        HA = [245, 246, 247, 248, 249]; XA = [250, 251, 252, 253, 254]; PA = [25, 26, 27, 28, 29]
        a("v_mul_u32_u24 v1, 5, v16")
        for m in range(5):
            a(f"v_add_u32 v11, {m}, v1\nv_lshrrev_b32 v12, 2, v11\nv_and_b32 v11, 3, v11\nv_lshl_add_u32 v11, v12, 5, v11\nv_lshl_add_u32 v11, v5, 2, v11")
            a(f"s_mul_i32 s60, s8, 320\ns_add_u32 s60, s60, {L_H}\nv_lshlrev_b32 v12, 1, v11\nv_add_u32 v{HA[m]}, s60, v12\nv_lshlrev_b32 v12, 2, v11\nv_add_u32 v{PA[m]}, s65, v12\nv_add_u32 v{XA[m]}, {L_X2}, v{PA[m]}")
        a(f"v_lshrrev_b32 v2, 2, v0\nv_mul_u32_u24 v2, 20, v2\ns_mul_i32 s60, s8, 320\ns_add_u32 s60, s60, {L_H}\nv_add_u32 v2, s60, v2")
        a(f"v_lshrrev_b32 v3, 3, v0\nv_mul_u32_u24 v3, 2560, v3\nv_add_u32 v3, v3, v6\ns_add_u32 s87, s65, {WS_Y}")
        a(f"s_lshl_b32 s60, s8, 8\ns_add_u32 s60, s60, {L_GZ}\nv_lshrrev_b32 v5, 1, v16\nv_lshlrev_b32 v5, 7, v5\nv_lshl_add_u32 v5, v4, 5, v5\nv_and_b32 v7, 1, v16\nv_lshl_add_u32 v5, v7, 4, v5\nv_add_u32 v5, s60, v5")
        a(f"s_lshl_b32 s60, s8, 3\ns_add_u32 s60, s60, {L_STAT}\nv_lshrrev_b32 v12, 5, v0\nv_lshlrev_b32 v12, 2, v12\nv_add_u32 v12, s60, v12\nv_mov_b32 v13, {L_STAT}")
        GA = [20, 21, 22, 23, 24]; TT = [40, 41, 42, 43, 44]; SB = [45, 46, 47, 48, 49]; XF = [50, 51, 52, 53, 54]
        self.spin_lds([C_PAR], 60)
        for arr, R in ((0, GA), (1, SB), (2, TT), (4, XF)):
            for m in range(5): a(f"ds_read_b32 v{R[m]}, v{PA[m]} offset:{L_PAR + 2560*arr}")
        a("s_waitcnt lgkmcnt(0)")
        for k in range(5):
            a(f"v_add_f32 v{TT[k]}, 1.0, v{TT[k]}\nv_cvt_pk_bf16_f32 v90, v{TT[k]}, v{TT[k]}"); self.lo(TT[k], 90)
        a("s_waitcnt vmcnt(0)")
        self.stamp(27)
        Tf = [92, 93, 94, 95]; Gp = []; Up = []
        for m in range(5):
            lo, hi, Tf = self.permpair(GW[2*m], GW[2*m+1], Tf); Gp.append((lo, hi))
        for m in range(5):
            lo, hi, Tf = self.permpair(UW[2*m], UW[2*m+1], Tf); Up.append((lo, hi))
        self.stamp(28)
        a("L_Gtail:")
        def ld():
            for q in range(5): a(f"buffer_load_dwordx4 v[{60+4*q}:{63+4*q}], v3, s[44:47], s87 offen offset:{128*q} sc1")
        self.prewait(lambda: a("buffer_load_dwordx4 v[60:63], v3, s[44:47], s87 offen sc1"), lambda: self.chk_tag(range(60, 64), 90), 0x01010101, 0x01010101, o.preb)
        self.poll(ld, lambda: self.chk_tag(range(60, 80), 90), o.bo_b, 35)
        self.stamp(29)
        for x in range(10): a(f"v_permlane32_swap_b32 v{60+x}, v{70+x}")
        for x in range(0, 10, 2): a(f"v_pk_add_f32 v[{60+x}:{61+x}], v[{60+x}:{61+x}], v[{70+x}:{71+x}]")
        for x in range(5): a(f"v_permlane16_swap_b32 v{60+x}, v{65+x}")
        for x in range(5): a(f"v_add_f32 v{60+x}, v{60+x}, v{65+x}")
        for x in range(5): self.ror(60 + x, 8)
        for k in range(5): a(f"v_fma_f32 v{60+k}, v{60+k}, v{GA[k]}, v{XF[k]}")
        a("v_add_f32 v66, v60, v61\nv_mul_f32 v67, v60, v60\nv_add_f32 v68, v62, v63\nv_fmac_f32 v67, v61, v61\nv_add_f32 v66, v66, v64\nv_fmac_f32 v67, v62, v62\nv_add_f32 v66, v66, v68\nv_fmac_f32 v67, v63, v63\nv_fmac_f32 v67, v64, v64")
        a("v_permlane32_swap_b32 v66, v67\nv_add_f32 v66, v66, v67")
        self.allred(66, 67, bits=(0, 1, 2, 4))
        a("ds_write_b32 v12, v66")
        self.cnt_add(C_Z)
        for k in range(5): a(f"ds_write_b32 v{XA[k]}, v{60+k}")
        self.spin_lds([C_Z], 68, nosleep=True)
        a("ds_read_b128 v[68:71], v13\nds_read_b128 v[72:75], v13 offset:16\ns_waitcnt lgkmcnt(0)")
        a("v_pk_add_f32 v[68:69], v[68:69], v[70:71]\nv_pk_add_f32 v[72:73], v[72:73], v[74:75]\nv_pk_add_f32 v[68:69], v[68:69], v[72:73]")
        a("v_mul_f32 v68, 0x3acccccd, v68\nv_mul_f32 v69, 0x3acccccd, v69\nv_fma_f32 v69, -v68, v68, v69\nv_add_f32 v69, 0x3727c5ac, v69\nv_rsq_f32 v69, v69")
        for k in range(5): a(f"v_sub_f32 v{60+k}, v{60+k}, v68")
        for k in range(5): a(f"v_mul_f32 v{70+k}, v69, v{TT[k]}")
        for k in range(5): a(f"v_fma_f32 v{60+k}, v{60+k}, v{70+k}, v{SB[k]}")
        for k in range(5): a(f"v_cvt_pk_bf16_f32 v{60+k}, v{60+k}, v{60+k}")
        for k in range(5): a(f"ds_write_b16 v{HA[k]}, v{60+k}")
        IN = [80, 81, 82, 83, 84]
        a("ds_read2_b32 v[80:81], v2 offset0:0 offset1:1\nds_read2_b32 v[82:83], v2 offset0:2 offset1:3\nds_read_b32 v84, v2 offset:16\ns_waitcnt lgkmcnt(0)")
        for m in range(5):
            for (W, b0) in ((Gp, 60), (Up, 68)):
                lo, hi = W[m]
                for k in range(4):
                    if m == 0: a(f"v_dot2_f32_bf16 v{b0+2*k}, v{lo[k]}, v{IN[m]}, 0\nv_dot2_f32_bf16 v{b0+2*k+1}, v{hi[k]}, v{IN[m]}, 0")
                    else: a(f"v_dot2c_f32_bf16 v{b0+2*k}, v{lo[k]}, v{IN[m]}\nv_dot2c_f32_bf16 v{b0+2*k+1}, v{hi[k]}, v{IN[m]}")
        for k in range(8): a(f"v_permlane32_swap_b32 v{60+k}, v{68+k}")
        for k in range(0, 8, 2): a(f"v_pk_add_f32 v[{60+k}:{61+k}], v[{60+k}:{61+k}], v[{68+k}:{69+k}]")
        for k in range(4): a(f"v_permlane16_swap_b32 v{60+k}, v{64+k}")
        for k in range(0, 4, 2): a(f"v_pk_add_f32 v[{60+k}:{61+k}], v[{60+k}:{61+k}], v[{64+k}:{65+k}]")
        for n in (4, 8):
            for k in range(4): self.ror(60 + k, n)
        a("ds_write_b128 v5, v[60:63]\ns_waitcnt lgkmcnt(0)")
        self.stamp(30)
        a("s_cbranch_execz L_dry_ret\ns_barrier")
        a("L_wend:")
        self.endwave()

        a("L_aux:")
        if o.prio: a(f"s_setprio {o.prio}")
        a("s_sub_u32 s8, s3, 4")
        a("v_lshlrev_b32 v6, 2, v0\ns_cmp_lg_u32 s8, 0\ns_cbranch_scc1 L_noinit")
        a(f"v_add_u32 v16, v14, v6\nv_mov_b32 v17, 0\nds_write_b32 v16, v17\nL_noinit:")
        CR = list(range(160, 165))
        WM = [[96 + 4*k + q for q in range(4)] for k in range(5)]
        XR = list(range(166, 171)); XP = 171
        WQ = list(range(136, 156))
        a("s_mul_i32 s67, s2, 205\ns_lshr_b32 s67, s67, 12\ns_mul_i32 s60, s67, 20\ns_sub_u32 s66, s2, s60")
        a("s_cmp_lt_u32 s2, 80\ns_cbranch_scc1 L_unit")
        a("s_sub_u32 s61, s2, 80\ns_mul_i32 s67, s61, 205\ns_lshr_b32 s67, s67, 13\ns_mul_i32 s60, s67, 40\ns_sub_u32 s66, s61, s60\ns_add_u32 s66, s66, 20")
        a("L_unit:")
        a("s_mul_i32 s68, s67, 160\ns_mul_i32 s60, s8, 40\ns_add_u32 s68, s68, s60")
        a("s_mul_i32 s69, s68, 7680\ns_lshl_b32 s60, s66, 7\ns_add_u32 s69, s69, s60\ns_lshl_b32 s68, s68, 1")
        a("v_lshrrev_b32 v3, 3, v0\nv_mul_u32_u24 v5, 7680, v3\nv_and_b32 v4, 7, v0\nv_lshl_add_u32 v5, v4, 4, v5\nv_lshlrev_b32 v3, 1, v3")
        a("s_mul_i32 s70, s7, 80\ns_mul_i32 s61, s8, 20\ns_add_u32 s70, s70, s61")
        a("s_lshl_b32 s71, s70, 13\ns_lshl_b32 s61, s6, 8\ns_add_u32 s71, s71, s61")
        a("s_waitcnt lgkmcnt(0)")
        self.stamp_init()
        self.stamp(44)
        a("s_load_dword s9, s[42:43], 0")
        self.srd(44, 42, 0x10000000)
        a("s_cmp_ge_u32 s2, 240\ns_cbranch_scc1 L_noprod")
        self.srd(52, 36, 4915200); self.srd(48, 34, 1280)
        for k in range(5):
            if not o.nofront: a(f"buffer_load_dwordx4 v[{WM[k][0]}:{WM[k][3]}], v5, s[52:55], s69 offen {WNT}")
            if k < 4: a("s_add_u32 s69, s69, 61440")
        for k in range(5): a(f"buffer_load_ushort v{CR[k]}, v3, s[48:51], s68 offen offset:{16*k}")
        a("L_noprod:")
        if o.codepf:
            a(f"s_cmp_lg_u32 s8, 1\ns_cbranch_scc1 L_ncp\ns_getpc_b64 s[78:79]\nL_cp:\ns_sub_u32 s78, s78, L_cp-{NAME}_kernel\ns_subb_u32 s79, s79, 0")
            a(f"s_mul_i32 s60, s5, {o.codepf}\nv_min_u32 v7, {o.codepf-1}, v0\nv_add_u32 v7, s60, v7\nv_lshlrev_b32 v7, 7, v7\nv_min_u32 v7, L_end-{NAME}_kernel, v7")
            a("global_load_dword v21, v7, s[78:79]\nL_ncp:")
        if o.b1early: a("s_barrier")
        self.srd(52, 22, 5242880); self.srd(48, 16, 1280)
        for k in range(20):
            if not o.nofront: a(f"buffer_load_dword v{WQ[k]}, v6, s[52:55], s71 offen {WNT}")
            if k < 19: a("s_addk_i32 s71, 0x2000")
        a("v_lshrrev_b32 v16, 4, v0\nv_and_b32 v17, 15, v0\nv_min_u32 v17, 9, v17")
        a("v_mul_u32_u24 v4, 20, v0\ns_lshl_b32 s61, s70, 1\nv_lshlrev_b32 v5, 2, v17")
        a(f"buffer_load_dwordx4 v[{XR[0]}:{XR[3]}], v4, s[48:51], 0 offen\nbuffer_load_dword v{XR[4]}, v4, s[48:51], 0 offen offset:16")
        a(f"buffer_load_dword v{XP}, v5, s[48:51], s61 offen")
        a("s_waitcnt lgkmcnt(0)")
        if not o.b1early: a("s_barrier")
        self.stamp(1)
        a(f"s_add_u32 s9, s9, {TAGADD}\ns_mov_b32 s98, 0xff\nv_mov_b32 v18, s9")
        for r in [2] + list(range(7, 14)) + [157, 158, 159]: a(f"v_mov_b32 v{r}, 0")
        a("s_mov_b32 s10, 0\ns_sub_u32 s11, s2, 160\ns_cmp_lt_u32 s11, 40\ns_cselect_b32 s10, 3, 0\ns_mov_b32 s95, 0\ns_mov_b32 s92, 0\ns_mov_b32 s93, 0\ns_mov_b32 s94, 0")
        a("L_roled:")
        if o.fdry:
            a("s_mov_b64 exec, 0\ns_branch L_front")
        a("L_fdry_ret:\ns_mov_b64 exec, -1")
        self.stamp(2)
        a("L_front:")
        a("s_cmp_ge_u32 s2, 240\ns_cbranch_scc1 L_ln1")
        self.waitvm(23)
        self.stamp(20)
        for k in range(5):
            x, e = CR[k], 44 + k
            a(f"v_lshlrev_b32 v{x}, 16, v{x}\nv_mul_f32 v{e}, 0xbfb8aa3b, v{x}\nv_exp_f32 v{e}, v{e}")
        for k in range(5): a(f"v_add_f32 v{44+k}, 1.0, v{44+k}\nv_rcp_f32 v{44+k}, v{44+k}")
        for k in range(5): a(f"v_mul_f32 v{44+k}, v{CR[k]}, v{44+k}")
        a("v_cvt_pk_bf16_f32 v36, v44, v45\nv_cvt_pk_bf16_f32 v37, v46, v47\nv_cvt_pk_bf16_f32 v38, v48, 0")
        ACC = list(range(48, 56))
        for k in ACC: a(f"v_mov_b32 v{k}, 0")
        Tf = [44, 45, 46, 47]
        for m in range(2):
            lo, hi, Tf = self.permpair(WM[2*m], WM[2*m+1], Tf)
            for k in range(4):
                a(f"v_dot2c_f32_bf16 v{ACC[2*k]}, v{lo[k]}, v{36+m}\nv_dot2c_f32_bf16 v{ACC[2*k+1]}, v{hi[k]}, v{36+m}")
        for k in range(4):
            a(f"v_and_b32 v{Tf[k]}, 0xffff, v{WM[4][k]}\nv_lshrrev_b32 v{WM[4][k]}, 16, v{WM[4][k]}")
            a(f"v_dot2c_f32_bf16 v{ACC[2*k]}, v{Tf[k]}, v38\nv_dot2c_f32_bf16 v{ACC[2*k+1]}, v{WM[4][k]}, v38")
        self.red8(ACC); self.ror(48, 8); self.ror(49, 8)
        a(f"s_lshl_b32 s60, s8, 8\ns_add_u32 s60, s60, {L_RED1}\nv_and_b32 v3, 7, v0\nv_lshlrev_b32 v2, 5, v3\nv_lshl_add_u32 v2, v16, 3, v2\nv_add_u32 v2, s60, v2")
        a("ds_write_b64 v2, v[48:49]")
        self.last_arriver(C_F1, "L_ln1", 44)
        a(f"v_lshlrev_b32 v3, 3, v0\nv_add_u32 v3, {L_RED1}, v3\nv_lshlrev_b32 v2, 4, v0\ns_mov_b64 s[14:15], exec\ns_mov_b32 exec_hi, 0")
        for q in range(4): a(f"ds_read_b64 v[{44+2*q}:{45+2*q}], v3 offset:{256*q}")
        a("s_mul_i32 s67, s2, 205\ns_lshr_b32 s67, s67, 12\ns_mul_i32 s60, s67, 20\ns_sub_u32 s66, s2, s60")
        a("s_cmp_lt_u32 s2, 80\ns_cbranch_scc1 L_unit2")
        a("s_sub_u32 s61, s2, 80\ns_mul_i32 s67, s61, 205\ns_lshr_b32 s67, s67, 13\ns_mul_i32 s60, s67, 40\ns_sub_u32 s66, s61, s60\ns_add_u32 s66, s66, 20")
        a("L_unit2:")
        a(f"s_mul_i32 s60, s67, 30720\ns_lshl_b32 s61, s66, 9\ns_add_u32 s60, s60, s61\ns_add_u32 s60, s60, {WS_G1}")
        a("s_waitcnt lgkmcnt(0)")
        a("v_pk_add_f32 v[44:45], v[44:45], v[46:47]\nv_pk_add_f32 v[48:49], v[48:49], v[50:51]\nv_pk_add_f32 v[44:45], v[44:45], v[48:49]")
        a("v_mov_b32 v46, v45\nv_mov_b32 v45, s9\nv_mov_b32 v47, s9\nv_mov_b32 v4, 0")
        if not o.nostore: a("buffer_store_dwordx4 v[44:47], v2, s[44:47], s60 offen sc1")
        a("s_mov_b64 exec, s[14:15]")
        self.stamp(3)
        a("L_ln1:")
        if o.fdry == 1: a("s_cbranch_execz L_fdry_ret")
        self.waitvm(2)
        self.stamp(21)
        a("s_nop 0")
        WQp = []; WQf = [64]
        for m in range(10):
            lo, hi, WQf = self.permpair([WQ[2*m]], [WQ[2*m+1]], WQf)
            WQp.append((lo[0], hi[0]))
        self.waitvm(0)
        X = list(range(48, 58))
        for m in range(5):
            self.lo(X[2*m], XR[m]); self.hi(X[2*m+1], XR[m])
        a(f"v_add_f32 v58, v{X[0]}, v{X[1]}")
        for k in range(2, 10): a(f"v_add_f32 v58, v58, v{X[k]}")
        self.allred(58, 59)
        a("v_mul_f32 v58, 0x3acccccd, v58")
        a("v_mov_b32 v60, 0")
        for k in range(10): a(f"v_sub_f32 v{X[k]}, v{X[k]}, v58\nv_fmac_f32 v60, v{X[k]}, v{X[k]}")
        self.allred(60, 59)
        a("v_mul_f32 v60, 0x3acccccd, v60")
        self.round2(58, 60, 59)
        a("v_add_f32 v60, 0x3727c5ac, v60")
        self.round2(60, 61, 59)
        a("v_sqrt_f32 v60, v60")
        self.round2(60, 61, 59)
        a("v_rcp_f32 v60, v60")
        self.lo(62, XP); self.hi(63, XP)
        a("v_sub_f32 v62, v62, v58\nv_sub_f32 v63, v63, v58")
        self.round2(62, 63, 59)
        a("v_mul_f32 v62, v62, v60\nv_mul_f32 v63, v63, v60")
        self.round2(62, 63, 59)
        a("s_mul_i32 s60, s7, 80\ns_mul_i32 s61, s8, 20\ns_add_u32 s60, s60, s61")
        a("v_mul_u32_u24 v2, 30720, v16\nv_lshl_add_u32 v2, v17, 4, v2")
        a(f"s_lshl_b32 s62, s60, 3\ns_add_u32 s62, s62, {WS_G1}\ns_add_u32 s63, s62, 5120")
        if o.pretouch:
            a(f"s_cmp_lg_u32 s8, 3\ns_cbranch_scc1 L_npt\ns_mul_i32 s60, s2, {21*128}\ns_add_u32 s60, s60, {WS_O}\nv_min_u32 v44, 20, v0\nv_lshlrev_b32 v44, 7, v44")
            a(f"buffer_load_dword v45, v44, s[44:47], s60 offen {o.ptf}\nL_npt:")
        if o.w1dry:
            a("s_mov_b64 exec, 0\ns_cmp_eq_u32 s8, 0\ns_cbranch_scc1 L_h1b\ns_cmp_eq_u32 s8, 1\ns_cbranch_scc1 L_h2b\ns_branch L_qk2")
            a("L_w1_ret:\ns_mov_b64 exec, -1")
            a("s_mul_i32 s60, s7, 80\ns_mul_i32 s61, s8, 20\ns_add_u32 s60, s60, s61")
            a(f"s_lshl_b32 s62, s60, 3\ns_add_u32 s62, s62, {WS_G1}\ns_add_u32 s63, s62, 5120")
            self.stamp(2)
        a("L_h1b:")
        self.spin_lds([C_T1], 46)
        self.stamp(22)
        def ld():
            a("buffer_load_dwordx4 v[44:47], v2, s[44:47], s62 offen sc1\nbuffer_load_dwordx4 v[48:51], v2, s[44:47], s63 offen sc1")
        def ck():
            a("v_xor_b32 v53, s9, v45\nv_xor_b32 v54, s9, v47\nv_xor_b32 v55, s9, v49\nv_xor_b32 v56, s9, v51")
            a("v_or3_b32 v53, v53, v54, v55\nv_or_b32 v53, v53, v56\nv_cmp_ne_u32 vcc, 0, v53")
        self.poll(ld, ck, o.fsleep, 32)
        self.stamp(4)
        for v in (44, 46, 48, 50): self.allred(v, 53, bits=(4, 5))
        self.round2(44, 46, 53); self.round2(48, 50, 53)
        a("v_add_f32 v48, 1.0, v48\nv_add_f32 v50, 1.0, v50")
        self.round2(48, 50, 53)
        a("v_mul_f32 v48, v62, v48\nv_mul_f32 v50, v63, v50")
        self.round2(48, 50, 53)
        a("v_add_f32 v48, v48, v44\nv_add_f32 v50, v50, v46\nv_cvt_pk_bf16_f32 v53, v48, v50")
        for m in range(10): a(f"v_readlane_b32 s{64+m}, v53, {m}")
        a("v_mov_b32 v44, 0\nv_mov_b32 v45, 0")
        for m in range(10):
            a(f"v_dot2c_f32_bf16 v44, s{64+m}, v{WQp[m][0]}\nv_dot2c_f32_bf16 v45, s{64+m}, v{WQp[m][1]}")
        a(f"s_lshl_b32 s60, s8, 9\ns_add_u32 s60, s60, {L_RED2}\nv_lshlrev_b32 v2, 3, v0\nv_add_u32 v2, s60, v2")
        a("ds_write_b64 v2, v[44:45]")
        self.last_arriver(C_F2, "L_h2", 46)
        a(f"v_lshlrev_b32 v2, 4, v0\nv_add_u32 v3, {L_RED2}, v2\ns_mov_b64 s[14:15], exec\ns_mov_b32 exec_hi, 0")
        for q in range(4): a(f"ds_read_b128 v[{44+4*q}:{47+4*q}], v3 offset:{512*q}")
        a(f"s_lshl_b32 s60, s6, 3\ns_add_u32 s60, s60, s7\ns_lshl_b32 s60, s60, 9\ns_add_u32 s60, s60, {WS_Q2}")
        a("s_waitcnt lgkmcnt(0)")
        self.sum4x4(44)
        self.tag(range(44, 48), rnd=True)
        if not o.nostore: a("buffer_store_dwordx4 v[44:47], v2, s[44:47], s60 offen sc1")
        a("s_mov_b64 exec, s[14:15]")
        self.stamp(5)
        a("L_h2:")
        if o.fdry == 2: a("s_cbranch_execz L_fdry_ret")
        if o.dry:
            if o.fdry == 3 or o.w1dry: a("s_cbranch_execz L_h2b")
            a("s_mov_b64 exec, 0")
            a("s_cmp_eq_u32 s8, 0\ns_cbranch_scc1 L_pv")
            a("s_cmp_eq_u32 s8, 1\ns_cbranch_scc1 L_Gtail")
            a("s_cmp_eq_u32 s8, 2\ns_cbranch_scc1 L_W2\ns_branch L_Gtail2")
        a("L_dry_ret:\ns_mov_b64 exec, -1")
        self.stamp(24)
        a("L_h2b:")
        a("v_lshrrev_b32 v2, 3, v0\nv_lshlrev_b32 v2, 9, v2\nv_and_b32 v3, 7, v0\nv_lshl_add_u32 v2, v3, 4, v2")
        a(f"s_lshl_b32 s62, s6, 12\ns_lshl_b32 s60, s8, 7\ns_add_u32 s62, s62, s60\ns_add_u32 s62, s62, {WS_Q2}")
        a("s_cbranch_execz L_M\ns_cmp_lg_u32 s10, 3\ns_cbranch_scc1 L_Mend\ns_cmp_lg_u32 s8, 0\ns_cbranch_scc1 L_Mend\nL_M:")
        a("v_and_b32 v4, 15, v0\nv_mul_u32_u24 v5, 30720, v16\nv_lshl_add_u32 v5, v4, 5, v5\nv_lshlrev_b32 v4, 4, v4")
        a(f"s_lshl_b32 s63, s11, 9\ns_add_u32 s63, s63, {WS_G1 + 1280*8}\ns_lshl_b32 s64, s11, 8\ns_add_u32 s64, s64, {WS_MR}")
        def ld():
            a("buffer_load_dwordx4 v[44:47], v5, s[44:47], s63 offen sc1\nbuffer_load_dwordx4 v[48:51], v5, s[44:47], s63 offen offset:16 sc1")
        self.poll(ld, ck, o.fsleep)
        for v in (44, 46, 48, 50): self.allred(v, 53, bits=(4, 5))
        self.round2(44, 46, 53); self.round2(48, 50, 53)
        a("v_mov_b32 v45, v46\nv_mov_b32 v46, v48\nv_mov_b32 v47, v50")
        self.tag(range(44, 48))
        a("s_mov_b64 s[14:15], exec\ns_and_b32 exec_lo, exec_lo, 0xffff\ns_mov_b32 exec_hi, 0")
        if not o.nostore: a("buffer_store_dwordx4 v[44:47], v4, s[44:47], s64 offen sc1")
        a("s_mov_b64 exec, s[14:15]\nL_Mend:")
        self.spin_lds([C_T2], 44)
        self.stamp(23)
        if o.tickets:
            self.srd(48, 40, 256)
            a("v_mov_b32 v54, 63\ns_and_b32 s63, s5, 3\ns_cbranch_execz L_tk1\ns_cmp_lg_u32 s8, 0\ns_cbranch_scc1 L_tk1\ns_cmp_ge_u32 s5, 24\ns_cbranch_scc1 L_tk1")
            a("s_and_b32 s63, s5, 3\ns_lshl_b32 s60, s63, 6\nv_mov_b32 v54, 1\nv_mov_b32 v55, 0\ns_mov_b64 s[14:15], exec\ns_and_b32 exec_lo, exec_lo, 1\ns_mov_b32 exec_hi, 0")
            a("buffer_atomic_add v54, v55, s[48:51], s60 offen sc0\ns_mov_b64 exec, s[14:15]\nL_tk1:")
        a("buffer_load_dwordx4 v[48:51], v2, s[44:47], s62 offen sc1")
        a("v_and_b32 v17, 15, v0")
        a(f"v_xor_b32 v4, v16, v17\nv_lshlrev_b32 v4, 4, v4\nv_lshl_add_u32 v4, v17, 8, v4\ns_lshl_b32 s60, s8, 15\nv_add_u32 v4, s60, v4")
        a("v_xor_b32 v5, 64, v4\nv_xor_b32 v6, 0x80, v4\nv_xor_b32 v7, 0xc0, v4")
        self.spin_lds([C_K], 44)
        for t in range(8):
            for s in range(4): a(f"ds_read_b128 v[{96+16*t+4*s}:{99+16*t+4*s}], v{4+s} offset:{4096*t}")
        self.poll(lambda: a("buffer_load_dwordx4 v[48:51], v2, s[44:47], s62 offen sc1"), lambda: self.chk_tag(range(48, 52), 52), o.fsleep, 33, preloaded=True)
        self.stamp(6)
        if o.tickets:
            a("s_cmp_lg_u32 s8, 0\ns_cbranch_scc1 L_tk2")
            a(f"s_mov_b64 s[14:15], exec\ns_and_b32 exec_lo, exec_lo, 1\ns_mov_b32 exec_hi, 0\nv_lshlrev_b32 v54, 2, v54\nv_add_u32 v54, s63, v54\nv_add_u32 v54, 1, v54\nds_write_b32 v14, v54 offset:{C_TKT}\ns_mov_b64 exec, s[14:15]\nL_tk2:")
        self.red4([48, 49, 50, 51]); self.ror(48, 8)
        a(f"s_lshl_b32 s60, s8, 6\ns_add_u32 s60, s60, {L_QBUF}\nv_lshlrev_b32 v3, 3, v3\nv_lshl_add_u32 v3, v16, 1, v3\nv_add_u32 v3, s60, v3")
        a("v_cvt_pk_bf16_f32 v48, v48, v48\nds_write_b16 v3, v48")
        self.cnt_add(C_Q)
        a("L_qk2:")
        a(f"v_lshlrev_b32 v6, 4, v16\nv_add_u32 v6, {L_QBUF}, v6")
        self.spin_lds([C_Q], 44)
        self.stamp(7)
        QF = 20
        for s in range(4): a(f"ds_read_b128 v[{QF+4*s}:{QF+4*s+3}], v6 offset:{64*s}")
        a("s_waitcnt lgkmcnt(0)")
        S = [36, 37]
        for s in range(4):
            for t in range(8):
                d = 224 + 4*t
                c = "0" if s == 0 else f"v[{d}:{d+3}]"
                a(f"v_mfma_f32_16x16x32_bf16 v[{d}:{d+3}], v[{QF+4*s}:{QF+4*s+3}], v[{96+16*t+4*s}:{99+16*t+4*s}], {c}")
        for t in range(8): a(f"v_mov_b32_dpp v{S[t//4]}, v{224+4*t} quad_perm:[0,1,2,3] row_mask:{hex(1<<(t%4))} bank_mask:0xf")
        self.round2(36, 37, 38)
        a("v_mul_f32 v36, 0x3db504f3, v36\nv_mul_f32 v37, 0x3db504f3, v37")
        self.round2(36, 37, 38)
        a("v_max_f32 v39, v36, v37")
        self.allred(39, 38, op="max")
        a(f"s_lshl_b32 s60, s8, 2\ns_add_u32 s60, s60, {L_MAXB}\nv_mov_b32 v2, s60\nv_mov_b32 v3, {L_MAXB}\nds_write_b32 v2, v39")
        self.cnt_add(C_MAX)
        self.spin_lds([C_MAX], 44)
        a("ds_read_b128 v[44:47], v3")
        a(f"s_lshl_b32 s60, s8, 4\ns_add_u32 s60, s60, {L_PBUF}\nv_lshlrev_b32 v2, 6, v17\nv_lshl_add_u32 v2, v16, 1, v2\nv_add_u32 v2, s60, v2")
        a("s_waitcnt lgkmcnt(0)")
        a("v_max3_f32 v44, v44, v45, v46\nv_max_f32 v40, v44, v47")
        a(f"v_sub_f32 v36, v36, v40\nv_sub_f32 v37, v37, v40\nv_mul_f32 v36, {hex(LOG2E)}, v36\nv_mul_f32 v37, {hex(LOG2E)}, v37\nv_exp_f32 v36, v36\nv_exp_f32 v37, v37")
        a("v_cvt_pk_bf16_f32 v38, v36, v37\nds_write_b16 v2, v38\nds_write_b16_d16_hi v2, v38 offset:8")
        self.lo(36, 38); self.hi(37, 38)
        a("v_add_f32 v41, v36, v37")
        self.allred(41, 38)
        a(f"s_lshl_b32 s60, s8, 2\ns_add_u32 s60, s60, {L_LSUM}\nv_mov_b32 v2, s60\nv_mov_b32 v3, {L_LSUM}\nds_write_b32 v2, v41\nds_write_b32 v3, v40 offset:16")
        self.cnt_add(C_P)
        self.stamp(8)
        if o.w1dry: a("s_cbranch_execz L_w1_ret")
        a("s_sub_u32 s60, s5, 24\ns_lshr_b32 s61, s60, 1\ns_lshl_b32 s61, s61, 3\ns_add_u32 s61, s61, s4\ns_cmp_ge_u32 s60, 8\ns_cbranch_scc1 L_nD\ns_cmp_lt_u32 s61, 27\ns_cbranch_scc1 L_D0\nL_nD:")
        self.get_ticket()
        a("s_cmp_ge_u32 s94, 80\ns_cbranch_scc1 L_wend")
        WW = [[96 + 4*i + q for q in range(4)] for i in range(16)]
        self.spin_lds([C_T3], 44)
        self.srd(48, 24, 5242880)
        def wids():
            a("s_and_b32 s64, s94, 7\ns_lshr_b32 s65, s94, 3\ns_lshl_b32 s66, s64, 2\ns_add_u32 s66, s66, s8")
        wids()
        a("v_lshrrev_b32 v2, 3, v0\nv_mul_u32_u24 v2, 20480, v2\nv_and_b32 v3, 7, v0\nv_lshl_add_u32 v2, v3, 4, v2")
        a("s_mul_i32 s60, s66, 163840\ns_lshl_b32 s61, s65, 7\ns_add_u32 s60, s60, s61")
        for i in range(16):
            a(f"buffer_load_dwordx4 v[{WW[i][0]}:{WW[i][3]}], v2, s[48:51], s60 offen offset:{1280*(i%4)} {LNT}")
            if i % 4 == 3 and i < 15: a("s_addk_i32 s60, 5120")
        a("L_W2:")
        wids()
        a("v_and_b32 v3, 7, v0\nv_lshrrev_b32 v4, 3, v0\nv_lshlrev_b32 v2, 4, v4")
        a(f"s_lshl_b32 s60, s8, 8\ns_add_u32 s60, s60, {L_OH}\nv_lshlrev_b32 v9, 5, v4\nv_add_u32 v9, s60, v9")
        a("v_lshlrev_b32 v8, 6, v16\nv_lshl_add_u32 v8, v3, 3, v8\nv_add_u32 v8, s60, v8")
        a(f"v_lshlrev_b32 v4, 9, v4\nv_lshl_add_u32 v4, v3, 4, v4")
        a(f"s_lshl_b32 s60, s8, 8\ns_add_u32 s60, s60, {L_REDW}\nv_lshlrev_b32 v5, 5, v3\nv_lshl_add_u32 v5, v16, 3, v5\nv_add_u32 v5, s60, v5")
        a(f"v_lshlrev_b32 v6, 4, v0\nv_add_u32 v7, {L_REDW}, v6")
        a(f"s_lshl_b32 s86, s66, 7\ns_add_u32 s86, s86, {WS_ML}\ns_lshl_b32 s84, s66, 12\ns_add_u32 s84, s84, {WS_O}")
        a(f"s_mul_i32 s85, s64, 2560\ns_lshl_b32 s60, s65, 8\ns_add_u32 s85, s85, s60\ns_add_u32 s85, s85, {WS_Y}")
        self.waitvm(0)
        Tf = [160, 161, 162, 163]; Wp = []
        for m in range(8):
            lo, hi, Tf = self.permpair(WW[2*m], WW[2*m+1], Tf); Wp.append((lo, hi))
        self.stamp(9)
        self.spin_lds([C_GL], 44)
        self.stamp(38)
        def ld():
            a("buffer_load_dwordx4 v[60:63], v2, s[44:47], s86 offen sc1")
            for q in range(4): a(f"buffer_load_dwordx4 v[{44+4*q}:{47+4*q}], v4, s[44:47], s84 offen offset:{128*q} sc1")
        self.poll(ld, lambda: self.chk_tag(list(range(44, 64)), 64), o.bo_a, 34)
        self.stamp(11)
        a("v_and_b32 v60, 0xffff0000, v60")
        a("v_max_f32_dpp v62, v60, v60 row_ror:8 row_mask:0xf bank_mask:0xf")
        self.allred(62, 64, op="max", bits=(4, 5))
        a(f"v_sub_f32 v60, v60, v62\nv_mul_f32 v60, {hex(LOG2E)}, v60\nv_exp_f32 v66, v60\nv_mul_f32 v61, v61, v66")
        for k in range(0, 16, 2): a(f"v_pk_mul_f32 v[{44+k}:{45+k}], v[{44+k}:{45+k}], v[66:67] op_sel_hi:[1,0]")
        for k in range(8): a(f"v_permlane32_swap_b32 v{44+k}, v{52+k}")
        for k in range(0, 8, 2): a(f"v_pk_add_f32 v[{44+k}:{45+k}], v[{44+k}:{45+k}], v[{52+k}:{53+k}]")
        self.ror(61, 8)
        for k in range(4): a(f"v_permlane16_swap_b32 v{44+k}, v{48+k}")
        a("v_pk_add_f32 v[44:45], v[44:45], v[48:49]\nv_pk_add_f32 v[46:47], v[46:47], v[50:51]")
        for k in range(4): self.ror(44 + k, 8)
        a("v_cvt_pk_bf16_f32 v48, v44, v45\nv_cvt_pk_bf16_f32 v49, v46, v47\nds_write_b64 v8, v[48:49]\nds_read_b128 v[52:55], v9\nds_read_b128 v[56:59], v9 offset:16")
        self.allred(61, 64, bits=(4, 5))
        a("v_rcp_f32 v66, v61\ns_waitcnt lgkmcnt(0)")
        ACC = list(range(24, 32))
        for m in range(8):
            lo, hi = Wp[m]
            for k in range(4):
                if m == 0: a(f"v_dot2_f32_bf16 v{ACC[2*k]}, v{lo[k]}, v{52+m}, 0\nv_dot2_f32_bf16 v{ACC[2*k+1]}, v{hi[k]}, v{52+m}, 0")
                else: a(f"v_dot2c_f32_bf16 v{ACC[2*k]}, v{lo[k]}, v{52+m}\nv_dot2c_f32_bf16 v{ACC[2*k+1]}, v{hi[k]}, v{52+m}")
        self.red8(ACC)
        self.ror(24, 8); self.ror(25, 8)
        a("v_pk_mul_f32 v[24:25], v[24:25], v[66:67] op_sel_hi:[1,0]")
        a("ds_write_b64 v5, v[24:25]")
        self.last_arriver(C_W, "L_wend", 64)
        a("s_and_b32 exec_lo, exec_lo, 0xffff\ns_mov_b32 exec_hi, 0")
        for q in range(4): a(f"ds_read_b128 v[{76+4*q}:{79+4*q}], v7 offset:{256*q}")
        a("s_waitcnt lgkmcnt(0)")
        self.sum4x4(76)
        self.tag(range(76, 80))
        a("buffer_store_dwordx4 v[76:79], v6, s[44:47], s85 offen sc1")
        self.stamp(12)
        a("s_branch L_wend")
        a("L_D0:")
        a("s_lshl_b32 s11, s61, 1\ns_and_b32 s60, s60, 1\ns_add_u32 s11, s11, s60")
        self.srd(48, 16, 1280); self.srd(56, 32, 2211840)
        a(f"v_lshlrev_b32 v2, 4, v0\ns_mul_i32 s65, s8, 2560\ns_add_u32 s62, s65, {WS_MR}\nv_min_u32 v3, 31, v0\nv_lshlrev_b32 v3, 4, v3\nv_min_u32 v4, 39, v0\nv_lshlrev_b32 v5, 3, v4\ns_mul_i32 s60, s8, 320")
        a("buffer_load_dwordx2 v[56:57], v5, s[48:51], s60 offen")
        def ld():
            a("buffer_load_dwordx4 v[44:47], v2, s[44:47], s62 offen sc1\nbuffer_load_dwordx4 v[48:51], v2, s[44:47], s62 offen offset:1024 sc1\nbuffer_load_dwordx4 v[52:55], v3, s[44:47], s62 offen offset:2048 sc1")
        self.poll(ld, lambda: self.chk_tag(range(44, 56), 60), o.msleep)
        for k in range(44, 56): self.hi(k, k)
        self.lo(60, 56); self.hi(61, 56); self.lo(62, 57); self.hi(63, 57)
        self.spin_lds([C_P], 64)
        a(f"v_add_u32 v2, s65, v2\nv_add_u32 v3, s65, v3\ns_mul_i32 s60, s8, 640\nv_lshlrev_b32 v4, 4, v4\nv_add_u32 v4, s60, v4")
        a(f"ds_write_b128 v2, v[44:47] offset:{L_PAR}\nds_write_b128 v2, v[48:51] offset:{L_PAR+1024}\nds_write_b128 v3, v[52:55] offset:{L_PAR+2048}\nds_write_b128 v4, v[60:63] offset:{L_PAR+10240}")
        self.cnt_add(C_PAR)
        DW = [[96 + 2*n + q for q in range(2)] for n in range(32)]
        a("s_mul_i32 s64, s8, 192\ns_cmp_eq_u32 s8, 3\ns_cselect_b32 s64, 512, s64\ns_cmp_ge_u32 s8, 2\ns_cselect_b32 s67, 31, 47\ns_cselect_b32 s71, 0, 0xffff")
        a("v_min_u32 v8, s67, v0\nv_lshlrev_b32 v9, 3, v8\nv_lshlrev_b32 v8, 4, v8\ns_lshl_b32 s60, s64, 1\ns_mul_i32 s63, s11, 40960\ns_add_u32 s63, s63, s60")
        a(f"s_mul_i32 s70, s11, 2560\ns_lshl_b32 s60, s64, 2\ns_add_u32 s70, s70, s60\ns_add_u32 s70, s70, {WS_OP}")
        a(f"v_and_b32 v10, 3, v0\nv_lshlrev_b32 v10, 4, v10\ns_min_u32 s69, s11, 39\ns_lshl_b32 s69, s69, 6")
        a(f"v_lshlrev_b32 v7, 2, v0\nv_add_u32 v7, {L_GZ}, v7\nv_lshl_add_u32 v12, v16, 2, v10\nv_add_u32 v12, s69, v12\nv_add_u32 v11, {L_X2}, v12\nv_mov_b32 v55, 0x3d372713")
        self.spin_lds([C_GI], 64)
        if o.dprio >= 0: a(f"s_setprio {o.dprio}")
        for n in range(32):
            a(f"buffer_load_dwordx2 v[{DW[n][0]}:{DW[n][1]}], v9, s[56:59], s63 offen offset:{1280*(n%4)} {o.gnt}")
            if n % 4 == 3 and n < 31: a("s_addk_i32 s63, 5120")
        GB = 57
        self.spin_lds([C_PAR], 64)
        a(f"ds_read_b32 v57, v12 offset:{L_PAR + 7680}\ns_waitcnt vmcnt(0) lgkmcnt(0)")
        Tf = [160, 161]; Dp = []
        for m in range(16):
            lo, hi, Tf = self.permpair(DW[2*m], DW[2*m+1], Tf); Dp.append((lo, hi))
        a("s_setprio 3")
        self.stamp(9)
        a("s_barrier")
        a("L_Gtail2:")
        for q in range(4): a(f"ds_read_b32 v{64+q}, v7 offset:{256*q}")
        a("ds_read_b32 v56, v11\ns_waitcnt lgkmcnt(1)")
        a("v_add_f32 v64, v64, v65\nv_add_f32 v66, v66, v67\nv_add_f32 v64, v64, v66")
        a("v_mov_b32 v65, v64\nv_permlane32_swap_b32 v64, v65")
        a("v_mul_f32 v66, v64, v64\nv_fma_f32 v66, v66, v55, 1.0\nv_mul_f32 v66, v66, v64\nv_mul_f32 v66, 0xc0135761, v66")
        a("v_exp_f32 v66, v66\nv_mul_f32 v64, v64, v65\nv_add_f32 v66, 1.0, v66\nv_rcp_f32 v66, v66\nv_mul_f32 v64, v64, v66")
        a("v_mov_b32_dpp v65, v64 quad_perm:[1,1,3,3] row_mask:0xf bank_mask:0xf\nv_cvt_pk_bf16_f32 v64, v64, v65")
        for m in range(16): a(f"v_readlane_b32 s{76+m}, v64, {2*m}")
        for m in range(16):
            lo, hi = Dp[m]
            for k in range(2):
                if m == 0: a(f"v_dot2_f32_bf16 v{68+2*k}, s{76+m}, v{lo[k]}, 0\nv_dot2_f32_bf16 v{69+2*k}, s{76+m}, v{hi[k]}, 0")
                else: a(f"v_dot2c_f32_bf16 v{68+2*k}, s{76+m}, v{lo[k]}\nv_dot2c_f32_bf16 v{69+2*k}, s{76+m}, v{hi[k]}")
        a("s_mov_b64 s[14:15], exec\ns_and_b32 exec_hi, exec_hi, s71")
        self.tag(range(68, 72))
        a("buffer_store_dwordx4 v[68:71], v8, s[44:47], s70 offen sc1\ns_mov_b64 exec, s[14:15]")
        self.stamp(13)
        a("s_cbranch_execz L_final\ns_cmp_lg_u32 s8, 0\ns_cbranch_scc1 L_wend\ns_cmp_ge_u32 s11, 40\ns_cbranch_scc1 L_wend")
        a("L_final:")
        self.srd(52, 38, 1280)
        a("v_lshrrev_b32 v2, 2, v0\nv_mul_u32_u24 v2, 2560, v2\nv_add_u32 v2, v2, v10\nv_lshrrev_b32 v3, 1, v10\nv_lshl_add_u32 v3, v16, 1, v3")
        a(f"s_add_u32 s62, s69, {WS_OP}\ns_add_u32 s63, s62, 40960\ns_add_u32 s64, s62, 81920\ns_add_u32 s65, s62, 122880\ns_lshr_b32 s67, s69, 1")
        def ld():
            for u in range(3): a(f"buffer_load_dwordx4 v[{72+4*u}:{75+4*u}], v2, s[44:47], s{62+u} offen sc1")
            a("s_mov_b64 s[76:77], exec\ns_and_b32 exec_lo, exec_lo, 0xffffff\ns_mov_b32 exec_hi, 0")
            a("buffer_load_dwordx4 v[84:87], v2, s[44:47], s65 offen sc1\ns_mov_b64 exec, s[76:77]")
        for k in range(84, 88): a(f"v_and_b32 v{k}, s98, v18")
        if o.cack: self.waitvm(0)
        self.poll(ld, lambda: self.chk_tag(range(72, 88), 90), o.bo_c, 36)
        self.stamp(14)
        self.sum4x4(72)
        self.red4([72, 73, 74, 75]); self.ror(72, 4); self.ror(72, 8)
        a(f"v_fma_f32 v72, v72, v{GB}, v56\nv_cvt_pk_bf16_f32 v72, v72, v72")
        a("s_and_b32 exec_lo, exec_lo, 0x000f000f\ns_and_b32 exec_hi, exec_hi, 0x000f000f")
        a("buffer_store_short v72, v3, s[52:55], s67 offen")
        a("s_cbranch_execz L_dry_ret")
        a("s_cmp_lg_u32 s11, 0\ns_cbranch_scc1 L_fin2")
        a("s_mov_b64 exec, 1\nv_mov_b32 v6, 0\nbuffer_store_dword v18, v6, s[44:47], 0 offen sc1")
        a("L_fin2:")
        self.stamp(15)
        a("s_branch L_wend")
        a("L_end:\ns_endpgm")
        a(footer(256, 100, 256))
        if o.skipvm:
            L = []
            for i, line in enumerate(a.L):
                if "buffer_store" in line and "v19" not in line and "v18" not in line:
                    L += [f"    s_cbranch_execz L_sks{i}", line, f"L_sks{i}:"]
                else: L.append(line)
            a.L = L
        return a.text()

if __name__ == "__main__":
    ap = argparse.ArgumentParser()
    ap.add_argument("-o", default="k.s")
    for k, v in dict(depth=6, depth2=0, d2pos=12, d0=2, stamps=0, dry=1, fdry=0, prio=3, sprio=3, masked=1, swait=0, fsleep=8, msleep=4, tsleep=0, usleep=6,
                     nopoll=0, b1early=1, nofront=0, nostore=0, norole=0, nohopld=0, t1=18, t2=36, t3=64, tickets=1, wlate=0, gearly=160,
                     pipe=0, pgap=1, xsleep=4, preb=4, prez=4, prec=4, asleep=1, hx=0, ackst=0, td=0, tdrep=16, tdsleep=1, yack=1, pretouch=0, dynord=0, w1dry=0, codepf=0, cons=0, skipvm=1, sml=0, atgt=4, gtrig=1, gprio=-1, early=0, atrig=1, gwait=1, cack=1, dprio=0).items():
        ap.add_argument("--" + k, type=int, default=v)
    for k in ("nt", "wnt", "lnt"): ap.add_argument("--" + k, default="nt")
    ap.add_argument("--ptf", default="")
    ap.add_argument("--pnt", default="")
    ap.add_argument("--gnt", default="")
    for k in ("pipea", "pipeb", "pipez", "pipec"): ap.add_argument("--" + k, type=int, default=None)
    for k in ("bo_a", "bo_b", "bo_z", "bo_c"): ap.add_argument("--" + k, default="0")
    o = ap.parse_args()
    for k in ("bo_a", "bo_b", "bo_z", "bo_c"):
        v = [int(x) for x in getattr(o, k).split(",")]; setattr(o, k, v[0] if len(v) == 1 else tuple(v))
    for k in ("nt", "wnt", "lnt"):
        if getattr(o, k) == "pl": setattr(o, k, "")
    g = G(o); t = g.build()
    open(o.o, "w").write(t)
    print("nops inserted:", g.a.nops, "lines:", len(t.splitlines()))
```

```python
import sys, argparse
from asmlib import *

WS_EPOCH = 0x0
WS_CNT   = 0x1000
WS_MR    = 0x10000
WS_Q2    = 0x20000
WS_O     = 0x40000
WS_ML    = 0x60000
WS_X2    = 0x61000
WS_Y     = 0x62000
WS_OP    = 0x6C000
WS_Z     = 0x8E000
WS_U     = 0xB0000
WS_G1    = 0x100000
WS_STAMP = 0x200000
L_FLAG = 0x20000
C_F1, C_F2, C_Q, C_K, C_P, C_MAX, C_T1, C_T2, C_T3, C_O, C_W, C_U, C_Z, C_TKT, C_TD, C_YA, C_A, C_WL, C_GL, C_PAR, C_GI, C_T4 = [4*i for i in range(22)]
L_RED1 = 0x20100
L_RED2 = 0x20800
L_QBUF = 0x21000
L_MAXB = 0x21100
L_LSUM = 0x21110
L_PBUF = 0x21200
L_REDO = 0x21800
L_REDW = 0x22000
L_OH   = 0x22400
L_H    = 0x22800
L_STAT = 0x22D00
L_GZ   = 0x22E00
L_X2   = 0x23200
L_U1   = 0x4000
L_U2   = 0x4400
L_PAR  = 0x0
LDS_BYTES = 0x24000
LOG2E = 0x3fb8aa3b
TAGADD = 0x61C88647

class G:
    def __init__(self, opt):
        self.o = opt
        self.a = Asm()
        self.n = 0
    def lab(self, p="L"):
        self.n += 1
        return f"{p}_{self.n}"
    def stamp(self, k):
        if not self.o.stamps: return
        a = self.a; sk = self.lab("st")
        a(f"s_cbranch_execz {sk}\ns_memrealtime s[96:97]\ns_waitcnt lgkmcnt(0)\nv_writelane_b32 v19, s96, {k}\n{sk}:")
    def note(self, k, sreg):
        if not self.o.stamps: return
        a = self.a; sk = self.lab("st")
        a(f"s_cbranch_execz {sk}\nv_writelane_b32 v19, {sreg}, {k}\n{sk}:")
    def stamp_init(self):
        if not self.o.stamps: return
        self.a("v_mov_b32 v19, 0\nv_writelane_b32 v19, s96, 0")
    def dump_stamps(self):
        if not self.o.stamps: return
        a = self.a
        a("s_mov_b64 exec, -1")
        a("s_lshl_b32 s60, s2, 3\ns_add_u32 s60, s60, s3\ns_lshl_b32 s60, s60, 8")
        a(f"s_add_u32 s60, s60, {WS_STAMP}\nv_lshlrev_b32 v1, 2, v0")
        if self.o.stamps == 2:
            self.srd(48, 40, 256)
            a("v_not_b32 v2, v19\nv_cmp_eq_u32 vcc, 0, v0\nv_cndmask_b32 v19, v19, v2, vcc")
            a("s_cmp_ge_u32 s3, 4\ns_cselect_b32 s60, 64, 0\ns_mov_b32 exec_lo, 0xffff\ns_mov_b32 exec_hi, 0")
            a("buffer_atomic_umax v19, v1, s[48:51], s60 offen")
        else:
            a(f"buffer_store_dword v19, v1, s[44:47], s60 offen")
    def waitvm(self, n):
        a = self.a; sk = self.lab("wv")
        a(f"s_cbranch_execz {sk}\ns_waitcnt vmcnt({n})\n{sk}:")
    def barrier(self):
        a = self.a; sk = self.lab("bar")
        a(f"s_cbranch_execz {sk}\ns_barrier\n{sk}:")
    def srd(self, q, ptr, size, off=0):
        a = self.a
        if off: a(f"s_add_u32 s{q}, s{ptr}, {off}\ns_addc_u32 s{q+1}, s{ptr+1}, 0")
        else: a(f"s_mov_b32 s{q}, s{ptr}\ns_mov_b32 s{q+1}, s{ptr+1}")
        a(f"s_mov_b32 s{q+2}, {size}\ns_mov_b32 s{q+3}, 0x20000")
    def lo(self, d, s): self.a(f"v_lshlrev_b32 v{d}, 16, v{s}")
    def hi(self, d, s): self.a(f"v_and_b32 v{d}, 0xffff0000, v{s}")
    def round2(self, x, y, t):
        self.a(f"v_cvt_pk_bf16_f32 v{t}, v{x}, v{y}"); self.lo(x, t); self.hi(y, t)
    def allred(self, v, t, op="add", bits=(0, 1, 2, 3, 4, 5)):
        a = self.a
        d = {0: "quad_perm:[1,0,3,2]", 1: "quad_perm:[2,3,0,1]", 2: "row_half_mirror", 3: "row_mirror"}
        for b in bits:
            if b < 4: a(f"v_{op}_f32_dpp v{v}, v{v}, v{v} {d[b]} row_mask:0xf bank_mask:0xf")
            else:
                a(f"v_mov_b32 v{t}, v{v}\nv_permlane{16 if b == 4 else 32}_swap_b32 v{t}, v{v}\nv_{op}_f32 v{v}, v{v}, v{t}")
    def ror(self, v, n): self.a(f"v_add_f32_dpp v{v}, v{v}, v{v} row_ror:{n} row_mask:0xf bank_mask:0xf")
    def red8(self, acc):
        a = self.a
        for k in range(4): a(f"v_permlane32_swap_b32 v{acc[k]}, v{acc[k+4]}")
        for k in range(4): a(f"v_add_f32 v{acc[k]}, v{acc[k]}, v{acc[k+4]}")
        for k in range(2): a(f"v_permlane16_swap_b32 v{acc[k]}, v{acc[k+2]}")
        for k in range(2): a(f"v_add_f32 v{acc[k]}, v{acc[k]}, v{acc[k+2]}")
    def red4(self, v):
        a = self.a
        a(f"v_permlane32_swap_b32 v{v[0]}, v{v[2]}\nv_permlane32_swap_b32 v{v[1]}, v{v[3]}")
        a(f"v_add_f32 v{v[0]}, v{v[0]}, v{v[2]}\nv_add_f32 v{v[1]}, v{v[1]}, v{v[3]}")
        a(f"v_permlane16_swap_b32 v{v[0]}, v{v[1]}\nv_add_f32 v{v[0]}, v{v[0]}, v{v[1]}")
    def permpair(self, A, B, T):
        a = self.a
        for k in range(len(A)):
            a(f"v_perm_b32 v{T[k]}, v{B[k]}, v{A[k]}, s12")
            a(f"v_perm_b32 v{B[k]}, v{B[k]}, v{A[k]}, s13")
        return list(T), list(B), list(A)
    def silu2(self, src, dst, t):
        a = self.a
        x0, x1, e0, e1 = t
        self.lo(x0, src); self.hi(x1, src)
        a(f"v_mul_f32 v{e0}, 0xbfb8aa3b, v{x0}\nv_mul_f32 v{e1}, 0xbfb8aa3b, v{x1}")
        a(f"v_exp_f32 v{e0}, v{e0}\nv_exp_f32 v{e1}, v{e1}")
        a(f"v_add_f32 v{e0}, 1.0, v{e0}\nv_add_f32 v{e1}, 1.0, v{e1}")
        a(f"v_rcp_f32 v{e0}, v{e0}\nv_rcp_f32 v{e1}, v{e1}")
        a(f"v_mul_f32 v{x0}, v{x0}, v{e0}\nv_mul_f32 v{x1}, v{x1}, v{e1}")
        a(f"v_cvt_pk_bf16_f32 v{dst}, v{x0}, v{x1}")
    def cnt_add(self, cnt, rtn=None):
        a = self.a
        a("s_mov_b64 s[14:15], exec\ns_and_b32 exec_lo, exec_lo, 1\ns_mov_b32 exec_hi, 0")
        if rtn is None: a(f"ds_add_u32 v14, v15 offset:{cnt}")
        else: a(f"ds_add_rtn_u32 v{rtn}, v14, v15 offset:{cnt}")
        a("s_mov_b64 exec, s[14:15]")
    def last_arriver(self, cnt, skip, t):
        a = self.a; go = self.lab("la")
        self.cnt_add(cnt, t)
        a(f"s_waitcnt lgkmcnt(0)\ns_cbranch_execz {go}\nv_readfirstlane_b32 s60, v{t}\ns_cmp_lg_u32 s60, 3\ns_cbranch_scc1 {skip}\n{go}:")
    def spin_lds(self, cnts, t, target=None, nosleep=False):
        a = self.a; top = self.lab("sp"); out = self.lab("spo")
        a(f"s_mov_b32 s61, 0\n{top}:")
        for i, c in enumerate(cnts): a(f"ds_read_b32 v{t+i}, v14 offset:{c}")
        a(f"s_waitcnt lgkmcnt(0)\ns_cbranch_execz {out}")
        for i in range(1, len(cnts)): a(f"v_add_u32 v{t}, v{t}, v{t+i}")
        a(f"v_readfirstlane_b32 s60, v{t}\ns_cmp_ge_u32 s60, {target or 4*len(cnts)}\ns_cbranch_scc1 {out}")
        if not nosleep: a("s_sleep 1")
        a(f"s_add_u32 s61, s61, 1\ns_cmp_lt_u32 s61, 0x40000\ns_cbranch_scc1 {top}\n{out}:")
    def poll(self, loads, check, sleep=0, nk=None, pre=0, rk=None, rl=None, preloaded=False):
        a = self.a; top = self.lab("pl"); out = self.lab("plo"); full = self.lab("plf"); nx = self.lab("pln")
        a(f"s_mov_b32 s61, 0\ns_mov_b64 s[14:15], exec")
        if pre: a("s_and_b32 exec_lo, exec_lo, 1\ns_mov_b32 exec_hi, 0\ns_mov_b32 s99, 1")
        if preloaded: a(f"s_branch {top}_c")
        a(f"{top}:")
        if self.o.skipvm: a(f"s_cbranch_execz {top}_s")
        if not self.o.nohopld: loads()
        if preloaded: a(f"{top}_c:")
        if self.o.skipvm: a(f"s_cbranch_execz {top}_s\ns_waitcnt vmcnt(0)\n{top}_s:" if preloaded else f"s_waitcnt vmcnt(0)\n{top}_s:")
        else: self.waitvm(0)
        if rk is not None and self.o.stamps:
            sk = self.lab("rs")
            a(f"s_cbranch_execz {sk}\ns_memrealtime s[96:97]\ns_min_u32 s60, s61, 7\ns_add_u32 s60, s60, {rk}\ns_mov_b32 m0, s60\ns_waitcnt lgkmcnt(0)\nv_writelane_b32 v19, s96, m0\n{sk}:")
        if rl is not None and self.o.stamps:
            sk = self.lab("rs")
            a(f"s_cbranch_execz {sk}\ns_memrealtime s[96:97]\ns_add_u32 s95, s95, 1\ns_and_b32 s60, s95, 7\ns_add_u32 s60, s60, {rl}\ns_mov_b32 m0, s60\ns_waitcnt lgkmcnt(0)\nv_writelane_b32 v19, s96, m0\n{sk}:")
        check()
        a(f"s_cbranch_vccz {full if pre else out}")
        if self.o.nopoll: a(f"s_branch {out}")
        if self.o.masked: a("s_mov_b64 exec, vcc")
        if pre:
            a(f"s_cmp_eq_u32 s99, 0\ns_cbranch_scc1 {nx}\ns_sleep {pre}\n{nx}:")
        self.backoff(sleep)
        a(f"s_add_u32 s61, s61, 1\ns_cmp_lt_u32 s61, 0x8000\ns_cbranch_scc1 {top}")
        if pre:
            a(f"s_branch {out}\n{full}:\ns_cmp_eq_u32 s99, 0\ns_cbranch_scc1 {out}\ns_mov_b32 s99, 0\ns_andn2_b64 exec, s[14:15], exec\ns_cbranch_execnz {top}")
        a(f"{out}:\ns_mov_b64 exec, s[14:15]")
        if nk is not None: self.note(nk, "s61")
    def backoff(self, sleep):
        a = self.a
        if isinstance(sleep, tuple):
            th, sh, tl, sl = sleep; l1 = self.lab("bo"); l2 = self.lab("bo")
            a(f"s_bcnt1_i32_b64 s60, vcc\ns_cmp_le_u32 s60, {tl}\ns_cbranch_scc1 {l2}\ns_cmp_le_u32 s60, {th}\ns_cbranch_scc1 {l1}\ns_sleep {sh}\n{l1}:")
            if sl: a(f"s_sleep {sl}")
            a(f"{l2}:")
        elif sleep: a(f"s_sleep {sleep}")
    def ppoll(self, loads, check, nops, sleep=0, nk=None, rl=None, pipe=None):
        if not (self.o.pipe if pipe is None else pipe):
            return self.poll(loads, check, sleep, nk, rl=rl)
        a = self.a; top = self.lab("pp"); out = self.lab("ppo")
        a("s_mov_b32 s61, 0\ns_mov_b64 s[14:15], exec")
        loads()
        if self.o.pgap: a(f"s_sleep {self.o.pgap}")
        a(f"{top}:")
        loads()
        self.waitvm(nops)
        if rl is not None and self.o.stamps:
            sk = self.lab("rs")
            a(f"s_cbranch_execz {sk}\ns_memrealtime s[96:97]\ns_add_u32 s95, s95, 1\ns_and_b32 s60, s95, 7\ns_add_u32 s60, s60, {rl}\ns_mov_b32 m0, s60\ns_waitcnt lgkmcnt(0)\nv_writelane_b32 v19, s96, m0\n{sk}:")
        check()
        a(f"s_cbranch_vccz {out}\ns_mov_b64 exec, vcc")
        self.backoff(sleep)
        a(f"s_add_u32 s61, s61, 1\ns_cmp_lt_u32 s61, 0x8000\ns_cbranch_scc1 {top}")
        a(f"{out}:\ns_mov_b64 exec, s[14:15]")
        if nk is not None: self.note(nk, "s61")
    def prewait(self, loads, check, mlo, mhi, sleep):
        if not sleep: return
        a = self.a; top = self.lab("pw"); out = self.lab("pwo")
        a(f"s_mov_b32 s61, 0\ns_mov_b64 s[78:79], exec\ns_and_b32 exec_lo, exec_lo, {hex(mlo)}\ns_and_b32 exec_hi, exec_hi, {hex(mhi)}\n{top}:\ns_cbranch_execz {out}")
        loads()
        a(f"s_waitcnt vmcnt(0)")
        check()
        a(f"s_cmp_eq_u64 vcc, exec\ns_cbranch_scc0 {out}\ns_sleep {sleep}")
        a(f"s_add_u32 s61, s61, 1\ns_cmp_lt_u32 s61, 0x8000\ns_cbranch_scc1 {top}\n{out}:\ns_mov_b64 exec, s[78:79]")
    def tdetect(self):
        if not self.o.td: return
        a = self.a; out = self.lab("tdo"); w = self.lab("tdw")
        a(f"s_cbranch_execz {out}\ns_cmp_lg_u32 s3, 4\ns_cbranch_scc1 {w}")
        a(f"s_and_b32 s62, s2, {self.o.tdrep-1}\ns_lshl_b32 s62, s62, 7\ns_add_u32 s62, s62, {WS_CNT}\nv_mov_b32 v1, 0\ns_mov_b64 s[78:79], exec\ns_mov_b64 exec, 1")
        def ck():
            a("v_xor_b32 v60, v56, v18\nv_bitop3_b32 v60, v57, v18, v60 bitop3:0xbe\nv_bitop3_b32 v60, v58, v18, v60 bitop3:0xbe\nv_bitop3_b32 v60, v59, v18, v60 bitop3:0xbe\nv_cmp_ne_u32 vcc, 0, v60")
        self.poll(lambda: a("buffer_load_dwordx4 v[56:59], v1, s[44:47], s62 offen sc1"), ck, self.o.tdsleep)
        a("s_mov_b64 exec, s[78:79]")
        self.cnt_add(C_TD)
        a(f"s_branch {out}\n{w}:")
        self.spin_lds([C_TD], 60, target=1)
        a(f"{out}:")
    def get_ticket(self):
        a = self.a; top = self.lab("tk"); out = self.lab("tko")
        if not self.o.tickets:
            a("s_mov_b32 s94, s2"); return
        a(f"s_mov_b32 s61, 0\n{top}:\nds_read_b32 v1, v14 offset:{C_TKT}\ns_waitcnt lgkmcnt(0)\nv_readfirstlane_b32 s94, v1\ns_cbranch_execz {out}")
        a(f"s_cmp_lg_u32 s94, 0\ns_cbranch_scc1 {out}\ns_sleep 1\ns_add_u32 s61, s61, 1\ns_cmp_lt_u32 s61, 0x40000\ns_cbranch_scc1 {top}\n{out}:")
        a("s_sub_u32 s94, s94, 1\ns_and_b32 s94, s94, 0xff")
    def swait(self, loads, regs, ref, eq):
        if not self.o.swait: return
        a = self.a; top = self.lab("sw"); out = self.lab("swo"); again = self.lab("swa")
        a(f"s_cbranch_execz {out}\ns_mov_b32 s61, 0\n{top}:")
        loads()
        a("s_waitcnt lgkmcnt(0)")
        for r in regs:
            a(f"s_cmp_{'lg' if eq else 'eq'}_u32 s{r}, {ref}\ns_cbranch_scc1 {again}")
        a(f"s_branch {out}\n{again}:")
        a(f"s_add_u32 s61, s61, 1\ns_cmp_lt_u32 s61, 0x8000\ns_cbranch_scc1 {top}\n{out}:")
    def chk_sent(self, regs, t):
        a = self.a
        regs = list(regs)
        if len(regs) == 1:
            a(f"v_cmp_eq_u32 vcc, -1, v{regs[0]}"); return
        if len(regs) % 2 == 0:
            a(f"v_max_u32 v{t}, v{regs[0]}, v{regs[1]}"); rest = regs[2:]
        else:
            a(f"v_max3_u32 v{t}, v{regs[0]}, v{regs[1]}, v{regs[2]}"); rest = regs[3:]
        for i in range(0, len(rest), 2): a(f"v_max3_u32 v{t}, v{t}, v{rest[i]}, v{rest[i+1]}")
        a(f"v_cmp_eq_u32 vcc, -1, v{t}")
    def tag(self, regs, rnd=False):
        for r in regs:
            if rnd: self.a(f"v_add_u32 v{r}, 0x80, v{r}")
            self.a(f"v_bfi_b32 v{r}, s98, v18, v{r}")
    def chk_tag(self, regs, t):
        a = self.a; regs = list(regs)
        a(f"v_xor_b32 v{t}, v{regs[0]}, v18")
        for r in regs[1:]: a(f"v_bitop3_b32 v{t}, v{r}, v18, v{t} bitop3:0xbe")
        a(f"v_and_b32 v{t}, s98, v{t}\nv_cmp_ne_u32 vcc, 0, v{t}")
    def sum4x4(self, base):
        a = self.a; b = base
        for h in (0, 2):
            a(f"v_pk_add_f32 v[{b+h}:{b+h+1}], v[{b+h}:{b+h+1}], v[{b+4+h}:{b+5+h}]")
            a(f"v_pk_add_f32 v[{b+8+h}:{b+9+h}], v[{b+8+h}:{b+9+h}], v[{b+12+h}:{b+13+h}]")
        for h in (0, 2):
            a(f"v_pk_add_f32 v[{b+h}:{b+h+1}], v[{b+h}:{b+h+1}], v[{b+8+h}:{b+9+h}]")
    def endwave(self):
        a = self.a
        a("s_cbranch_execz L_dry_ret")
        self.dump_stamps()
        a("s_endpgm")

    def build(self):
        a = self.a; o = self.o; D = o.depth; NT = o.nt; WNT = o.wnt; LNT = o.lnt
        a(header(256, 512, LDS_BYTES))
        a("s_cmp_ge_u32 s2, 256\ns_cbranch_scc1 L_end")
        a("s_load_dwordx16 s[16:31], s[0:1], 0\ns_load_dwordx8 s[32:39], s[0:1], 64\ns_load_dwordx4 s[40:43], s[0:1], 96")
        if o.stamps:
            a("s_memrealtime s[96:97]")
        a("v_lshrrev_b32 v1, 6, v0\nv_and_b32 v0, 63, v0\nv_readfirstlane_b32 s3, v1")
        a("s_and_b32 s4, s2, 7\ns_lshr_b32 s5, s2, 3\ns_lshr_b32 s6, s5, 3")
        if o.hx: a(f"s_add_u32 s60, s4, {o.hx}\ns_and_b32 s60, s60, 7\ns_lshl_b32 s60, s60, 2")
        else: a("s_lshl_b32 s60, s4, 2")
        a("s_add_u32 s6, s6, s60\ns_and_b32 s7, s5, 7")
        a("s_mov_b32 s12, 0x05040100\ns_mov_b32 s13, 0x07060302")
        a(f"v_mov_b32 v14, {L_FLAG}\nv_mov_b32 v15, 1")
        a("s_cmp_ge_u32 s3, 4\ns_cbranch_scc1 L_aux")
        a("v_lshrrev_b32 v4, 4, v0\nv_and_b32 v5, 15, v0\ns_lshl_b32 s60, s3, 2\nv_add_u32 v6, s60, v4")
        a("v_xor_b32 v2, v5, v6\nv_lshlrev_b32 v2, 4, v2\nv_lshl_add_u32 v2, v4, 8, v2\nv_lshlrev_b32 v3, 4, v0")
        a("s_lshl_b32 s62, s6, 20\ns_lshl_b32 s60, s7, 17\ns_add_u32 s62, s62, s60\ns_lshl_b32 s60, s3, 10\ns_add_u32 s62, s62, s60\ns_mov_b32 m0, s60\ns_mov_b32 s63, s62")
        a("s_waitcnt lgkmcnt(0)")
        self.stamp_init()
        self.srd(48, 18, 0x2000000)
        a("s_mov_b32 s61, 0")
        if o.d0 > 0:
            a("L_k1:")
            a(f"buffer_load_dwordx4 v2, s[48:51], s62 offen {NT} lds")
            a(f"s_addk_i32 s62, 0x1000\ns_addk_i32 m0, 0x1000\ns_add_u32 s61, s61, 1\ns_cmp_lt_u32 s61, {o.d0}\ns_cbranch_scc1 L_k1")
        self.stamp(44)
        a("s_barrier")
        self.stamp(45)
        if o.stamps and o.early:
            a(f"s_waitcnt vmcnt({o.d0-1})"); self.stamp(46)
        if o.move == 1: a("s_branch L_stream2"); a.raw(";;MOVE_BEGIN"); a("L_stream2:")
        N = 64
        VB = 128
        Vr = [[VB + 4 * t + k for k in range(4)] for t in range(32)]
        trig = sorted([(o.t1, C_T1), (o.t2, C_T2), (o.t3, C_T3), (o.t4, C_T4)])
        Tfree = [32, 33, 34, 35]; pairs = {}
        cur = o.d0; j = 0
        first = True
        for n, c in [(n, c) for n, c in trig if n <= 32] + [(32, None)]:
            if n > cur:
                lb = f"L_k2_{j}"; j += 1
                a(f"{lb}:\ns_waitcnt vmcnt({D-1})")
                a(f"buffer_load_dwordx4 v2, s[48:51], s62 offen {NT} lds")
                a(f"s_addk_i32 s62, 0x1000\ns_addk_i32 m0, 0x1000\ns_add_u32 s61, s61, 1\ns_cmp_lt_u32 s61, {n}\ns_cbranch_scc1 {lb}")
                cur = n
            if first:
                first = False
                a("s_load_dword s9, s[42:43], 0")
                self.srd(52, 20, 0x2000000); self.srd(44, 42, 0x10000000)
                a("s_mov_b32 s8, s3\ns_mov_b32 s10, 0\ns_mov_b32 s11, 0\ns_mov_b32 s98, 0xff\ns_mov_b32 s95, 0\ns_mov_b32 s81, 0")
                for r in list(range(7, 14)) + [157, 158, 159]: a(f"v_mov_b32 v{r}, 0")
            if c is not None: self.cnt_add(c)
        if o.move == 2: a("s_branch L_stream2"); a.raw(";;MOVE_BEGIN"); a("L_stream2:")
        self.stamp(1)
        if o.stamps:
            a("s_getreg_b32 s60, hwreg(HW_REG_XCC_ID)\ns_add_u32 s60, s60, 1"); self.note(50, "s60")
        def doperm(u):
            nonlocal Tfree
            lo, hi, Tfree = self.permpair(Vr[2*u], Vr[2*u+1], Tfree)
            pairs[u] = (lo, hi)
        D2 = o.depth2 or D
        for t in range(32):
            n = 32 + t
            DD = D2 if t >= o.d2pos else D
            a(f"s_waitcnt vmcnt({DD-1})")
            if n - D == 31:
                self.cnt_add(C_K); self.stamp(2)
            for tn, c in trig:
                if tn == n and tn > 32: self.cnt_add(c)
            a(f"buffer_load_dwordx4 v[{Vr[t][0]}:{Vr[t][3]}], v3, s[52:55], s63 offen {NT}")
            if t < 31: a("s_addk_i32 s63, 0x1000")
            for u in range(16):
                if u not in pairs and 32 + 2*u + 1 <= n - DD: doperm(u)
        for tn, c in trig:
            if tn >= N: self.cnt_add(c)
        if o.sprio: a(f"s_setprio {o.sprio}")
        a(f"s_waitcnt lgkmcnt(0)\ns_add_u32 s9, s9, {TAGADD}\nv_mov_b32 v18, s9")
        self.stamp(3)
        a(f"v_lshlrev_b32 v7, 6, v6\nv_add_u32 v7, {L_PBUF}, v7")
        a(f"v_lshlrev_b32 v8, 5, v5\nv_lshl_add_u32 v8, v4, 3, v8\ns_lshl_b32 s60, s3, 9\ns_add_u32 s60, s60, {L_REDO}\nv_add_u32 v8, s60, v8")
        a(f"v_lshlrev_b32 v9, 4, v0\nv_add_u32 v10, {L_REDO}, v9\nv_mov_b32 v11, {L_LSUM}\nv_mov_b32 v12, 0\nv_lshlrev_b32 v13, 7, v0")
        a("L_pv:")
        a(f"s_lshl_b32 s60, s6, 3\ns_add_u32 s60, s60, s7\ns_lshl_b32 s63, s60, 4\ns_add_u32 s63, s63, {WS_ML}\ns_lshl_b32 s60, s60, 9\ns_add_u32 s62, s60, {WS_O}")
        ACC = list(range(36, 44)); P = list(range(48, 64))
        for k in ACC: a(f"v_mov_b32 v{k}, 0")
        self.spin_lds([C_P], 44)
        self.stamp(4)
        for q in range(4): a(f"ds_read_b128 v[{48+4*q}:{51+4*q}], v7 offset:{16*q}")
        a("s_waitcnt lgkmcnt(0)")
        for u in range(16):
            if u not in pairs:
                self.waitvm(30 - 2*u)
                doperm(u)
            lo, hi = pairs[u]
            for k in range(4):
                a(f"v_dot2c_f32_bf16 v{ACC[2*k]}, v{lo[k]}, v{P[u]}")
                a(f"v_dot2c_f32_bf16 v{ACC[2*k+1]}, v{hi[k]}, v{P[u]}")
        self.stamp(5)
        self.red8(ACC)
        a(f"ds_write_b64 v8, v[{ACC[0]}:{ACC[1]}]")
        self.last_arriver(C_O, "L_send", 44)
        a("s_mov_b64 s[76:77], exec\ns_mov_b32 exec_hi, 0")
        for q in range(4): a(f"ds_read_b128 v[{48+4*q}:{51+4*q}], v10 offset:{512*q}")
        a("ds_read_b128 v[64:67], v11\nds_read_b32 v68, v11 offset:16")
        a("s_waitcnt lgkmcnt(2)")
        self.sum4x4(48)
        self.tag(range(48, 52))
        a("buffer_store_dwordx4 v[48:51], v9, s[44:47], s62 offen sc1")
        a("s_and_b32 exec_lo, exec_lo, 1\ns_waitcnt lgkmcnt(0)")
        a("v_add_f32 v64, v64, v65\nv_add_f32 v66, v66, v67\nv_add_f32 v69, v64, v66")
        self.tag([68, 69])
        a("v_mov_b32 v70, v68\nv_mov_b32 v71, v69")
        a("buffer_store_dwordx4 v[68:71], v12, s[44:47], s63 offen sc1")
        if o.td:
            self.srd(48, 40, 256)
            a("s_cbranch_execz L_tdp\ns_and_b32 s64, s5, 3\ns_lshl_b32 s60, s64, 6\nv_mov_b32 v72, 1")
            a("buffer_atomic_add v72, v12, s[48:51], s60 offen offset:32 sc0")
            self.stamp(6)
            a("s_mov_b32 s81, 1")
            a("L_tdp:")
        a("s_mov_b64 exec, s[76:77]")
        if not o.td: self.stamp(6)
        if o.stamps and o.ackst:
            self.waitvm(0); self.stamp(31)
        a("L_send:")
        a("s_cbranch_execz L_dry_ret")
        if o.stamps:
            self.get_ticket(); self.note(51, "s94")
        self.srd(48, 28, 2211840); self.srd(52, 30, 2211840); self.srd(56, 32, 2211840)
        a("v_lshlrev_b32 v10, 6, v0\nv_mov_b32 v13, 0x7fffffff")
        a("v_lshrrev_b32 v11, 3, v0\nv_mul_u32_u24 v11, 3456, v11\nv_bfe_u32 v12, v0, 1, 2\nv_lshlrev_b32 v12, 3, v12\nv_add_u32 v12, s4, v12")
        a("v_lshl_add_u32 v11, v12, 7, v11\nv_and_b32 v9, 1, v0\nv_lshl_add_u32 v11, v9, 6, v11")
        a("v_cmp_gt_u32 vcc, 27, v12\nv_cndmask_b32 v11, v13, v11, vcc\nv_cmp_gt_u32 vcc, 40, v0\nv_cndmask_b32 v11, v13, v11, vcc\nv_cndmask_b32 v12, v13, v10, vcc")
        a("s_lshl_b32 s60, s5, 2\ns_add_u32 s60, s60, s3\ns_mul_i32 s78, s60, 17280\ns_lshr_b32 s61, s60, 5\ns_lshl_b32 s61, s61, 3\ns_add_u32 s61, s61, s4\ns_lshl_b32 s61, s61, 5\ns_and_b32 s60, s60, 31\ns_add_u32 s61, s61, s60\ns_mul_i32 s77, s61, 2560")
        a(f"buffer_load_dword v64, v11, s[48:51], s78 offen {o.pnt}\nbuffer_load_dword v65, v11, s[52:55], s78 offen {o.pnt}\nbuffer_load_dword v66, v12, s[56:59], s77 offen {o.pnt}")
        a("s_sub_u32 s60, s5, 24\ns_lshr_b32 s61, s60, 1\ns_lshl_b32 s61, s61, 3\ns_add_u32 s61, s61, s4\ns_cmp_ge_u32 s60, 8\ns_cbranch_scc1 L_noG\ns_cmp_lt_u32 s61, 27\ns_cbranch_scc1 L_G0")
        a("L_noG:\ns_waitcnt vmcnt(0)")
        self.cnt_add(C_GL)
        self.stamp(7)
        a("s_branch L_wend\nL_G0:")
        a("s_lshl_b32 s11, s61, 1\ns_and_b32 s60, s60, 1\ns_add_u32 s11, s11, s60")
        if o.gwait: a("s_waitcnt vmcnt(0)")
        self.stamp(7)
        GW = [[96 + 4*k + q for q in range(4)] for k in range(10)]
        UW = [[136 + 4*k + q for q in range(4)] for k in range(10)]
        a("s_mul_i32 s60, s8, 160\nv_lshrrev_b32 v2, 2, v0\nv_mul_u32_u24 v2, 10, v2\nv_add_u32 v2, s60, v2")
        a("v_mul_u32_u24 v3, 3456, v2\nv_and_b32 v4, 3, v0\nv_lshl_add_u32 v3, v4, 4, v3\ns_lshl_b32 s61, s11, 6")
        for k in range(10):
            a(f"buffer_load_dwordx4 v[{GW[k][0]}:{GW[k][3]}], v3, s[48:51], s61 offen {o.gnt}\nbuffer_load_dwordx4 v[{UW[k][0]}:{UW[k][3]}], v3, s[52:55], s61 offen {o.gnt}")
            if k < 9: a("s_addk_i32 s61, 3456")
        self.cnt_add(C_GI)
        a("v_and_b32 v5, 7, v0\nv_lshlrev_b32 v6, 4, v5\ns_mul_i32 s65, s8, 640")
        a("v_lshrrev_b32 v16, 4, v0")
        HA = [245, 246, 247, 248, 249]; XA = [250, 251, 252, 253, 254]; PA = [25, 26, 27, 28, 29]
        a("v_mul_u32_u24 v1, 5, v16")
        for m in range(5):
            a(f"v_add_u32 v11, {m}, v1\nv_lshrrev_b32 v12, 2, v11\nv_and_b32 v11, 3, v11\nv_lshl_add_u32 v11, v12, 5, v11\nv_lshl_add_u32 v11, v5, 2, v11")
            a(f"s_mul_i32 s60, s8, 320\ns_add_u32 s60, s60, {L_H}\nv_lshlrev_b32 v12, 1, v11\nv_add_u32 v{HA[m]}, s60, v12\nv_lshlrev_b32 v12, 2, v11\nv_add_u32 v{PA[m]}, s65, v12\nv_add_u32 v{XA[m]}, {L_X2}, v{PA[m]}")
        a(f"v_lshrrev_b32 v2, 2, v0\nv_mul_u32_u24 v2, 20, v2\ns_mul_i32 s60, s8, 320\ns_add_u32 s60, s60, {L_H}\nv_add_u32 v2, s60, v2")
        a(f"v_lshrrev_b32 v3, 3, v0\nv_mul_u32_u24 v3, 2560, v3\nv_add_u32 v3, v3, v6\ns_add_u32 s87, s65, {WS_Y}")
        a(f"s_lshl_b32 s60, s8, 8\ns_add_u32 s60, s60, {L_GZ}\nv_lshrrev_b32 v5, 1, v16\nv_lshlrev_b32 v5, 7, v5\nv_lshl_add_u32 v5, v4, 5, v5\nv_and_b32 v7, 1, v16\nv_lshl_add_u32 v5, v7, 4, v5\nv_add_u32 v5, s60, v5")
        a(f"s_lshl_b32 s60, s8, 3\ns_add_u32 s60, s60, {L_STAT}\nv_lshrrev_b32 v12, 5, v0\nv_lshlrev_b32 v12, 2, v12\nv_add_u32 v12, s60, v12\nv_mov_b32 v13, {L_STAT}")
        GA = [20, 21, 22, 23, 24]; TT = [40, 41, 42, 43, 44]; SB = [45, 46, 47, 48, 49]; XF = [50, 51, 52, 53, 54]
        self.spin_lds([C_PAR], 60)
        for arr, R in ((0, GA), (1, SB), (2, TT), (4, XF)):
            for m in range(5): a(f"ds_read_b32 v{R[m]}, v{PA[m]} offset:{L_PAR + 2560*arr}")
        a("s_waitcnt lgkmcnt(0)")
        for k in range(5):
            a(f"v_add_f32 v{TT[k]}, 1.0, v{TT[k]}\nv_cvt_pk_bf16_f32 v90, v{TT[k]}, v{TT[k]}"); self.lo(TT[k], 90)
        a("s_waitcnt vmcnt(0)")
        self.stamp(27)
        Tf = [92, 93, 94, 95]; Gp = []; Up = []
        for m in range(5):
            lo, hi, Tf = self.permpair(GW[2*m], GW[2*m+1], Tf); Gp.append((lo, hi))
        for m in range(5):
            lo, hi, Tf = self.permpair(UW[2*m], UW[2*m+1], Tf); Up.append((lo, hi))
        IN = [80, 81, 82, 83, 84]
        def gpass(src):
            for k in range(5): a(f"v_cvt_pk_bf16_f32 v{85+k}, v{src[k]}, v{src[k]}")
            for k in range(5): a(f"ds_write_b16 v{HA[k]}, v{85+k}")
            a("ds_read2_b32 v[80:81], v2 offset0:0 offset1:1\nds_read2_b32 v[82:83], v2 offset0:2 offset1:3\nds_read_b32 v84, v2 offset:16")
        def gdot(first=0):
            a(f"s_waitcnt lgkmcnt({first})")
            for m in range(5):
                for (W, b0) in ((Gp, 64), (Up, 72)):
                    lo, hi = W[m]
                    for k in range(4):
                        if m == 0: a(f"v_dot2_f32_bf16 v{b0+2*k}, v{lo[k]}, v{IN[m]}, 0\nv_dot2_f32_bf16 v{b0+2*k+1}, v{hi[k]}, v{IN[m]}, 0")
                        else: a(f"v_dot2c_f32_bf16 v{b0+2*k}, v{lo[k]}, v{IN[m]}\nv_dot2c_f32_bf16 v{b0+2*k+1}, v{hi[k]}, v{IN[m]}")
            for k in range(8): a(f"v_permlane32_swap_b32 v{64+k}, v{72+k}")
            for k in range(0, 8, 2): a(f"v_pk_add_f32 v[{64+k}:{65+k}], v[{64+k}:{65+k}], v[{72+k}:{73+k}]")
            for k in range(4): a(f"v_permlane16_swap_b32 v{64+k}, v{68+k}")
            for k in range(0, 4, 2): a(f"v_pk_add_f32 v[{64+k}:{65+k}], v[{64+k}:{65+k}], v[{68+k}:{69+k}]")
            for n in (4, 8):
                for k in range(4): self.ror(64 + k, n)
        if o.fold:
            a(f"v_subrev_u32 v6, {L_GZ}, v5")
            gpass(TT); gdot(); a(f"ds_write_b128 v6, v[64:67] offset:{L_U1}")
            gpass(SB); gdot(); a(f"ds_write_b128 v6, v[64:67] offset:{L_U2}")
            self.cnt_add(C_U)
        self.stamp(28)
        a("L_Gtail:")
        def ld():
            for q in range(5): a(f"buffer_load_dwordx4 v[{60+4*q}:{63+4*q}], v3, s[44:47], s87 offen offset:{128*q} sc1")
        self.prewait(lambda: a("buffer_load_dwordx4 v[60:63], v3, s[44:47], s87 offen sc1"), lambda: self.chk_tag(range(60, 64), 90), 0x01010101, 0x01010101, o.preb)
        self.poll(ld, lambda: self.chk_tag(range(60, 80), 90), o.bo_b, 35)
        self.stamp(29)
        for x in range(10): a(f"v_permlane32_swap_b32 v{60+x}, v{70+x}")
        for x in range(0, 10, 2): a(f"v_pk_add_f32 v[{60+x}:{61+x}], v[{60+x}:{61+x}], v[{70+x}:{71+x}]")
        for x in range(5): a(f"v_permlane16_swap_b32 v{60+x}, v{65+x}")
        for x in range(5): a(f"v_add_f32 v{60+x}, v{60+x}, v{65+x}")
        for x in range(5): self.ror(60 + x, 8)
        for k in range(5): a(f"v_fma_f32 v{30+k}, v{60+k}, v{GA[k]}, v{XF[k]}")
        X2 = [30, 31, 32, 33, 34]
        def stats():
            a("v_add_f32 v36, v30, v31\nv_mul_f32 v37, v30, v30\nv_add_f32 v38, v32, v33\nv_fmac_f32 v37, v31, v31\nv_add_f32 v36, v36, v34\nv_fmac_f32 v37, v32, v32\nv_add_f32 v36, v36, v38\nv_fmac_f32 v37, v33, v33\nv_fmac_f32 v37, v34, v34")
            a("v_permlane32_swap_b32 v36, v37\nv_add_f32 v36, v36, v37")
            self.allred(36, 37, bits=(0, 1, 2, 4))
        if o.fold:
            for k in range(5): a(f"v_mul_f32 v{60+k}, v{X2[k]}, v{TT[k]}")
            gpass([60, 61, 62, 63, 64])
            for k in range(5): a(f"ds_write_b32 v{XA[k]}, v{X2[k]}")
            stats()
            a("ds_write_b32 v12, v36")
            gdot(first=1)
            a("ds_write_b128 v5, v[64:67]\ns_waitcnt lgkmcnt(0)")
        else:
            stats()
            a("ds_write_b32 v12, v36")
            self.cnt_add(C_Z)
            for k in range(5): a(f"ds_write_b32 v{XA[k]}, v{X2[k]}")
            self.spin_lds([C_Z], 68, nosleep=True)
            a("ds_read_b128 v[68:71], v13\nds_read_b128 v[72:75], v13 offset:16\ns_waitcnt lgkmcnt(0)")
            a("v_pk_add_f32 v[68:69], v[68:69], v[70:71]\nv_pk_add_f32 v[72:73], v[72:73], v[74:75]\nv_pk_add_f32 v[68:69], v[68:69], v[72:73]")
            a("v_mul_f32 v68, 0x3acccccd, v68\nv_mul_f32 v69, 0x3acccccd, v69\nv_fma_f32 v69, -v68, v68, v69\nv_add_f32 v69, 0x3727c5ac, v69\nv_rsq_f32 v69, v69")
            for k in range(5): a(f"v_sub_f32 v{60+k}, v{X2[k]}, v68")
            for k in range(5): a(f"v_mul_f32 v{70+k}, v69, v{TT[k]}")
            for k in range(5): a(f"v_fma_f32 v{60+k}, v{60+k}, v{70+k}, v{SB[k]}")
            gpass([60, 61, 62, 63, 64]); gdot()
            a("ds_write_b128 v5, v[64:67]\ns_waitcnt lgkmcnt(0)")
        self.stamp(30)
        a("s_cbranch_execz L_dry_ret\ns_barrier")
        a("L_wend:")
        self.endwave()

        if o.move: a.raw(";;MOVE_END")
        if o.auxalign: a(f".p2align {o.auxalign}")
        a("L_aux:")
        if o.prio: a(f"s_setprio {o.prio}")
        a("s_sub_u32 s8, s3, 4")
        a("v_lshlrev_b32 v6, 2, v0\ns_cmp_lg_u32 s8, 0\ns_cbranch_scc1 L_noinit")
        a(f"v_add_u32 v16, v14, v6\nv_mov_b32 v17, 0\nds_write_b32 v16, v17\nL_noinit:")
        CR = list(range(160, 165))
        WM = [[96 + 4*k + q for q in range(4)] for k in range(5)]
        XR = list(range(166, 171)); XP = 171
        WQ = list(range(136, 156))
        a("s_mul_i32 s67, s2, 205\ns_lshr_b32 s67, s67, 12\ns_mul_i32 s60, s67, 20\ns_sub_u32 s66, s2, s60")
        a("s_cmp_lt_u32 s2, 80\ns_cbranch_scc1 L_unit")
        a("s_sub_u32 s61, s2, 80\ns_mul_i32 s67, s61, 205\ns_lshr_b32 s67, s67, 13\ns_mul_i32 s60, s67, 40\ns_sub_u32 s66, s61, s60\ns_add_u32 s66, s66, 20")
        a("L_unit:")
        a("s_mul_i32 s68, s67, 160\ns_mul_i32 s60, s8, 40\ns_add_u32 s68, s68, s60")
        a("s_mul_i32 s69, s68, 7680\ns_lshl_b32 s60, s66, 7\ns_add_u32 s69, s69, s60\ns_lshl_b32 s68, s68, 1")
        a("v_lshrrev_b32 v3, 3, v0\nv_mul_u32_u24 v5, 7680, v3\nv_and_b32 v4, 7, v0\nv_lshl_add_u32 v5, v4, 4, v5\nv_lshlrev_b32 v3, 1, v3")
        a("s_mul_i32 s70, s7, 80\ns_mul_i32 s61, s8, 20\ns_add_u32 s70, s70, s61")
        a("s_lshl_b32 s71, s70, 13\ns_lshl_b32 s61, s6, 8\ns_add_u32 s71, s71, s61")
        a("s_waitcnt lgkmcnt(0)")
        self.stamp_init()
        self.stamp(44)
        a("s_load_dword s9, s[42:43], 0")
        self.srd(44, 42, 0x10000000)
        a("s_cmp_ge_u32 s2, 240\ns_cbranch_scc1 L_noprod")
        self.srd(52, 36, 4915200); self.srd(48, 34, 1280)
        for k in range(5):
            if not o.nofront: a(f"buffer_load_dwordx4 v[{WM[k][0]}:{WM[k][3]}], v5, s[52:55], s69 offen {WNT}")
            if k < 4: a("s_add_u32 s69, s69, 61440")
        for k in range(5): a(f"buffer_load_ushort v{CR[k]}, v3, s[48:51], s68 offen offset:{16*k}")
        a("L_noprod:")
        if o.codepf:
            a(f"s_cmp_lg_u32 s8, 1\ns_cbranch_scc1 L_ncp\ns_getpc_b64 s[78:79]\nL_cp:\ns_sub_u32 s78, s78, L_cp-{NAME}_kernel\ns_subb_u32 s79, s79, 0")
            a(f"s_mul_i32 s60, s5, {o.codepf}\nv_min_u32 v7, {o.codepf-1}, v0\nv_add_u32 v7, s60, v7\nv_lshlrev_b32 v7, 7, v7\nv_min_u32 v7, L_end-{NAME}_kernel, v7")
            a("global_load_dword v21, v7, s[78:79]\nL_ncp:")
        if o.b1early: a("s_barrier")
        self.srd(52, 22, 5242880); self.srd(48, 16, 1280)
        for k in range(20):
            if not o.nofront: a(f"buffer_load_dword v{WQ[k]}, v6, s[52:55], s71 offen {WNT}")
            if k < 19: a("s_addk_i32 s71, 0x2000")
        a("v_lshrrev_b32 v16, 4, v0\nv_and_b32 v17, 15, v0\nv_min_u32 v17, 9, v17")
        a("v_mul_u32_u24 v4, 20, v0\ns_lshl_b32 s61, s70, 1\nv_lshlrev_b32 v5, 2, v17")
        a(f"buffer_load_dwordx4 v[{XR[0]}:{XR[3]}], v4, s[48:51], 0 offen\nbuffer_load_dword v{XR[4]}, v4, s[48:51], 0 offen offset:16")
        a(f"buffer_load_dword v{XP}, v5, s[48:51], s61 offen")
        a("s_waitcnt lgkmcnt(0)")
        if not o.b1early: a("s_barrier")
        self.stamp(1)
        a(f"s_add_u32 s9, s9, {TAGADD}\ns_mov_b32 s98, 0xff\nv_mov_b32 v18, s9")
        for r in [2] + list(range(7, 14)) + [157, 158, 159]: a(f"v_mov_b32 v{r}, 0")
        a("s_mov_b32 s10, 0\ns_sub_u32 s11, s2, 160\ns_cmp_lt_u32 s11, 40\ns_cselect_b32 s10, 3, 0\ns_mov_b32 s95, 0\ns_mov_b32 s92, 0\ns_mov_b32 s93, 0\ns_mov_b32 s94, 0")
        a("L_roled:")
        if o.fdry:
            a("s_mov_b64 exec, 0\ns_branch L_front")
        a("L_fdry_ret:\ns_mov_b64 exec, -1")
        self.stamp(2)
        a("L_front:")
        a("s_cmp_ge_u32 s2, 240\ns_cbranch_scc1 L_ln1")
        self.waitvm(23)
        self.stamp(20)
        for k in range(5):
            x, e = CR[k], 44 + k
            a(f"v_lshlrev_b32 v{x}, 16, v{x}\nv_mul_f32 v{e}, 0xbfb8aa3b, v{x}\nv_exp_f32 v{e}, v{e}")
        for k in range(5): a(f"v_add_f32 v{44+k}, 1.0, v{44+k}\nv_rcp_f32 v{44+k}, v{44+k}")
        for k in range(5): a(f"v_mul_f32 v{44+k}, v{CR[k]}, v{44+k}")
        a("v_cvt_pk_bf16_f32 v36, v44, v45\nv_cvt_pk_bf16_f32 v37, v46, v47\nv_cvt_pk_bf16_f32 v38, v48, 0")
        ACC = list(range(48, 56))
        for k in ACC: a(f"v_mov_b32 v{k}, 0")
        Tf = [44, 45, 46, 47]
        for m in range(2):
            lo, hi, Tf = self.permpair(WM[2*m], WM[2*m+1], Tf)
            for k in range(4):
                a(f"v_dot2c_f32_bf16 v{ACC[2*k]}, v{lo[k]}, v{36+m}\nv_dot2c_f32_bf16 v{ACC[2*k+1]}, v{hi[k]}, v{36+m}")
        for k in range(4):
            a(f"v_and_b32 v{Tf[k]}, 0xffff, v{WM[4][k]}\nv_lshrrev_b32 v{WM[4][k]}, 16, v{WM[4][k]}")
            a(f"v_dot2c_f32_bf16 v{ACC[2*k]}, v{Tf[k]}, v38\nv_dot2c_f32_bf16 v{ACC[2*k+1]}, v{WM[4][k]}, v38")
        self.red8(ACC); self.ror(48, 8); self.ror(49, 8)
        a(f"s_lshl_b32 s60, s8, 8\ns_add_u32 s60, s60, {L_RED1}\nv_and_b32 v3, 7, v0\nv_lshlrev_b32 v2, 5, v3\nv_lshl_add_u32 v2, v16, 3, v2\nv_add_u32 v2, s60, v2")
        a("ds_write_b64 v2, v[48:49]")
        self.last_arriver(C_F1, "L_ln1", 44)
        a(f"v_lshlrev_b32 v3, 3, v0\nv_add_u32 v3, {L_RED1}, v3\nv_lshlrev_b32 v2, 4, v0\ns_mov_b64 s[14:15], exec\ns_mov_b32 exec_hi, 0")
        for q in range(4): a(f"ds_read_b64 v[{44+2*q}:{45+2*q}], v3 offset:{256*q}")
        a("s_mul_i32 s67, s2, 205\ns_lshr_b32 s67, s67, 12\ns_mul_i32 s60, s67, 20\ns_sub_u32 s66, s2, s60")
        a("s_cmp_lt_u32 s2, 80\ns_cbranch_scc1 L_unit2")
        a("s_sub_u32 s61, s2, 80\ns_mul_i32 s67, s61, 205\ns_lshr_b32 s67, s67, 13\ns_mul_i32 s60, s67, 40\ns_sub_u32 s66, s61, s60\ns_add_u32 s66, s66, 20")
        a("L_unit2:")
        a(f"s_mul_i32 s60, s67, 30720\ns_lshl_b32 s61, s66, 9\ns_add_u32 s60, s60, s61\ns_add_u32 s60, s60, {WS_G1}")
        a("s_waitcnt lgkmcnt(0)")
        a("v_pk_add_f32 v[44:45], v[44:45], v[46:47]\nv_pk_add_f32 v[48:49], v[48:49], v[50:51]\nv_pk_add_f32 v[44:45], v[44:45], v[48:49]")
        a("v_mov_b32 v46, v45\nv_mov_b32 v45, s9\nv_mov_b32 v47, s9\nv_mov_b32 v4, 0")
        if not o.nostore: a("buffer_store_dwordx4 v[44:47], v2, s[44:47], s60 offen sc1")
        a("s_mov_b64 exec, s[14:15]")
        self.stamp(3)
        a("L_ln1:")
        if o.fdry == 1: a("s_cbranch_execz L_fdry_ret")
        self.waitvm(2)
        self.stamp(21)
        a("s_nop 0")
        WQp = []; WQf = [64]
        for m in range(10):
            lo, hi, WQf = self.permpair([WQ[2*m]], [WQ[2*m+1]], WQf)
            WQp.append((lo[0], hi[0]))
        self.waitvm(0)
        X = list(range(48, 58))
        for m in range(5):
            self.lo(X[2*m], XR[m]); self.hi(X[2*m+1], XR[m])
        a(f"v_add_f32 v58, v{X[0]}, v{X[1]}")
        for k in range(2, 10): a(f"v_add_f32 v58, v58, v{X[k]}")
        self.allred(58, 59)
        a("v_mul_f32 v58, 0x3acccccd, v58")
        a("v_mov_b32 v60, 0")
        for k in range(10): a(f"v_sub_f32 v{X[k]}, v{X[k]}, v58\nv_fmac_f32 v60, v{X[k]}, v{X[k]}")
        self.allred(60, 59)
        a("v_mul_f32 v60, 0x3acccccd, v60")
        self.round2(58, 60, 59)
        a("v_add_f32 v60, 0x3727c5ac, v60")
        self.round2(60, 61, 59)
        a("v_sqrt_f32 v60, v60")
        self.round2(60, 61, 59)
        a("v_rcp_f32 v60, v60")
        self.lo(62, XP); self.hi(63, XP)
        a("v_sub_f32 v62, v62, v58\nv_sub_f32 v63, v63, v58")
        self.round2(62, 63, 59)
        a("v_mul_f32 v62, v62, v60\nv_mul_f32 v63, v63, v60")
        self.round2(62, 63, 59)
        a("s_mul_i32 s60, s7, 80\ns_mul_i32 s61, s8, 20\ns_add_u32 s60, s60, s61")
        a("v_mul_u32_u24 v2, 30720, v16\nv_lshl_add_u32 v2, v17, 4, v2")
        a(f"s_lshl_b32 s62, s60, 3\ns_add_u32 s62, s62, {WS_G1}\ns_add_u32 s63, s62, 5120")
        if o.pretouch:
            a(f"s_cmp_lg_u32 s8, 3\ns_cbranch_scc1 L_npt\ns_mul_i32 s60, s2, {21*128}\ns_add_u32 s60, s60, {WS_O}\nv_min_u32 v44, 20, v0\nv_lshlrev_b32 v44, 7, v44")
            a(f"buffer_load_dword v45, v44, s[44:47], s60 offen {o.ptf}\nL_npt:")
        if o.w1dry:
            a("s_mov_b64 exec, 0\ns_cmp_eq_u32 s8, 0\ns_cbranch_scc1 L_h1b\ns_cmp_eq_u32 s8, 1\ns_cbranch_scc1 L_h2b\ns_branch L_qk2")
            a("L_w1_ret:\ns_mov_b64 exec, -1")
            a("s_mul_i32 s60, s7, 80\ns_mul_i32 s61, s8, 20\ns_add_u32 s60, s60, s61")
            a(f"s_lshl_b32 s62, s60, 3\ns_add_u32 s62, s62, {WS_G1}\ns_add_u32 s63, s62, 5120")
            self.stamp(2)
        a("L_h1b:")
        self.spin_lds([C_T1], 46)
        self.stamp(22)
        def ld():
            a("buffer_load_dwordx4 v[44:47], v2, s[44:47], s62 offen sc1\nbuffer_load_dwordx4 v[48:51], v2, s[44:47], s63 offen sc1")
        def ck():
            a("v_xor_b32 v53, s9, v45\nv_xor_b32 v54, s9, v47\nv_xor_b32 v55, s9, v49\nv_xor_b32 v56, s9, v51")
            a("v_or3_b32 v53, v53, v54, v55\nv_or_b32 v53, v53, v56\nv_cmp_ne_u32 vcc, 0, v53")
        self.poll(ld, ck, o.fsleep, 32)
        self.stamp(4)
        for v in (44, 46, 48, 50): self.allred(v, 53, bits=(4, 5))
        self.round2(44, 46, 53); self.round2(48, 50, 53)
        a("v_add_f32 v48, 1.0, v48\nv_add_f32 v50, 1.0, v50")
        self.round2(48, 50, 53)
        a("v_mul_f32 v48, v62, v48\nv_mul_f32 v50, v63, v50")
        self.round2(48, 50, 53)
        a("v_add_f32 v48, v48, v44\nv_add_f32 v50, v50, v46\nv_cvt_pk_bf16_f32 v53, v48, v50")
        for m in range(10): a(f"v_readlane_b32 s{64+m}, v53, {m}")
        a("v_mov_b32 v44, 0\nv_mov_b32 v45, 0")
        for m in range(10):
            a(f"v_dot2c_f32_bf16 v44, s{64+m}, v{WQp[m][0]}\nv_dot2c_f32_bf16 v45, s{64+m}, v{WQp[m][1]}")
        a(f"s_lshl_b32 s60, s8, 9\ns_add_u32 s60, s60, {L_RED2}\nv_lshlrev_b32 v2, 3, v0\nv_add_u32 v2, s60, v2")
        a("ds_write_b64 v2, v[44:45]")
        self.last_arriver(C_F2, "L_h2", 46)
        a(f"v_lshlrev_b32 v2, 4, v0\nv_add_u32 v3, {L_RED2}, v2\ns_mov_b64 s[14:15], exec\ns_mov_b32 exec_hi, 0")
        for q in range(4): a(f"ds_read_b128 v[{44+4*q}:{47+4*q}], v3 offset:{512*q}")
        a(f"s_lshl_b32 s60, s6, 3\ns_add_u32 s60, s60, s7\ns_lshl_b32 s60, s60, 9\ns_add_u32 s60, s60, {WS_Q2}")
        a("s_waitcnt lgkmcnt(0)")
        self.sum4x4(44)
        self.tag(range(44, 48), rnd=True)
        if not o.nostore: a("buffer_store_dwordx4 v[44:47], v2, s[44:47], s60 offen sc1")
        a("s_mov_b64 exec, s[14:15]")
        self.stamp(5)
        a("L_h2:")
        if o.fdry == 2: a("s_cbranch_execz L_fdry_ret")
        if o.dry:
            if o.fdry == 3 or o.w1dry: a("s_cbranch_execz L_h2b")
            a("s_mov_b64 exec, 0")
            a("s_cmp_eq_u32 s8, 0\ns_cbranch_scc1 L_pv")
            a("s_cmp_eq_u32 s8, 1\ns_cbranch_scc1 L_Gtail")
            a("s_cmp_eq_u32 s8, 2\ns_cbranch_scc1 L_W2\ns_branch L_Gtail2")
        a("L_dry_ret:\ns_mov_b64 exec, -1")
        self.stamp(24)
        a("L_h2b:")
        a("v_lshrrev_b32 v2, 3, v0\nv_lshlrev_b32 v2, 9, v2\nv_and_b32 v3, 7, v0\nv_lshl_add_u32 v2, v3, 4, v2")
        a(f"s_lshl_b32 s62, s6, 12\ns_lshl_b32 s60, s8, 7\ns_add_u32 s62, s62, s60\ns_add_u32 s62, s62, {WS_Q2}")
        a("s_cbranch_execz L_M\ns_cmp_lg_u32 s10, 3\ns_cbranch_scc1 L_Mend\ns_cmp_lg_u32 s8, 0\ns_cbranch_scc1 L_Mend\nL_M:")
        a("v_and_b32 v4, 15, v0\nv_mul_u32_u24 v5, 30720, v16\nv_lshl_add_u32 v5, v4, 5, v5\nv_lshlrev_b32 v4, 4, v4")
        a(f"s_lshl_b32 s63, s11, 9\ns_add_u32 s63, s63, {WS_G1 + 1280*8}\ns_lshl_b32 s64, s11, 8\ns_add_u32 s64, s64, {WS_MR}")
        def ld():
            a("buffer_load_dwordx4 v[44:47], v5, s[44:47], s63 offen sc1\nbuffer_load_dwordx4 v[48:51], v5, s[44:47], s63 offen offset:16 sc1")
        self.poll(ld, ck, o.fsleep)
        for v in (44, 46, 48, 50): self.allred(v, 53, bits=(4, 5))
        self.round2(44, 46, 53); self.round2(48, 50, 53)
        a("v_mov_b32 v45, v46\nv_mov_b32 v46, v48\nv_mov_b32 v47, v50")
        self.tag(range(44, 48))
        a("s_mov_b64 s[14:15], exec\ns_and_b32 exec_lo, exec_lo, 0xffff\ns_mov_b32 exec_hi, 0")
        if not o.nostore: a("buffer_store_dwordx4 v[44:47], v4, s[44:47], s64 offen sc1")
        a("s_mov_b64 exec, s[14:15]\nL_Mend:")
        self.spin_lds([C_T2], 44)
        self.stamp(23)
        if o.tickets:
            self.srd(48, 40, 256)
            a("v_mov_b32 v54, 63\ns_and_b32 s63, s5, 3\ns_cbranch_execz L_tk1\ns_cmp_lg_u32 s8, 0\ns_cbranch_scc1 L_tk1\ns_cmp_ge_u32 s5, 24\ns_cbranch_scc1 L_tk1")
            a("s_and_b32 s63, s5, 3\ns_lshl_b32 s60, s63, 6\nv_mov_b32 v54, 1\nv_mov_b32 v55, 0\ns_mov_b64 s[14:15], exec\ns_and_b32 exec_lo, exec_lo, 1\ns_mov_b32 exec_hi, 0")
            a("buffer_atomic_add v54, v55, s[48:51], s60 offen sc0\ns_mov_b64 exec, s[14:15]\nL_tk1:")
        a("buffer_load_dwordx4 v[48:51], v2, s[44:47], s62 offen sc1")
        a("v_and_b32 v17, 15, v0")
        a(f"v_xor_b32 v4, v16, v17\nv_lshlrev_b32 v4, 4, v4\nv_lshl_add_u32 v4, v17, 8, v4\ns_lshl_b32 s60, s8, 15\nv_add_u32 v4, s60, v4")
        a("v_xor_b32 v5, 64, v4\nv_xor_b32 v6, 0x80, v4\nv_xor_b32 v7, 0xc0, v4")
        self.spin_lds([C_K], 44)
        for t in range(8):
            for s in range(4): a(f"ds_read_b128 v[{96+16*t+4*s}:{99+16*t+4*s}], v{4+s} offset:{4096*t}")
        self.poll(lambda: a("buffer_load_dwordx4 v[48:51], v2, s[44:47], s62 offen sc1"), lambda: self.chk_tag(range(48, 52), 52), o.fsleep, 33, preloaded=True)
        self.stamp(6)
        if o.tickets:
            a("s_cmp_lg_u32 s8, 0\ns_cbranch_scc1 L_tk2")
            a(f"s_mov_b64 s[14:15], exec\ns_and_b32 exec_lo, exec_lo, 1\ns_mov_b32 exec_hi, 0\ns_cmp_ge_u32 s5, 24\ns_cbranch_scc1 L_tk3\nv_mul_u32_u24 v55, 43691, v54\nv_lshrrev_b32 v55, 21, v55\nv_mul_u32_u24 v55, 48, v55\nv_sub_u32 v54, v54, v55\nL_tk3:\nv_lshlrev_b32 v54, 2, v54\nv_add_u32 v54, s63, v54\nv_add_u32 v54, 1, v54\nds_write_b32 v14, v54 offset:{C_TKT}\ns_mov_b64 exec, s[14:15]\nL_tk2:")
        self.red4([48, 49, 50, 51]); self.ror(48, 8)
        a(f"s_lshl_b32 s60, s8, 6\ns_add_u32 s60, s60, {L_QBUF}\nv_lshlrev_b32 v3, 3, v3\nv_lshl_add_u32 v3, v16, 1, v3\nv_add_u32 v3, s60, v3")
        a("v_cvt_pk_bf16_f32 v48, v48, v48\nds_write_b16 v3, v48")
        self.cnt_add(C_Q)
        a("L_qk2:")
        a(f"v_lshlrev_b32 v6, 4, v16\nv_add_u32 v6, {L_QBUF}, v6")
        self.spin_lds([C_Q], 44)
        self.stamp(7)
        QF = 20
        for s in range(4): a(f"ds_read_b128 v[{QF+4*s}:{QF+4*s+3}], v6 offset:{64*s}")
        a("s_waitcnt lgkmcnt(0)")
        S = [36, 37]
        for s in range(4):
            for t in range(8):
                d = 224 + 4*t
                c = "0" if s == 0 else f"v[{d}:{d+3}]"
                a(f"v_mfma_f32_16x16x32_bf16 v[{d}:{d+3}], v[{QF+4*s}:{QF+4*s+3}], v[{96+16*t+4*s}:{99+16*t+4*s}], {c}")
        for t in range(8): a(f"v_mov_b32_dpp v{S[t//4]}, v{224+4*t} quad_perm:[0,1,2,3] row_mask:{hex(1<<(t%4))} bank_mask:0xf")
        self.round2(36, 37, 38)
        a("v_mul_f32 v36, 0x3db504f3, v36\nv_mul_f32 v37, 0x3db504f3, v37")
        self.round2(36, 37, 38)
        a("v_max_f32 v39, v36, v37")
        self.allred(39, 38, op="max")
        a(f"s_lshl_b32 s60, s8, 2\ns_add_u32 s60, s60, {L_MAXB}\nv_mov_b32 v2, s60\nv_mov_b32 v3, {L_MAXB}\nds_write_b32 v2, v39")
        self.cnt_add(C_MAX)
        self.spin_lds([C_MAX], 44)
        a("ds_read_b128 v[44:47], v3")
        a(f"s_lshl_b32 s60, s8, 4\ns_add_u32 s60, s60, {L_PBUF}\nv_lshlrev_b32 v2, 6, v17\nv_lshl_add_u32 v2, v16, 1, v2\nv_add_u32 v2, s60, v2")
        a("s_waitcnt lgkmcnt(0)")
        a("v_max3_f32 v44, v44, v45, v46\nv_max_f32 v40, v44, v47")
        a(f"v_sub_f32 v36, v36, v40\nv_sub_f32 v37, v37, v40\nv_mul_f32 v36, {hex(LOG2E)}, v36\nv_mul_f32 v37, {hex(LOG2E)}, v37\nv_exp_f32 v36, v36\nv_exp_f32 v37, v37")
        a("v_cvt_pk_bf16_f32 v38, v36, v37\nds_write_b16 v2, v38\nds_write_b16_d16_hi v2, v38 offset:8")
        self.lo(36, 38); self.hi(37, 38)
        a("v_add_f32 v41, v36, v37")
        self.allred(41, 38)
        a(f"s_lshl_b32 s60, s8, 2\ns_add_u32 s60, s60, {L_LSUM}\nv_mov_b32 v2, s60\nv_mov_b32 v3, {L_LSUM}\nds_write_b32 v2, v41\nds_write_b32 v3, v40 offset:16")
        self.cnt_add(C_P)
        self.stamp(8)
        if o.w1dry: a("s_cbranch_execz L_w1_ret")
        a("s_sub_u32 s60, s5, 24\ns_lshr_b32 s61, s60, 1\ns_lshl_b32 s61, s61, 3\ns_add_u32 s61, s61, s4\ns_cmp_ge_u32 s60, 8\ns_cbranch_scc1 L_nD\ns_cmp_lt_u32 s61, 27\ns_cbranch_scc1 L_D0\nL_nD:")
        self.get_ticket()
        a("s_cmp_ge_u32 s94, 80\ns_cbranch_scc1 L_wend")
        WW = [[96 + 4*i + q for q in range(4)] for i in range(16)]
        self.spin_lds([C_T3], 44)
        self.srd(48, 24, 5242880)
        def wids():
            a("s_and_b32 s64, s94, 7\ns_lshr_b32 s65, s94, 3\ns_lshl_b32 s66, s64, 2\ns_add_u32 s66, s66, s8")
        wids()
        a("v_lshrrev_b32 v2, 3, v0\nv_mul_u32_u24 v2, 20480, v2\nv_and_b32 v3, 7, v0\nv_lshl_add_u32 v2, v3, 4, v2")
        a("s_mul_i32 s60, s66, 163840\ns_lshl_b32 s61, s65, 7\ns_add_u32 s60, s60, s61")
        for i in range(16):
            a(f"buffer_load_dwordx4 v[{WW[i][0]}:{WW[i][3]}], v2, s[48:51], s60 offen offset:{1280*(i%4)} {LNT}")
            if i % 4 == 3 and i < 15: a("s_addk_i32 s60, 5120")
            if i == o.wsplit - 1 and i < 15:
                a("s_mov_b32 s62, s60"); self.spin_lds([C_T4], 44); a("s_mov_b32 s60, s62")
        a("L_W2:")
        wids()
        a("v_and_b32 v3, 7, v0\nv_lshrrev_b32 v4, 3, v0\nv_lshlrev_b32 v2, 4, v4")
        a(f"s_lshl_b32 s60, s8, 8\ns_add_u32 s60, s60, {L_OH}\nv_lshlrev_b32 v9, 5, v4\nv_add_u32 v9, s60, v9")
        a("v_lshlrev_b32 v8, 6, v16\nv_lshl_add_u32 v8, v3, 3, v8\nv_add_u32 v8, s60, v8")
        a(f"v_lshlrev_b32 v4, 9, v4\nv_lshl_add_u32 v4, v3, 4, v4")
        a(f"s_lshl_b32 s60, s8, 8\ns_add_u32 s60, s60, {L_REDW}\nv_lshlrev_b32 v5, 5, v3\nv_lshl_add_u32 v5, v16, 3, v5\nv_add_u32 v5, s60, v5")
        a(f"v_lshlrev_b32 v6, 4, v0\nv_add_u32 v7, {L_REDW}, v6")
        a(f"s_lshl_b32 s86, s66, 7\ns_add_u32 s86, s86, {WS_ML}\ns_lshl_b32 s84, s66, 12\ns_add_u32 s84, s84, {WS_O}")
        a(f"s_mul_i32 s85, s64, 2560\ns_lshl_b32 s60, s65, 8\ns_add_u32 s85, s85, s60\ns_add_u32 s85, s85, {WS_Y}")
        self.waitvm(0)
        Tf = [160, 161, 162, 163]; Wp = []
        for m in range(8):
            lo, hi, Tf = self.permpair(WW[2*m], WW[2*m+1], Tf); Wp.append((lo, hi))
        self.stamp(9)
        self.spin_lds([C_GL], 44)
        self.stamp(38)
        def ld():
            a("buffer_load_dwordx4 v[60:63], v2, s[44:47], s86 offen sc1")
            for q in range(4): a(f"buffer_load_dwordx4 v[{44+4*q}:{47+4*q}], v4, s[44:47], s84 offen offset:{128*q} sc1")
        self.poll(ld, lambda: self.chk_tag(list(range(44, 64)), 64), o.bo_a, 34)
        self.stamp(11)
        a("v_and_b32 v60, 0xffff0000, v60")
        a("v_max_f32_dpp v62, v60, v60 row_ror:8 row_mask:0xf bank_mask:0xf")
        self.allred(62, 64, op="max", bits=(4, 5))
        a(f"v_sub_f32 v60, v60, v62\nv_mul_f32 v60, {hex(LOG2E)}, v60\nv_exp_f32 v66, v60\nv_mul_f32 v61, v61, v66")
        for k in range(0, 16, 2): a(f"v_pk_mul_f32 v[{44+k}:{45+k}], v[{44+k}:{45+k}], v[66:67] op_sel_hi:[1,0]")
        for k in range(8): a(f"v_permlane32_swap_b32 v{44+k}, v{52+k}")
        for k in range(0, 8, 2): a(f"v_pk_add_f32 v[{44+k}:{45+k}], v[{44+k}:{45+k}], v[{52+k}:{53+k}]")
        self.ror(61, 8)
        for k in range(4): a(f"v_permlane16_swap_b32 v{44+k}, v{48+k}")
        a("v_pk_add_f32 v[44:45], v[44:45], v[48:49]\nv_pk_add_f32 v[46:47], v[46:47], v[50:51]")
        for k in range(4): self.ror(44 + k, 8)
        a("v_cvt_pk_bf16_f32 v48, v44, v45\nv_cvt_pk_bf16_f32 v49, v46, v47\nds_write_b64 v8, v[48:49]\nds_read_b128 v[52:55], v9\nds_read_b128 v[56:59], v9 offset:16")
        self.allred(61, 64, bits=(4, 5))
        a("v_rcp_f32 v66, v61\ns_waitcnt lgkmcnt(0)")
        ACC = list(range(24, 32))
        for m in range(8):
            lo, hi = Wp[m]
            for k in range(4):
                if m == 0: a(f"v_dot2_f32_bf16 v{ACC[2*k]}, v{lo[k]}, v{52+m}, 0\nv_dot2_f32_bf16 v{ACC[2*k+1]}, v{hi[k]}, v{52+m}, 0")
                else: a(f"v_dot2c_f32_bf16 v{ACC[2*k]}, v{lo[k]}, v{52+m}\nv_dot2c_f32_bf16 v{ACC[2*k+1]}, v{hi[k]}, v{52+m}")
        self.red8(ACC)
        self.ror(24, 8); self.ror(25, 8)
        a("v_pk_mul_f32 v[24:25], v[24:25], v[66:67] op_sel_hi:[1,0]")
        a("ds_write_b64 v5, v[24:25]")
        self.last_arriver(C_W, "L_wend", 64)
        a("s_and_b32 exec_lo, exec_lo, 0xffff\ns_mov_b32 exec_hi, 0")
        for q in range(4): a(f"ds_read_b128 v[{76+4*q}:{79+4*q}], v7 offset:{256*q}")
        a("s_waitcnt lgkmcnt(0)")
        self.sum4x4(76)
        self.tag(range(76, 80))
        a("buffer_store_dwordx4 v[76:79], v6, s[44:47], s85 offen sc1")
        self.stamp(12)
        a("s_branch L_wend")
        a("L_D0:")
        a("s_lshl_b32 s11, s61, 1\ns_and_b32 s60, s60, 1\ns_add_u32 s11, s11, s60")
        self.srd(48, 16, 1280); self.srd(56, 32, 2211840)
        a(f"v_lshlrev_b32 v2, 4, v0\ns_mul_i32 s65, s8, 2560\ns_add_u32 s62, s65, {WS_MR}\nv_min_u32 v3, 31, v0\nv_lshlrev_b32 v3, 4, v3\nv_min_u32 v4, 39, v0\nv_lshlrev_b32 v5, 3, v4\ns_mul_i32 s60, s8, 320")
        a("buffer_load_dwordx2 v[56:57], v5, s[48:51], s60 offen")
        def ld():
            a("buffer_load_dwordx4 v[44:47], v2, s[44:47], s62 offen sc1\nbuffer_load_dwordx4 v[48:51], v2, s[44:47], s62 offen offset:1024 sc1\nbuffer_load_dwordx4 v[52:55], v3, s[44:47], s62 offen offset:2048 sc1")
        self.poll(ld, lambda: self.chk_tag(range(44, 56), 60), o.msleep)
        for k in range(44, 56): self.hi(k, k)
        self.lo(60, 56); self.hi(61, 56); self.lo(62, 57); self.hi(63, 57)
        self.spin_lds([C_P], 64)
        a(f"v_add_u32 v2, s65, v2\nv_add_u32 v3, s65, v3\ns_mul_i32 s60, s8, 640\nv_lshlrev_b32 v4, 4, v4\nv_add_u32 v4, s60, v4")
        a(f"ds_write_b128 v2, v[44:47] offset:{L_PAR}\nds_write_b128 v2, v[48:51] offset:{L_PAR+1024}\nds_write_b128 v3, v[52:55] offset:{L_PAR+2048}\nds_write_b128 v4, v[60:63] offset:{L_PAR+10240}")
        self.cnt_add(C_PAR)
        DW = [[96 + 2*n + q for q in range(2)] for n in range(32)]
        a("s_mul_i32 s64, s8, 192\ns_cmp_eq_u32 s8, 3\ns_cselect_b32 s64, 512, s64\ns_cmp_ge_u32 s8, 2\ns_cselect_b32 s67, 31, 47\ns_cselect_b32 s71, 0, 0xffff")
        a("v_min_u32 v8, s67, v0\nv_lshlrev_b32 v9, 3, v8\nv_lshlrev_b32 v8, 4, v8\ns_lshl_b32 s60, s64, 1\ns_mul_i32 s63, s11, 40960\ns_add_u32 s63, s63, s60")
        a(f"s_mul_i32 s70, s11, 2560\ns_lshl_b32 s60, s64, 2\ns_add_u32 s70, s70, s60\ns_add_u32 s70, s70, {WS_OP}")
        a(f"v_and_b32 v10, 3, v0\nv_lshlrev_b32 v10, 4, v10\ns_min_u32 s69, s11, 39\ns_lshl_b32 s69, s69, 6")
        a(f"v_lshlrev_b32 v7, 2, v0\nv_add_u32 v7, {L_GZ}, v7\nv_lshl_add_u32 v12, v16, 2, v10\nv_add_u32 v12, s69, v12\nv_add_u32 v11, {L_X2}, v12\nv_mov_b32 v55, 0x3d372713")
        self.spin_lds([C_GI], 64)
        if o.dprio >= 0: a(f"s_setprio {o.dprio}")
        for n in range(32):
            a(f"buffer_load_dwordx2 v[{DW[n][0]}:{DW[n][1]}], v9, s[56:59], s63 offen offset:{1280*(n%4)} {o.gnt}")
            if n % 4 == 3 and n < 31: a("s_addk_i32 s63, 5120")
        GB = 57
        self.spin_lds([C_PAR], 64)
        a(f"ds_read_b32 v57, v12 offset:{L_PAR + 7680}\ns_waitcnt vmcnt(0) lgkmcnt(0)")
        Tf = [160, 161]; Dp = []
        for m in range(16):
            lo, hi, Tf = self.permpair(DW[2*m], DW[2*m+1], Tf); Dp.append((lo, hi))
        a("s_setprio 3")
        if o.fold:
            self.spin_lds([C_U], 64)
            a(f"v_lshlrev_b32 v1, 2, v0\nv_mov_b32 v13, {L_STAT}")
            for q in range(4): a(f"ds_read_b32 v{64+q}, v1 offset:{L_U1+256*q}\nds_read_b32 v{68+q}, v1 offset:{L_U2+256*q}")
            a("s_waitcnt lgkmcnt(0)\nv_add_f32 v64, v64, v65\nv_add_f32 v66, v66, v67\nv_add_f32 v58, v64, v66\nv_add_f32 v68, v68, v69\nv_add_f32 v70, v70, v71\nv_add_f32 v59, v68, v70")
        self.stamp(9)
        a("s_barrier")
        a("L_Gtail2:")
        for q in range(4): a(f"ds_read_b32 v{64+q}, v7 offset:{256*q}")
        if o.fold:
            a("ds_read_b128 v[68:71], v13\nds_read_b128 v[72:75], v13 offset:16\nds_read_b32 v56, v11\ns_waitcnt lgkmcnt(1)")
            a("v_pk_add_f32 v[68:69], v[68:69], v[70:71]\nv_pk_add_f32 v[72:73], v[72:73], v[74:75]\nv_add_f32 v64, v64, v65\nv_add_f32 v66, v66, v67\nv_pk_add_f32 v[68:69], v[68:69], v[72:73]\nv_add_f32 v64, v64, v66")
            a("v_mul_f32 v68, 0x3acccccd, v68\nv_mul_f32 v69, 0x3acccccd, v69\nv_fma_f32 v69, -v68, v68, v69\nv_add_f32 v69, 0x3727c5ac, v69\nv_rsq_f32 v69, v69")
            a("v_fma_f32 v64, -v68, v58, v64\nv_fma_f32 v64, v69, v64, v59")
        else:
            a("ds_read_b32 v56, v11\ns_waitcnt lgkmcnt(1)")
            a("v_add_f32 v64, v64, v65\nv_add_f32 v66, v66, v67\nv_add_f32 v64, v64, v66")
        a("v_mov_b32 v65, v64\nv_permlane32_swap_b32 v64, v65")
        a("v_mul_f32 v66, v64, v64\nv_fma_f32 v66, v66, v55, 1.0\nv_mul_f32 v66, v66, v64\nv_mul_f32 v66, 0xc0135761, v66")
        a("v_exp_f32 v66, v66\nv_mul_f32 v64, v64, v65\nv_add_f32 v66, 1.0, v66\nv_rcp_f32 v66, v66\nv_mul_f32 v64, v64, v66")
        a("v_mov_b32_dpp v65, v64 quad_perm:[1,1,3,3] row_mask:0xf bank_mask:0xf\nv_cvt_pk_bf16_f32 v64, v64, v65")
        for m in range(16): a(f"v_readlane_b32 s{76+m}, v64, {2*m}")
        for m in range(16):
            lo, hi = Dp[m]
            for k in range(2):
                if m == 0: a(f"v_dot2_f32_bf16 v{68+2*k}, s{76+m}, v{lo[k]}, 0\nv_dot2_f32_bf16 v{69+2*k}, s{76+m}, v{hi[k]}, 0")
                else: a(f"v_dot2c_f32_bf16 v{68+2*k}, s{76+m}, v{lo[k]}\nv_dot2c_f32_bf16 v{69+2*k}, s{76+m}, v{hi[k]}")
        a("s_mov_b64 s[14:15], exec\ns_and_b32 exec_hi, exec_hi, s71")
        self.tag(range(68, 72))
        a("buffer_store_dwordx4 v[68:71], v8, s[44:47], s70 offen sc1\ns_mov_b64 exec, s[14:15]")
        self.stamp(13)
        a("s_cbranch_execz L_final\ns_cmp_lg_u32 s8, 0\ns_cbranch_scc1 L_wend\ns_cmp_ge_u32 s11, 40\ns_cbranch_scc1 L_wend")
        a("L_final:")
        self.srd(52, 38, 1280)
        a("v_lshrrev_b32 v2, 2, v0\nv_mul_u32_u24 v2, 2560, v2\nv_add_u32 v2, v2, v10\nv_lshrrev_b32 v3, 1, v10\nv_lshl_add_u32 v3, v16, 1, v3")
        a(f"s_add_u32 s62, s69, {WS_OP}\ns_add_u32 s63, s62, 40960\ns_add_u32 s64, s62, 81920\ns_add_u32 s65, s62, 122880\ns_lshr_b32 s67, s69, 1")
        def ld():
            for u in range(3): a(f"buffer_load_dwordx4 v[{72+4*u}:{75+4*u}], v2, s[44:47], s{62+u} offen sc1")
            a("s_mov_b64 s[76:77], exec\ns_and_b32 exec_lo, exec_lo, 0xffffff\ns_mov_b32 exec_hi, 0")
            a("buffer_load_dwordx4 v[84:87], v2, s[44:47], s65 offen sc1\ns_mov_b64 exec, s[76:77]")
        for k in range(84, 88): a(f"v_and_b32 v{k}, s98, v18")
        if o.cack: self.waitvm(0)
        self.poll(ld, lambda: self.chk_tag(range(72, 88), 90), o.bo_c, 36)
        self.stamp(14)
        self.sum4x4(72)
        self.red4([72, 73, 74, 75]); self.ror(72, 4); self.ror(72, 8)
        a(f"v_fma_f32 v72, v72, v{GB}, v56\nv_cvt_pk_bf16_f32 v72, v72, v72")
        a("s_and_b32 exec_lo, exec_lo, 0x000f000f\ns_and_b32 exec_hi, exec_hi, 0x000f000f")
        a("buffer_store_short v72, v3, s[52:55], s67 offen")
        a("s_cbranch_execz L_dry_ret")
        a("s_cmp_lg_u32 s11, 0\ns_cbranch_scc1 L_fin2")
        a("s_mov_b64 exec, 1\nv_mov_b32 v6, 0\nbuffer_store_dword v18, v6, s[44:47], 0 offen sc1")
        a("L_fin2:")
        self.stamp(15)
        a("s_branch L_wend")
        a("L_end:\ns_endpgm")
        a(footer(256, 100, 256))
        if o.move:
            i0 = a.L.index(";;MOVE_BEGIN"); i1 = a.L.index(";;MOVE_END"); ie = a.L.index("L_end:")
            a.L = a.L[:i0] + a.L[i1+1:ie] + a.L[i0+1:i1] + a.L[ie:]
        if o.skipvm:
            L = []
            for i, line in enumerate(a.L):
                if "buffer_store" in line and "v19" not in line and "v18" not in line:
                    L += [f"    s_cbranch_execz L_sks{i}", line, f"L_sks{i}:"]
                else: L.append(line)
            a.L = L
        return a.text()

if __name__ == "__main__":
    ap = argparse.ArgumentParser()
    ap.add_argument("-o", default="k.s")
    for k, v in dict(depth=6, depth2=0, d2pos=12, d0=2, stamps=0, dry=1, fdry=0, prio=3, sprio=3, masked=1, swait=0, fsleep=8, msleep=4, tsleep=0, usleep=6,
                     nopoll=0, b1early=1, nofront=0, nostore=0, norole=0, nohopld=0, t1=18, t2=36, t3=56, tickets=1, wlate=0, gearly=160,
                     pipe=0, pgap=1, xsleep=4, preb=4, prez=4, prec=4, asleep=1, hx=0, ackst=0, td=0, tdrep=16, tdsleep=1, yack=1, pretouch=0, dynord=0, w1dry=0, codepf=0, cons=0, skipvm=1, sml=0, atgt=4, gtrig=1, gprio=-1, early=0, atrig=1, move=0, auxalign=0, gwait=1, cack=1, dprio=3, fold=1, t4=64, wsplit=8).items():
        ap.add_argument("--" + k, type=int, default=v)
    for k in ("nt", "wnt", "lnt"): ap.add_argument("--" + k, default="nt")
    ap.add_argument("--ptf", default="")
    ap.add_argument("--pnt", default="")
    ap.add_argument("--gnt", default="")
    for k in ("pipea", "pipeb", "pipez", "pipec"): ap.add_argument("--" + k, type=int, default=None)
    for k in ("bo_a", "bo_b", "bo_z", "bo_c"): ap.add_argument("--" + k, default="0")
    o = ap.parse_args()
    for k in ("bo_a", "bo_b", "bo_z", "bo_c"):
        v = [int(x) for x in getattr(o, k).split(",")]; setattr(o, k, v[0] if len(v) == 1 else tuple(v))
    for k in ("nt", "wnt", "lnt"):
        if getattr(o, k) == "pl": setattr(o, k, "")
    g = G(o); t = g.build()
    open(o.o, "w").write(t)
    print("nops inserted:", g.a.nops, "lines:", len(t.splitlines()))
```
